```python
import torch

def _softmax(x, axis=-1):
    return torch.softmax(x, dim=axis)

def _gelu(x):
    return torch.nn.functional.gelu(x, approximate='tanh')

def _silu(x):
    return torch.nn.functional.silu(x)

def _sigmoid(x):
    return torch.sigmoid(x)

def _layernorm(x, axis=-1, eps=1e-05):
    m = x.mean(dim=axis, keepdim=True)
    v = x.var(dim=axis, keepdim=True, unbiased=False)
    return (x - m) / torch.sqrt(v + eps)

def _scatter_add(tgt, idx, src, axis=0):
    return tgt.clone().index_add_(axis, idx, src)

def _segment_sum(src, seg, n):
    out = torch.zeros((n,) + src.shape[1:], dtype=src.dtype)
    return out.index_add_(0, seg, src)

def _pad(x, pw):
    flat = tuple((v for pair in reversed(pw) for v in pair))
    return torch.nn.functional.pad(x, flat)
kernel_name = 'adaLN_cond__memory_aug_recurrent_mem_tr__dense_activation_gelu__prompt'

def setup_inputs():

    _w = lambda a: (lambda t: t.to(torch.bfloat16) if t.is_floating_point() else t)(torch.as_tensor(a))

    def _A_setup():
        B, S, Dm = (1, 2048, 1024)
        H, Dh = (32, 128)
        M, seg = (8, 32)
        seg = min(seg, S)
        S = S // seg * seg
        return {'x': _w((lambda *s: torch.randn(*s, dtype=torch.bfloat16) * 0.05)(B, S, Dm)), 'mem0': _w((lambda *s: torch.randn(*s, dtype=torch.bfloat16) * 0.8)(B, M, Dm)), 'Wq': _w((lambda *s: torch.randn(*s, dtype=torch.bfloat16) * 1.6)(Dm, H, Dh) * Dm ** (-0.5)), 'Wk': _w((lambda *s: torch.randn(*s, dtype=torch.bfloat16) * 1.6)(Dm, H, Dh) * Dm ** (-0.5)), 'Wv': _w((lambda *s: torch.randn(*s, dtype=torch.bfloat16) * 0.8)(Dm, H, Dh) * Dm ** (-0.5)), 'Wo': _w((lambda *s: torch.randn(*s, dtype=torch.bfloat16) * 0.8)(H, Dh, Dm) * (H * Dh) ** (-0.5)), 'seg_len': seg}
    _A_in = _A_setup()

    def _B_setup():
        B, S, D, F = (1, 2048, 1024, 3584)
        return {'x': _w((lambda *s: torch.randn(*s, dtype=torch.bfloat16) * 0.05)(B, S, D)), 'w1': _w((lambda *s: torch.randn(*s, dtype=torch.bfloat16) * 1.6)(D, F) * D ** (-0.5)), 'b1': _w((lambda *s: torch.randn(*s, dtype=torch.bfloat16) * 1.6)(F) * 0.01), 'w2': _w((lambda *s: torch.randn(*s, dtype=torch.bfloat16) * 0.2)(F, D) * F ** (-0.5)), 'b2': _w((lambda *s: torch.randn(*s, dtype=torch.bfloat16) * 0.2)(D) * 0.01)}
    _B_in = _B_setup()
    return {'A_x': _A_in['x'], 'A_mem0': _A_in['mem0'], 'A_Wq': _A_in['Wq'], 'A_Wk': _A_in['Wk'], 'A_Wv': _A_in['Wv'], 'A_Wo': _A_in['Wo'], 'A_seg_len': _A_in['seg_len'], 'B_x': _B_in['x'], 'B_w1': _B_in['w1'], 'B_b1': _B_in['b1'], 'B_w2': _B_in['w2'], 'B_b2': _B_in['b2'], 'c': _w((lambda *s: torch.randn(*s, dtype=torch.bfloat16) * 0.05)(1, 1024) * 8.0), 'w_mod': _w((lambda *s: torch.randn(*s, dtype=torch.bfloat16) * 0.05)(1024, 6 * 1024) * 1024 ** (-0.5) * 8.0)}

def reference(A_x, A_mem0, A_Wq, A_Wk, A_Wv, A_Wo, A_seg_len, B_x, B_w1, B_b1, B_w2, B_b2, c, w_mod):

    def _A_ref(x, mem0, Wq, Wk, Wv, Wo, seg_len):
        B, S, Dm = x.shape
        H, Dh = (Wq.shape[1], Wq.shape[2])
        M = mem0.shape[1]
        scale = Dh ** (-0.5)
        n_seg = S // seg_len
        L = M + seg_len
        idx = torch.arange(L)
        mask = (idx[:, None] < M) | (idx[:, None] >= idx[None, :])
        mem = mem0
        outs = []
        for s in range(n_seg):
            xs = x[:, s * seg_len:(s + 1) * seg_len, :].clone()
            h = torch.concatenate([mem, xs], axis=1)
            q = torch.einsum('btd,dhe->bhte', h, Wq)
            k = torch.einsum('btd,dhe->bhte', h, Wk)
            v = torch.einsum('btd,dhe->bhte', h, Wv)
            scores = torch.einsum('bhqe,bhke->bhqk', q, k) * scale
            scores = torch.where(mask[None, None], scores, -1000000000.0)
            p = _softmax(scores, axis=-1)
            o = torch.einsum('bhqk,bhke->bhqe', p, v)
            o = torch.einsum('bhte,hed->btd', o, Wo)
            mem = o[:, :M, :].clone()
            outs.append(o[:, M:, :])
        return torch.concatenate(outs, axis=1)

    def _B_ref(x, w1, b1, w2, b2):
        h = torch.einsum('bsd,df->bsf', x, w1) + b1
        h = _gelu(h)
        return torch.einsum('bsf,fd->bsd', h, w2) + b2
    x = A_x
    mod = (_silu(c) @ w_mod).reshape(c.shape[0], 6, 1, -1)
    sa, ca, ga, sb, cb, gb = (mod[:, 0].clone(), mod[:, 1].clone(), mod[:, 2].clone(), mod[:, 3].clone(), mod[:, 4].clone(), mod[:, 5].clone())
    h = _layernorm(x, axis=-1) * (1 + ca) + sa
    x = x + ga * _A_ref(h, A_mem0, A_Wq, A_Wk, A_Wv, A_Wo, A_seg_len)
    h = _layernorm(x, axis=-1) * (1 + cb) + sb
    x = x + gb * _B_ref(h, B_w1, B_b1, B_w2, B_b2)
    return x
```

```python
import sys, os
sys.path.insert(0, os.path.join(os.path.dirname(__file__), "..", "gen"))

class Asm:
    def __init__(self):
        self.l = []; self.uid = 0
    def __call__(self, s):
        for line in s.strip().split("\n"):
            line = line.strip()
            if not line: continue
            self.l.append(line if line.endswith(":") else "    " + line)
    def lab(self, b):
        self.uid += 1
        return f"L_{b}_{self.uid}"

def gen(name, hops, T=200, W=20, lds=90112, nwg=256, per=32):
    a = Asm()
    a.l += [f".globl {name}", ".p2align 8", f".type {name},@function", f"{name}:"]
    done = a.lab("done")
    a(f"""
    s_cmp_ge_u32 s2, {nwg}
    s_cbranch_scc1 {done}
    s_load_dwordx4 s[4:7], s[0:1], 0
    v_and_b32 v1, 63, v0
    v_lshrrev_b32 v2, 6, v0
    s_nop 0
    v_readfirstlane_b32 s44, v2
    s_waitcnt lgkmcnt(0)
    s_mov_b32 s12, s4
    s_and_b32 s13, s5, 0xffff
    s_mov_b32 s14, 0x10000000
    s_mov_b32 s15, 0x00020000
    s_mov_b32 s16, s6
    s_and_b32 s17, s7, 0xffff
    s_mov_b32 s18, 0x10000
    s_mov_b32 s19, 0x00020000
    s_getreg_b32 s40, hwreg(HW_REG_XCC_ID)
    s_and_b32 s40, s40, 7
    """)
    tk = a.lab("tk")
    a(f"""
    s_cmp_lg_u32 s44, 0
    s_cbranch_scc1 {tk}
    v_mov_b32 v3, 1
    s_lshl_b32 s45, s40, 8
    v_mov_b32 v4, s45
    s_mov_b64 exec, 1
    buffer_atomic_add v3, v4, s[12:15], 0 offen sc0
    s_waitcnt vmcnt(0)
    v_mov_b32 v4, 0
    ds_write_b32 v4, v3
    s_waitcnt lgkmcnt(0)
    s_mov_b64 exec, -1
    {tk}:
    s_barrier
    v_mov_b32 v4, 0
    ds_read_b32 v3, v4
    s_waitcnt lgkmcnt(0)
    v_readfirstlane_b32 s41, v3
    s_nop 3
    s_cmp_ge_u32 s41, {per}
    s_cbranch_scc1 {done}
    v_lshlrev_b32 v5, 4, v1
    v_lshlrev_b32 v6, 3, v1
    s_mov_b32 s60, 1
    s_mov_b32 s70, 0
    s_mov_b32 s71, 0
    """)
    loop = a.lab("loop")
    a(f"{loop}:")
    st = a.lab("st")
    a(f"""
    s_cmp_lg_u32 s60, {W}
    s_cbranch_scc1 {st}
    s_memrealtime s[80:81]
    s_mov_b32 s70, 0
    s_waitcnt lgkmcnt(0)
    {st}:
    v_mov_b32 v8, s60
    v_mov_b32 v9, s60
    v_mov_b32 v10, s60
    v_mov_b32 v11, s60
    """)
    base = 0x100000
    for hi, h in enumerate(hops):
        ty = h['ty']
        ring = h.get('ring', 2)
        stf = h.get('st', '')
        ldf = h.get('ld', 'sc1')
        sl0 = h.get('sl0', 0); sl = h.get('sl', 0)
        comp = h.get('comp', 0)
        if ty == 'G':
            csz = h.get('csz', 1024)
            slotsz = per * 8 * 1024
        else:
            csz = h.get('csz', 512)
            slotsz = 8 * per * 1024
        if ring:
            assert ring & (ring - 1) == 0
            a(f"s_and_b32 s46, s60, {ring-1}")
        else:
            a("s_mov_b32 s46, s60")
        a(f"s_mul_i32 s46, s46, {slotsz}")
        a(f"s_add_u32 s46, s46, {base:#x}")
        base += slotsz * (ring if ring else T + 2)
        nost = a.lab("nost")
        if comp:
            a(f"s_sleep {comp}")
        pw = h.get('pw', 0)
        a(f"s_cmp_lg_u32 s44, {pw}")
        a(f"s_cbranch_scc1 {nost}")
        if ty == 'G':
            a(f"""
            s_lshl_b32 s47, s41, 13
            s_lshl_b32 s48, s40, 10
            s_add_u32 s47, s47, s48
            s_add_u32 s47, s47, s46
            """)
        else:
            a(f"""
            s_mul_i32 s47, s40, {per*csz}
            s_mul_i32 s48, s41, {csz}
            s_add_u32 s47, s47, s48
            s_add_u32 s47, s47, s46
            """)
        nl = csz // 16
        if nl < 64:
            a(f"s_mov_b64 exec, {(1 << nl) - 1:#x}" if nl <= 32 else f"s_mov_b32 exec_hi, {(1 << (nl - 32)) - 1:#x}")
        a(f"buffer_store_dwordx4 v[8:11], v5, s[12:15], s47 offen {stf}")
        a("s_mov_b64 exec, -1")
        a(f"{nost}:")
        skip = a.lab("skip")
        if ty == 'G':
            cw = h.get('cw', 0)
            a(f"s_cmp_lg_u32 s44, {cw}")
            a(f"s_cbranch_scc1 {skip}")
            a(f"""
            s_lshl_b32 s47, s41, 13
            s_add_u32 s47, s47, s46
            s_add_u32 s48, s47, 4096
            """)
            loads = [(47 if i < 4 else 48, 1024 * (i & 3)) for i in range(8)]
            lanes = nl
        else:
            q = per * csz // 4
            a(f"""
            s_mul_i32 s47, s40, {per*csz}
            s_mul_i32 s48, s44, {q}
            s_add_u32 s47, s47, s48
            s_add_u32 s47, s47, s46
            s_add_u32 s48, s47, 4096
            """)
            n = q // 1024
            loads = [(47 if i < 4 else 48, 1024 * (i & 3)) for i in range(n)]
            lanes = 64
        if sl0:
            a(f"s_sleep {sl0}")
        pl = a.lab("pl"); ok = a.lab("ok")
        if lanes < 64:
            a(f"s_mov_b64 exec, {(1 << lanes) - 1:#x}" if lanes <= 32 else f"s_mov_b32 exec_hi, {(1 << (lanes - 32)) - 1:#x}")
        a("s_mov_b32 s50, 0")
        if h.get('cheap'):
            cp = a.lab("cp")
            np_ = 8
            stride = 1024 if ty == 'G' else csz
            a(f"""
            v_and_b32 v12, 7, v1
            v_mul_u32_u24 v12, {stride}, v12
            v_add_u32 v12, {csz-4}, v12
            {cp}:
            buffer_load_dword v13, v12, s[12:15], s47 offen {ldf}
            s_waitcnt vmcnt(0)
            v_cmp_ne_u32 vcc, s60, v13
            s_nop 1
            s_cbranch_vccz {pl}
            """)
            if sl: a(f"s_sleep {sl}")
            a(f"""
            s_add_u32 s50, s50, 1
            s_add_u32 s70, s70, 1
            s_cmp_lt_u32 s50, 0x40000
            s_cbranch_scc1 {cp}
            s_mov_b32 s71, 1
            """)
        npipe = h.get('pipe', 1)
        nl_ = len(loads)
        def issue(p, fl):
            for i, (sr, off) in enumerate(loads):
                r = 16 + 4 * (p * nl_ + i)
                a(f"buffer_load_dwordx4 v[{r}:{r+3}], v5, s[12:15], s{sr} offen offset:{off} {fl}")
        def check(p):
            regs = list(range(16 + 4 * p * nl_, 16 + 4 * (p + 1) * nl_))
            a(f"v_min3_u32 v14, v{regs[0]}, v{regs[1]}, v{regs[2]}")
            rest = regs[3:]
            while len(rest) >= 2:
                a(f"v_min3_u32 v14, v14, v{rest[0]}, v{rest[1]}")
                rest = rest[2:]
            if rest:
                a(f"v_min_u32 v14, v14, v{rest[0]}")
            a(f"""
            v_cmp_ne_u32 vcc, s60, v14
            s_nop 1
            s_cbranch_vccz {ok}
            """)
        if 'ld0' in h:
            issue(0, h['ld0'])
            a("s_waitcnt vmcnt(0)")
            check(0)
            a("s_add_u32 s70, s70, 1")
        if npipe == 1:
            a(f"{pl}:")
            issue(0, ldf)
            a("s_waitcnt vmcnt(0)")
            check(0)
            if sl: a(f"s_sleep {sl}")
        else:
            a(f"{pl}_pre:")
            for p in range(npipe - 1):
                issue(p, ldf)
                if sl: a(f"s_sleep {sl}")
            a(f"{pl}:")
            for p in range(npipe):
                issue((p + npipe - 1) % npipe, ldf)
                a(f"s_waitcnt vmcnt({(npipe-1)*nl_})")
                check(p)
                a("s_add_u32 s70, s70, 1")
        a(f"""
        s_add_u32 s50, s50, 1
        s_add_u32 s70, s70, {1 if npipe == 1 else 0}
        s_cmp_lt_u32 s50, 0x40000
        s_cbranch_scc1 {pl}
        s_mov_b32 s71, 1
        {ok}:
        s_mov_b64 exec, -1
        {skip}:
        """)
        if h.get('bar', 1):
            a("s_barrier")
    a(f"""
    s_cmp_eq_u32 s71, 1
    s_cbranch_scc1 {done}
    s_add_u32 s60, s60, 1
    s_cmp_le_u32 s60, {T}
    s_cbranch_scc1 {loop}
    s_memrealtime s[82:83]
    s_waitcnt lgkmcnt(0)
    s_sub_u32 s82, s82, s80
    v_mov_b32 v8, s82
    v_mov_b32 v9, s70
    v_mov_b32 v10, s40
    v_mov_b32 v11, s41
    s_lshl_b32 s45, s2, 6
    s_lshl_b32 s46, s44, 4
    s_add_u32 s45, s45, s46
    v_mov_b32 v4, 0
    s_mov_b64 exec, 1
    buffer_store_dwordx4 v[8:11], v4, s[16:19], s45 offen
    {done}:
    s_endpgm
    """)
    kd = f""".p2align 6
.amdhsa_kernel {name}
  .amdhsa_next_free_vgpr 256
  .amdhsa_next_free_sgpr 102
  .amdhsa_accum_offset 256
  .amdhsa_group_segment_fixed_size 0
  .amdhsa_kernarg_size 16
  .amdhsa_user_sgpr_count 2
  .amdhsa_user_sgpr_kernarg_segment_ptr 1
  .amdhsa_system_sgpr_workgroup_id_x 1
.end_amdhsa_kernel
"""
    return "\n".join(a.l) + "\n", kd, f"; @launch kernel={name} grid=({nwg},1,1) block=(256,1,1) lds={lds}"

def build(tests, path):
    hdr = ""; body = ""; kds = ""
    for i, (nm, kw) in enumerate(tests):
        b, k, l = gen(f"b{i}_kernel", **kw)
        b = b.replace("L_", f"L{i}_")
        hdr += l + "\n"; body += b; kds += k
    out = hdr + '.amdgcn_target "amdgcn-amd-amdhsa--gfx950"\n.text\n' + body + '.section .rodata,"a"\n' + kds
    open(path, "w").write(out)
    open(path + ".names", "w").write("\n".join(f"{nm}\t{kw.get('T',200)-kw.get('W',20)+1}" for nm, kw in tests) + "\n")
```

```python
import sys, os
from hop import Asm

def execmask(a, nl):
    if nl >= 64: return
    if nl <= 32:
        a(f"s_mov_b64 exec, {(1 << nl) - 1:#x}")
    else:
        a(f"s_mov_b32 exec_hi, {(1 << (nl - 32)) - 1:#x}")

def gen(name, hops, T=200, W=20, lds=90112, nwg=256, per=32, nw=4, load=None):
    a = Asm()
    a.l += [f".globl {name}", ".p2align 8", f".type {name},@function", f"{name}:"]
    done = a.lab("done")
    a(f"""
    s_cmp_ge_u32 s2, {nwg}
    s_cbranch_scc1 {done}
    s_load_dwordx4 s[4:7], s[0:1], 0
    v_and_b32 v1, 63, v0
    v_lshrrev_b32 v2, 6, v0
    s_nop 0
    v_readfirstlane_b32 s44, v2
    s_waitcnt lgkmcnt(0)
    s_mov_b32 s12, s4
    s_and_b32 s13, s5, 0xffff
    s_mov_b32 s14, 0x10000000
    s_mov_b32 s15, 0x00020000
    s_mov_b32 s16, s6
    s_and_b32 s17, s7, 0xffff
    s_mov_b32 s18, 0x10000
    s_mov_b32 s19, 0x00020000
    s_getreg_b32 s40, hwreg(HW_REG_XCC_ID)
    s_and_b32 s40, s40, 7
    """)
    tk = a.lab("tk")
    loader = a.lab("loader")
    a(f"""
    s_cmp_lg_u32 s44, 0
    s_cbranch_scc1 {tk}
    v_mov_b32 v3, 1
    s_lshl_b32 s45, s40, 8
    v_mov_b32 v4, s45
    s_mov_b64 exec, 1
    buffer_atomic_add v3, v4, s[12:15], 0 offen sc0
    s_waitcnt vmcnt(0)
    v_mov_b32 v4, 0
    ds_write_b32 v4, v3
    s_waitcnt lgkmcnt(0)
    s_mov_b64 exec, -1
    {tk}:
    s_barrier
    v_mov_b32 v4, 0
    ds_read_b32 v3, v4
    s_waitcnt lgkmcnt(0)
    v_readfirstlane_b32 s41, v3
    v_lshlrev_b32 v5, 4, v1
    s_nop 3
    s_cmp_ge_u32 s41, {per}
    s_cbranch_scc1 {loader if load else done}
    s_mov_b32 s60, 1
    s_mov_b32 s70, 0
    s_mov_b32 s71, 0
    """)
    loop = a.lab("loop")
    a(f"{loop}:")
    st = a.lab("st")
    a(f"""
    s_cmp_lg_u32 s60, {W}
    s_cbranch_scc1 {st}
    s_memrealtime s[80:81]
    s_mov_b32 s70, 0
    s_waitcnt lgkmcnt(0)
    {st}:
    v_mov_b32 v8, s60
    v_mov_b32 v9, s60
    v_mov_b32 v10, s60
    v_mov_b32 v11, s60
    """)
    base = 0x100000
    for hi, h in enumerate(hops):
        ty = h['ty']
        ring = h.get('ring', 0)
        stf = h.get('st', 'sc1' if ty == 'G' else '')
        ldf = h.get('ld', 'sc1')
        sl0 = h.get('sl0', 0); sl = h.get('sl', 0)
        comp = h.get('comp', 0)
        csz = h['csz']
        copies = h.get('copies', 1)
        copysz = per * 8 * csz
        slotsz = copysz * copies
        if ring:
            a(f"s_and_b32 s46, s60, {ring-1}")
        else:
            a("s_mov_b32 s46, s60")
        a(f"s_mul_i32 s46, s46, {slotsz}")
        a(f"s_add_u32 s46, s46, {base:#x}")
        base += slotsz * (ring if ring else T + 2)
        assert base < 0x8000000, base
        nost = a.lab("nost")
        if comp:
            a(f"s_sleep {comp}")
        npw = h.get('npw', 1)
        part = csz // npw
        assert part <= 1024
        a(f"s_cmp_ge_u32 s44, {npw}")
        a(f"s_cbranch_scc1 {nost}")
        if ty == 'G':
            a(f"s_mul_i32 s47, s41, {8*csz}")
            a(f"s_mul_i32 s48, s40, {csz}")
        else:
            a(f"s_mul_i32 s47, s40, {per*csz}")
            a(f"s_mul_i32 s48, s41, {csz}")
        a(f"""
        s_add_u32 s47, s47, s48
        s_mul_i32 s48, s44, {part}
        s_add_u32 s47, s47, s48
        s_add_u32 s47, s47, s46
        """)
        execmask(a, part // 16)
        for c in range(copies):
            a(f"buffer_store_dwordx4 v[8:11], v5, s[12:15], s47 offen {stf}")
            if c + 1 < copies:
                a(f"s_add_u32 s47, s47, {copysz}")
        a("s_mov_b64 exec, -1")
        a(f"{nost}:")
        skip = a.lab("skip")
        ncw = h.get('ncw', 1 if ty == 'G' else nw)
        tot = 8 * csz if ty == 'G' else per * csz
        q = tot // ncw
        a(f"s_cmp_ge_u32 s44, {ncw}")
        a(f"s_cbranch_scc1 {skip}")
        a(f"s_mul_i32 s47, s{41 if ty == 'G' else 40}, {tot}")
        a(f"""
        s_mul_i32 s48, s44, {q}
        s_add_u32 s47, s47, s48
        s_add_u32 s47, s47, s46
        """)
        n = max(q // 1024, 1)
        if q < 1024: execmask(a, q // 16)
        if sl0:
            a(f"s_sleep {sl0}")
        pl = a.lab("pl"); ok = a.lab("ok")
        a("s_mov_b32 s50, 0")
        def issue(p, c):
            for i in range(n):
                if i % 4 == 0:
                    a(f"s_add_u32 s48, s47, {c*copysz + i*1024}")
                r = 16 + 4 * (p * n + i)
                a(f"buffer_load_dwordx4 v[{r}:{r+3}], v5, s[12:15], s48 offen offset:{1024*(i&3)} {ldf}")
        def check(p):
            regs = list(range(16 + 4 * p * n, 16 + 4 * (p + 1) * n))
            a(f"v_min3_u32 v14, v{regs[0]}, v{regs[1]}, v{regs[2]}")
            rest = regs[3:]
            while len(rest) >= 2:
                a(f"v_min3_u32 v14, v14, v{rest[0]}, v{rest[1]}")
                rest = rest[2:]
            if rest:
                a(f"v_min_u32 v14, v14, v{rest[0]}")
            a(f"""
            v_cmp_ne_u32 vcc, s60, v14
            s_nop 1
            s_cbranch_vccz {ok}
            s_add_u32 s70, s70, 1
            """)
        if copies > 1:
            for c in range(copies):
                issue(c, c)
                if sl and c + 1 < copies: a(f"s_sleep {sl}")
            for c in range(copies):
                a(f"s_waitcnt vmcnt({(copies-1-c)*n})")
                check(c)
        a(f"{pl}:")
        issue(0, copies - 1)
        a("s_waitcnt vmcnt(0)")
        check(0)
        a(f"""
        s_add_u32 s50, s50, 1
        s_cmp_lt_u32 s50, 0x40000
        s_cbranch_scc1 {pl}
        s_mov_b32 s71, 1
        {ok}:
        s_mov_b64 exec, -1
        {skip}:
        """)
        if h.get('bar', 1):
            a("s_barrier")
    fin = a.lab("fin")
    a(f"""
    s_cmp_eq_u32 s71, 1
    s_cbranch_scc1 {fin}
    s_add_u32 s60, s60, 1
    s_cmp_le_u32 s60, {T}
    s_cbranch_scc1 {loop}
    s_memrealtime s[82:83]
    s_waitcnt lgkmcnt(0)
    s_sub_u32 s82, s82, s80
    v_mov_b32 v8, s82
    v_mov_b32 v9, s70
    v_mov_b32 v10, s40
    v_mov_b32 v11, s41
    s_lshl_b32 s45, s2, 7
    s_lshl_b32 s46, s44, 4
    s_add_u32 s45, s45, s46
    v_mov_b32 v4, 0
    s_mov_b64 exec, 1
    buffer_store_dwordx4 v[8:11], v4, s[16:19], s45 offen
    {fin}:
    v_mov_b32 v4, 0x8000
    v_mov_b32 v8, 1
    s_mov_b64 exec, 1
    buffer_store_dword v8, v4, s[12:15], 0 offen sc1
    s_branch {done}
    """)
    if load:
        foot = load['foot']; depth = load.get('depth', 8); gap = load.get('gap', 0); share = load.get('share', 1)
        ll = a.lab("ll")
        a(f"""
        {loader}:
        s_mov_b32 s50, 0
        s_lshr_b32 s51, s2, {share.bit_length()-1}
        s_mul_i32 s51, s51, 0x9000
        s_lshl_b32 s52, s44, 12
        s_add_u32 s51, s51, s52
        s_lshl_b32 s53, s44, 12
        s_add_u32 s53, s53, 1024
        v_mov_b32 v4, 0x8000
        s_mov_b32 s54, 0
        {ll}:
        s_and_b32 s51, s51, {foot-1:#x}
        s_add_u32 s52, s51, 0x8000000
        s_mov_b32 m0, s53
        s_nop 0
        """)
        for i in range(4):
            a(f"buffer_load_dwordx4 v5, s[12:15], s52 offen offset:{1024*i} lds")
        a(f"s_waitcnt vmcnt({depth})")
        if gap: a(f"s_sleep {gap}")
        np_ = a.lab("np")
        a(f"""
        s_add_u32 s51, s51, {nw*4096}
        s_add_u32 s54, s54, 1
        s_and_b32 s55, s54, 63
        s_cmp_lg_u32 s55, 0
        s_cbranch_scc1 {ll}
        buffer_load_dword v8, v4, s[12:15], 0 offen sc1
        s_waitcnt vmcnt(0)
        v_readfirstlane_b32 s55, v8
        s_nop 3
        s_cmp_eq_u32 s55, 1
        s_cbranch_scc1 {np_}
        s_cmp_lt_u32 s54, 0x40000
        s_cbranch_scc1 {ll}
        {np_}:
        v_mov_b32 v8, 0
        v_mov_b32 v9, 0
        v_mov_b32 v10, s54
        v_mov_b32 v11, 99
        s_lshl_b32 s45, s2, 7
        s_lshl_b32 s46, s44, 4
        s_add_u32 s45, s45, s46
        v_mov_b32 v4, 0
        s_mov_b64 exec, 1
        buffer_store_dwordx4 v[8:11], v4, s[16:19], s45 offen
        """)
    a(f"""
    {done}:
    s_endpgm
    """)
    kd = f""".p2align 6
.amdhsa_kernel {name}
  .amdhsa_next_free_vgpr 256
  .amdhsa_next_free_sgpr 102
  .amdhsa_accum_offset 256
  .amdhsa_group_segment_fixed_size 0
  .amdhsa_kernarg_size 16
  .amdhsa_user_sgpr_count 2
  .amdhsa_user_sgpr_kernarg_segment_ptr 1
  .amdhsa_system_sgpr_workgroup_id_x 1
.end_amdhsa_kernel
"""
    return "\n".join(a.l) + "\n", kd, f"; @launch kernel={name} grid=({nwg},1,1) block=({64*nw},1,1) lds={lds}"

def build(tests, path):
    hdr = ""; body = ""; kds = ""
    for i, (nm, kw) in enumerate(tests):
        b, k, l = gen(f"b{i}_kernel", **kw)
        b = b.replace("L_", f"L{i}_")
        hdr += l + "\n"; body += b; kds += k
    out = hdr + '.amdgcn_target "amdgcn-amd-amdhsa--gfx950"\n.text\n' + body + '.section .rodata,"a"\n' + kds
    open(path, "w").write(out)
    open(path + ".names", "w").write("\n".join(f"{nm}\t{kw.get('T',200)-kw.get('W',20)+1}" for nm, kw in tests) + "\n")
```

```python
from hop2 import *
T = []
for copies, sl in ((1, 0), (2, 2), (2, 4), (3, 2), (3, 3), (4, 2)):
  for sl0 in (4, 6, 8, 10):
    T.append((f"G fresh copies{copies} sl{sl} sl0={sl0}", dict(T=100, hops=[dict(ty='G', csz=1024, copies=copies, sl=sl, sl0=sl0)])))
for sl0 in (8, 10, 12):
    T.append((f"G fresh ncw4 sl0={sl0}", dict(hops=[dict(ty='G', csz=1024, ncw=4, sl0=sl0)])))
    T.append((f"G fresh csz512 sl0={sl0}", dict(hops=[dict(ty='G', csz=512, sl0=sl0)])))
    T.append((f"G per16 csz2048 sl0={sl0}", dict(per=16, hops=[dict(ty='G', csz=2048, npw=2, ncw=2, sl0=sl0)])))
for sl0 in (2, 3, 4):
    T.append((f"L per16 csz1024 ring2 sl0={sl0}", dict(per=16, hops=[dict(ty='L', csz=1024, ring=2, sl0=sl0)])))
    T.append((f"L per16 csz1536 ring2 sl0={sl0}", dict(per=16, hops=[dict(ty='L', csz=1536, npw=2, ring=2, sl0=sl0)])))
    T.append((f"L per16 nw8 csz1024 ring2 sl0={sl0}", dict(per=16, nw=8, hops=[dict(ty='L', csz=1024, ring=2, sl0=sl0)])))
    T.append((f"L per32 csz512 fresh sl0={sl0}", dict(hops=[dict(ty='L', csz=512, ring=0, sl0=sl0)])))
T.append(("chain32", dict(hops=[dict(ty='G', csz=1024, sl0=10), dict(ty='L', csz=512, ring=2, sl0=3), dict(ty='L', csz=768, ring=2, sl0=3)])))
T.append(("chain16", dict(per=16, hops=[dict(ty='G', csz=2048, npw=2, ncw=2, sl0=10), dict(ty='L', csz=1024, ring=2, sl0=3), dict(ty='L', csz=1536, npw=2, ring=2, sl0=3)])))
for foot, gap, depth in ((0x100000, 0, 8), (0x100000, 8, 8), (0x4000000, 0, 8), (0x4000000, 8, 8), (0x4000000, 20, 8)):
    T.append((f"chain16 load foot{foot>>20}MB gap{gap}", dict(per=16, load=dict(foot=foot, gap=gap, depth=depth), hops=[dict(ty='G', csz=2048, npw=2, ncw=2, sl0=10), dict(ty='L', csz=1024, ring=2, sl0=3), dict(ty='L', csz=1536, npw=2, ring=2, sl0=3)])))
build(T, "b3.s")
```

```python
from hop2 import *
T = []
for st in ('', 'sc0', 'nt', 'sc0 nt'):
  for ld in ('sc1', 'sc0 sc1', 'nt'):
    T.append((f"L per16 csz1024 st[{st}] ld[{ld}] sl0=3", dict(per=16, hops=[dict(ty='L', csz=1024, ring=4, npw=4, sl0=3, st=st, ld=ld)])))
for sl0 in (1, 2, 3, 4):
    T.append((f"L per16 csz1024 npw4 sl0={sl0}", dict(per=16, hops=[dict(ty='L', csz=1024, ring=4, npw=4, sl0=sl0)])))
for csz, npw in ((2048, 4), (1024, 4), (512, 4)):
  for sl0 in (6, 8, 10, 12):
    T.append((f"G per16 csz{csz} npw4 ncw4 sl0={sl0}", dict(per=16, hops=[dict(ty='G', csz=csz, npw=npw, ncw=4, sl0=sl0)])))
for st in ('sc0 sc1', 'sc1 nt'):
    T.append((f"G per16 csz1024 st[{st}] sl0=10", dict(per=16, hops=[dict(ty='G', csz=1024, npw=4, ncw=4, sl0=10, st=st)])))
for ld in ('sc0 sc1', 'sc1 nt', 'nt'):
    T.append((f"G per16 csz1024 ld[{ld}] sl0=10", dict(per=16, hops=[dict(ty='G', csz=1024, npw=4, ncw=4, sl0=10, ld=ld)])))
build(T, "b4.s")
```

```python
import os
from lib1 import *
import workers as wk

E = lambda k, d: int(os.environ.get(k, str(d)))
STAMP = E("STAMP", 0)
STEP = E("STEP", 20)
SL_G = E("SL_G", 5)
SL_L1 = E("SL_L1", 3)
SL_X = E("SL_X", 4)
SL_V = E("SL_V", 2)
KXPOS = E("KXPOS", 5)
VXPOS = E("VXPOS", 0)
GA = E("GA", 0)
GB = E("GB", -1)
SL_K = E("SL_K", 4)
WARM = E("WARM", 4)
FORCE_SLOW = E("SLOW", 0)
TMO = 0x80000

L_MEM = 0
L_PX = 16384
L_PM = 20480
L_VWM = 53248
L_VRED = 49152
L_TICK = 26624
L_VWX = 32768
L_KX = 65536
L_KV = 27648
LDS_BYTES = wk.LDS_BYTES

PFD = 8
CTL_READY = WS_CTL + 4096


def gstamp(a, i):
    if STAMP == 2:
        a("s_memrealtime s[80:81]")
        a("s_memtime s[82:83]")
        a("s_waitcnt lgkmcnt(0)")
        a(f"s_mov_b32 s{72+i}, s80")
        a(f"s_mov_b32 s{76+i}, s82")


def stamp(a, i):
    if STAMP == 5:
        a(f"s_memtime s[{72+2*i}:{73+2*i}]")
    if STAMP == 1:
        a("s_memrealtime s[80:81]")
        a("s_waitcnt lgkmcnt(0)")
        a(f"s_mov_b32 s{72+i}, s80")


def tries(a, slot):
    if STAMP == 3:
        if slot == 0:
            a("s_mov_b32 s79, s70")
        else:
            a(f"s_lshl_b32 s83, s70, {8*slot}")
            a("s_or_b32 s79, s79, s83")


def stamp_dump(a):
    if STAMP == 5:
        n1 = a.lab("st5a")
        n2 = a.lab("st5b")
        a(f"""
        s_waitcnt lgkmcnt(0)
        s_cmp_lt_u32 s60, {E("S0", 8)}
        s_cbranch_scc0 {n1}
        """)
        for i in range(8):
            a(f"s_mov_b32 s{90+i}, 0")
        a(f"{n1}:")
        a("s_sub_u32 s89, s72, s88")
        a("s_add_u32 s90, s90, s89")
        for i in range(1, 7):
            a(f"s_sub_u32 s89, s{72+2*i}, s{70+2*i}")
            a(f"s_add_u32 s{90+i}, s{90+i}, s89")
        a(f"""
        s_mov_b32 s88, s84
        s_add_u32 s97, s97, 1
        s_cmp_lg_u32 s60, {E("S1", 56)}
        s_cbranch_scc1 {n2}
        s_lshl_b32 s89, s40, 4
        s_add_u32 s89, s89, s41
        s_lshl_b32 s89, s89, 3
        s_add_u32 s89, s89, s44
        s_lshl_b32 s89, s89, 5
        s_add_u32 s89, s89, {WS_STAMP:#x}
        v_mov_b32 v22, 0
        """)
        for i in range(8):
            a(f"v_mov_b32 v21, s{90+i}")
            a(f"buffer_store_dword v21, v22, s[12:15], s89 offen offset:{4*i}")
        a(f"{n2}:")
        return
    if STAMP not in (1, 2, 3):
        return
    if STAMP == 3:
        a(f"""
        s_memrealtime s[80:81]
        s_lshl_b32 s82, s40, 4
        s_add_u32 s82, s82, s41
        s_lshl_b32 s82, s82, 3
        s_add_u32 s82, s82, s44
        s_lshl_b32 s82, s82, 6
        s_add_u32 s82, s82, s60
        s_lshl_b32 s82, s82, 3
        s_add_u32 s82, s82, {WS_STAMP:#x}
        v_mov_b32 v22, 0
        v_mov_b32 v21, s79
        s_waitcnt lgkmcnt(0)
        v_mov_b32 v20, s80
        s_mov_b64 exec, 1
        buffer_store_dwordx2 v[20:21], v22, s[12:15], s82 offen
        s_mov_b64 exec, -1
        """)
        return
    nst = a.lab("nost")
    a(f"""
    s_cmp_lg_u32 s60, {STEP if STAMP == 1 else 62}
    s_cbranch_scc1 {nst}
    """)
    gstamp(a, 3)
    a(f"""
    s_lshl_b32 s82, s40, 4
    s_add_u32 s82, s82, s41
    s_lshl_b32 s82, s82, 3
    s_add_u32 s82, s82, s44
    s_lshl_b32 s82, s82, 5
    s_add_u32 s82, s82, {WS_STAMP:#x}
    v_mov_b32 v20, 0
    """)
    for i in range(8):
        a(f"v_mov_b32 v21, s{72+i}")
        a(f"buffer_store_dword v21, v20, s[12:15], s82 offen offset:{4*i}")
    a(f"{nst}:")


def check_sentinel(a, regs, tmp):
    regs = list(regs)
    a(f"v_max3_u32 v{tmp}, v{regs[0]}, v{regs[1]}, v{regs[2]}")
    rest = regs[3:]
    while len(rest) >= 2:
        a(f"v_max3_u32 v{tmp}, v{tmp}, v{rest[0]}, v{rest[1]}")
        rest = rest[2:]
    if rest:
        a(f"v_max_u32 v{tmp}, v{tmp}, v{rest[0]}")
    a(f"v_cmp_eq_u32 vcc, -1, v{tmp}")


def retry(a, lab, done):
    ok = a.lab("ok")
    a(f"""
    s_add_u32 s70, s70, 1
    s_cbranch_vccz {ok}
    s_cmp_lt_u32 s70, {TMO}
    s_cbranch_scc1 {lab}
    s_branch {done}
    {ok}:
    """)


def roles(a, done):
    tk = a.lab("tk")
    got = a.lab("got")
    sp = a.lab("sp")
    nz = a.lab("nz")
    a(f"""
    s_getreg_b32 s39, hwreg(HW_REG_XCC_ID)
    s_and_b32 s39, s39, 7
    s_cmp_lg_u32 s44, 1
    s_cbranch_scc1 {nz}
    v_mov_b32 v3, 0
    v_lshlrev_b32 v4, 2, v1
    s_lshl_b32 s45, s2, 8
    s_add_u32 s45, s45, {WS_CTL:#x}
    buffer_store_dword v3, v4, s[12:15], s45 offen sc1
    {nz}:
    """)
    wk.mod1_finish(a)
    a(f"""
    s_cmp_lg_u32 s44, 1
    s_cbranch_scc1 {tk}
    v_mov_b32 v3, 1
    s_lshl_b32 s45, s39, 5
    v_mov_b32 v4, 0
    s_waitcnt vmcnt(0)
    s_mov_b64 exec, 1
    buffer_atomic_add v3, v4, s[16:19], s45 offen sc0
    s_waitcnt vmcnt(0)
    v_readfirstlane_b32 s41, v3
    s_mov_b32 s40, s39
    s_nop 3
    s_cmp_lt_u32 s41, 32
    s_cbranch_scc1 {got}
    v_mov_b32 v3, 1
    buffer_atomic_add v3, v4, s[16:19], 0 offen offset:16 sc0
    s_waitcnt vmcnt(0)
    v_readfirstlane_b32 s46, v3
    s_mov_b64 exec, -1
    v_and_b32 v4, 7, v1
    v_lshlrev_b32 v4, 5, v4
    s_mov_b32 s70, 0
    {sp}:
    s_sleep 8
    buffer_load_dword v3, v4, s[16:19], 0 offen sc1
    s_waitcnt vmcnt(0)
    s_mov_b32 s48, 0
    """)
    for i in range(8):
        a(f"v_readlane_b32 s{50+i}, v3, {i}")
    a("s_nop 3")
    for i in range(8):
        a(f"s_add_u32 s48, s48, s{50+i}")
    a(f"""
    s_add_u32 s70, s70, 1
    s_cmp_ge_u32 s70, {TMO}
    s_cbranch_scc1 {done}
    s_cmp_lt_u32 s48, 256
    s_cbranch_scc1 {sp}
    """)
    for i in range(8):
        a(f"""
        s_min_u32 s48, s{50+i}, 32
        s_mov_b32 s40, {i}
        s_add_u32 s41, s48, s46
        s_cmp_lt_u32 s41, 32
        s_cbranch_scc1 {got}
        s_sub_u32 s46, s41, 32
        """)
    a(f"""
    s_branch {done}
    {got}:
    s_mov_b64 exec, -1
    s_lshl_b32 s45, s40, 8
    s_or_b32 s45, s45, s41
    v_mov_b32 v3, s45
    v_mov_b32 v4, {wk.L_BC + 8}
    ds_write_b32 v4, v3
    s_waitcnt lgkmcnt(0)
    {tk}:
    s_barrier
    v_mov_b32 v4, {wk.L_BC + 8}
    ds_read_b32 v3, v4
    s_waitcnt lgkmcnt(0)
    v_readfirstlane_b32 s45, v3
    s_nop 3
    s_lshr_b32 s40, s45, 8
    s_and_b32 s41, s45, 0xff
    """)


def stage_issue(a, sr, voff, soffs):
    for i, so in enumerate(soffs):
        a(f"s_add_u32 m0, s45, {1024*i}")
        a(f"s_add_u32 s48, s46, {so:#x}")
        a(f"buffer_load_dwordx4 v{voff}, s[{sr}:{sr+3}], s48 offen lds")


def stage_read(a, vtr, frags, second):
    for i, (r, off) in enumerate(frags):
        a(f"ds_read_b64_tr_b16 a[{r}:{r+1}], v{vtr} offset:{off}")
        a(f"ds_read_b64_tr_b16 a[{r+2}:{r+3}], v{vtr} offset:{off+second}")
        if i % 4 == 3:
            a("s_waitcnt lgkmcnt(0)")


def halves_add(a, d):
    a(f"v_permlane32_swap_b32 v{d}, v{d+2}")
    a(f"v_permlane32_swap_b32 v{d+1}, v{d+3}")
    a(f"v_add_f32 v{d}, v{d}, v{d+2}")
    a(f"v_add_f32 v{d+1}, v{d+1}, v{d+3}")


def pack_cols(a, d):
    a(f"""
    s_mov_b32 vcc_lo, 0x55555555
    s_mov_b32 vcc_hi, 0x55555555
    v_cndmask_b32_dpp v{d+2}, v{d+1}, v{d}, vcc quad_perm:[1,0,3,2] row_mask:0xf bank_mask:0xf
    s_not_b64 vcc, vcc
    v_cndmask_b32_dpp v{d+3}, v{d}, v{d+1}, vcc quad_perm:[1,0,3,2] row_mask:0xf bank_mask:0xf
    v_cvt_pk_bf16_f32 v{d+2}, v{d+2}, v{d+3}
    v_min_u32 v{d+2}, -2, v{d+2}
    """)


def kx_prefetch(a, t_off, base=32):
    a(f"s_add_u32 s46, s{t_off}, 4096")
    for kt in range(2):
        for ks in range(4):
            r = base + (kt * 4 + ks) * 4
            a(f"buffer_load_dwordx4 v[{r}:{r+3}], v6, s[12:15], s{t_off if kt == 0 else 46} offen offset:{1024*ks} sc1")


def vx_load(a):
    a(f"s_add_u32 s46, s65, 4096")
    for ks in range(4):
        for kt in range(2):
            r = 32 + (kt * 4 + ks) * 4
            a(f"buffer_load_dwordx4 v[{r}:{r+3}], v15, s[12:15], s{65 if kt == 0 else 46} offen offset:{1024*ks} sc1")
    a(f"s_add_u32 s65, s65, {32*24576}")


def kx_dma(a):
    a("s_add_u32 s46, s64, 4096")
    for kt in range(2):
        a(f"s_add_u32 m0, s59, {4096*kt}")
        a("s_nop 0")
        for ks in range(4):
            a(f"buffer_load_dwordx4 v28, s[12:15], s{64 if kt == 0 else 46} offen offset:{1024*ks} sc1 lds")
    a(f"s_add_u32 s64, s64, {32*24576}")


def phase_f(a, younger, hooks={}):
    a(f"s_waitcnt vmcnt({younger})")
    for ct in range(4):
        if ct in hooks:
            hooks[ct]()
        for ks in range(4):
            for kt in range(2):
                c = 64 + (ct * 2 + kt) * 4
                f = 32 + (kt * 4 + ks) * 4
                w = 64 + ct * 16 + ks * 4
                cc = "0" if ks == 0 else f"v[{c}:{c+3}]"
                a(f"v_mfma_f32_16x16x32_bf16 v[{c}:{c+3}], v[{f}:{f+3}], a[{w}:{w+3}], {cc}")
        if ct > 0:
            c = 64 + (ct - 1) * 8
            for i in range(4):
                a(f"v_cvt_pk_bf16_f32 v{c+i}, v{c+2*i}, v{c+2*i+1}")
            a(f"ds_write_b128 v10, v[{c}:{c+3}] offset:{L_VWX + (ct-1)*1024}")
    a("s_nop 2")
    c = 64 + 24
    for i in range(4):
        a(f"v_cvt_pk_bf16_f32 v{c+i}, v{c+2*i}, v{c+2*i+1}")
    a(f"ds_write_b128 v10, v[{c}:{c+3}] offset:{L_VWX + 3*1024}")
    if 4 in hooks:
        hooks[4]()


def kv_wait(a, done):
    lp = a.lab("kv_lp")
    ok = a.lab("kv_ok")
    a(f"""
    s_cmp_gt_u32 s69, s68
    s_cbranch_scc1 {ok}
    s_mov_b32 s70, 0
    {lp}:
    buffer_load_dword v10, v14, s[12:15], 0 offen sc1
    s_waitcnt vmcnt(0)
    v_readlane_b32 s69, v10, 0
    v_readlane_b32 s45, v10, 1
    s_add_u32 s70, s70, 1
    s_nop 2
    s_min_u32 s69, s69, s45
    s_cmp_gt_u32 s69, s68
    s_cbranch_scc1 {ok}
    s_sleep 4
    s_cmp_lt_u32 s70, {TMO}
    s_cbranch_scc1 {lp}
    s_branch {done}
    {ok}:
    """)


def mkv_publish(a, st):
    sk = a.lab("s_np")
    a(f"""
    s_cmp_lg_u32 s44, 0
    s_cbranch_scc1 {sk}
    ds_read_b128 v[20:23], v2 offset:{L_KV}
    s_lshl_b32 s45, s60, 17
    s_add_u32 s45, s45, s67
    s_waitcnt lgkmcnt(0)
    buffer_store_dwordx4 v[20:23], v2, s[12:15], s45 offen {st}
    {sk}:
    """)


def s_loop(a, done, fast):
    st = "" if fast else "sc1"
    loop = a.lab("s_loop")
    a(f"{loop}:")
    for i in range(4):
        a(f"v_mov_b32 v{16+i}, 0")
    a("s_barrier")
    if STAMP == 1:
        a("s_mov_b32 s78, s72")
    stamp(a, 0)
    for i in range(12):
        a(f"ds_read_b128 v[{64+4*i}:{67+4*i}], v2 offset:{L_MEM + 1024*i}")
    if KXPOS == 1:
        kx_prefetch(a, 63)
    if KXPOS == 3:
        a("s_add_u32 s46, s63, 4096")
    for i in range(16):
        if KXPOS == 3 and 1 <= i <= 8:
            q = i - 1
            a(f"buffer_load_dwordx4 v[{32+4*q}:{35+4*q}], v6, s[12:15], s{63 if q < 4 else 46} offen offset:{1024*(q&3)}")
        if i < 4:
            a(f"s_waitcnt lgkmcnt(11)")
        else:
            a(f"s_waitcnt lgkmcnt({15-i})")
        a(f"v_smfmac_f32_16x16x64_bf16 v[16:19], v[{64+4*i}:{67+4*i}], a[{8*i}:{8*i+7}], v3")
        if i < 4:
            k = 12 + i
            a(f"ds_read_b128 v[{64+4*k}:{67+4*k}], v2 offset:{L_MEM + 1024*k}")
    a("s_nop 7")
    halves_add(a, 16)
    pack_cols(a, 16)
    a(f"buffer_store_dword v18, v4, s[12:15], s61 offen {st}")
    a("ds_write_b32 v5, v18")
    stamp(a, 1)
    last = a.lab("s_last")
    a(f"""
    s_cmp_eq_u32 s60, 63
    s_cbranch_scc1 {last}
    """)
    stamp(a, 2)
    if KXPOS == 5:
        for i in range(8):
            a(f"ds_read_b128 v[{32+4*i}:{35+4*i}], v6 offset:{1024*i}")
    if SL_X:
        a(f"s_sleep {SL_X}")
    xp = a.lab("s_xp")
    xm = a.lab("s_xm")
    a("s_mov_b32 s70, 0")

    def xload():
        for ks in range(4):
            a(f"buffer_load_dwordx4 v[{64+4*ks}:{67+4*ks}], v7, s[12:15], s61 offen offset:{1024*ks} sc1")
    xload()
    yk = 0
    if KXPOS == 4:
        a(f"s_add_u32 s63, s63, {32*24576}")
        kx_prefetch(a, 63, 80)
        yk = 8
    a(f"s_branch {xm}")
    a(f"{xp}:")
    xload()
    a("s_waitcnt vmcnt(0)")
    a(f"{xm}:")
    if KXPOS == 5:
        a("s_waitcnt lgkmcnt(0)")
    for ks in range(4):
        a(f"s_waitcnt vmcnt({yk+3-ks})")
        x = 64 + 4 * ks
        for t, (c, k) in enumerate(((20, 48 + 4 * ks), (16, 32 + 4 * ks), (24, x))):
            cc = ("v[28:31]" if t == 2 else "0") if ks == 0 else f"v[{c}:{c+3}]"
            a(f"v_mfma_f32_16x16x32_bf16 v[{c}:{c+3}], v[{k}:{k+3}], v[{x}:{x+3}], {cc}")
        if ks < 3:
            a(f"v_max3_u32 v10, {('v10' if ks else 'v' + str(x))}, v{x}, v{x+1}")
            a(f"v_max3_u32 v10, v10, v{x+2}, v{x+3}")
    a("""
    v_max3_u32 v10, v10, v76, v77
    v_max3_u32 v10, v10, v78, v79
    v_cmp_eq_u32 vcc, -1, v10
    s_nop 1
    """)
    retry(a, xp, done)
    tries(a, 0)
    if STAMP == 1:
        a("s_mov_b32 s79, s70")
    stamp(a, 3)
    if KXPOS == 2:
        a(f"s_add_u32 s63, s63, {32*24576}")
        kx_prefetch(a, 63)
    for i in range(4):
        a(f"v_mov_b32_dpp v{16+i}, v{20+i} row_ror:8 row_mask:0xf bank_mask:0xc")
    a("v_mov_b32_dpp v24, v26 row_ror:8 row_mask:0xf bank_mask:0xc")
    a("v_mov_b32_dpp v25, v27 row_ror:8 row_mask:0xf bank_mask:0xc")
    a("""
    v_max3_f32 v10, v16, v17, v18
    v_max3_f32 v10, v10, v19, v24
    v_max_f32 v10, v10, v25
    """)

    def xred(op):
        a(f"""
        s_nop 1
        {op}_dpp v11, v10, v10 row_ror:8 row_mask:0xf bank_mask:0xf
        {op}_dpp v10, v10, v10 row_ror:8 row_mask:0xf bank_mask:0xf
        s_nop 1
        v_permlane16_swap_b32 v10, v11
        {op} v12, v10, v11
        {op} v10, v10, v11
        s_nop 1
        v_permlane32_swap_b32 v10, v12
        {op} v10, v10, v12
        """)
    xred("v_max_f32")
    a("v_mul_f32 v10, s66, v10")
    S = [16, 17, 18, 19, 24, 25]
    for r in S:
        a(f"v_fma_f32 v{r}, v{r}, s66, -v10")
    for r in S:
        a(f"v_exp_f32 v{r}, v{r}")
    a("""
    v_add_f32 v10, v16, v17
    v_add_f32 v11, v18, v19
    v_add_f32 v10, v10, v24
    v_add_f32 v11, v11, v25
    v_add_f32 v10, v10, v11
    """)
    xred("v_add_f32")
    a("v_rcp_f32 v10, v10")
    a("s_nop 0")
    for r in S:
        a(f"v_mul_f32 v{r}, v{r}, v10")
    a("""
    v_cvt_pk_bf16_f32 v16, v16, v17
    v_cvt_pk_bf16_f32 v17, v18, v19
    v_cvt_pk_bf16_f32 v18, v24, v25
    ds_write_b64 v8, v[16:17]
    ds_write_b32 v9, v18
    s_waitcnt lgkmcnt(0)
    """)
    stamp(a, 4)
    a("s_barrier")
    stamp(a, 5)
    if STAMP == 5:
        stamp(a, 6)
    if KXPOS not in (2, 4):
        a(f"s_add_u32 s63, s63, {32*24576}")
    if KXPOS == 4:
        a("s_waitcnt vmcnt(0)")
        for i in range(32):
            a(f"v_mov_b32 v{32+i}, v{80+i}")
    if SL_K:
        a(f"s_sleep {SL_K}")
    if KXPOS == 0:
        kx_prefetch(a, 63)
    a(f"""
    s_xor_b32 s45, s61, 0x8000
    buffer_store_dword v13, v4, s[12:15], s45 offen {st}
    """)
    mkv_publish(a, st)
    n1 = a.lab("s_n1")
    a(f"""
    v_mov_b32 v16, -1
    v_mov_b32 v17, -1
    v_mov_b32 v18, -1
    v_mov_b32 v19, -1
    s_lshl_b32 s45, s60, 18
    s_mov_b64 exec, 0xffffffff
    buffer_store_dwordx4 v[16:19], v15, s[12:15], s45 offen sc1
    s_mov_b64 exec, -1
    s_cmp_lg_u32 s44, 1
    s_cbranch_scc1 {n1}
    s_lshl_b32 s45, s60, 17
    s_add_u32 s45, s45, s67
    s_add_u32 s45, s45, {PFD << 17}
    buffer_store_dwordx4 v[16:19], v2, s[12:15], s45 offen sc1
    {n1}:
    """)
    a(f"s_add_u32 s68, s60, {3 if VXPOS == 1 else 2}")
    a("s_min_u32 s68, s68, 63")
    kv_wait(a, done)
    stamp_dump(a)
    a(f"""
    s_add_u32 s60, s60, 1
    s_add_u32 s61, s61, 0x4000
    s_and_b32 s61, s61, 0xffff
    s_branch {loop}
    {last}:
    s_waitcnt lgkmcnt(0)
    s_barrier
    """)
    mkv_publish(a, st)
    a(f"s_branch {done}")


def v_loop(a, done, fast):
    st = "" if fast else "sc1"
    loop = a.lab("v_loop")
    lp = a.lab("v_l1")
    lm = a.lab("v_l1m")
    assert VXPOS != 1
    a("s_mov_b32 s70, 0")
    a("v_mov_b32 v16, 0")
    a("v_mov_b32 v17, 0")
    a(f"s_branch {lm}")
    a(f"{loop}:")
    a("s_mov_b32 s70, 0")

    def l1load():
        for i in range(4):
            a(f"buffer_load_dwordx4 v[{64+4*i}:{67+4*i}], v9, s[12:15], s61 offen offset:{1024*i} sc1")
    l1load()
    yv = 0
    if VXPOS == 1:
        vx_load(a)
        yv = 8
    for i in range(8):
        a(f"v_mov_b32 v{16+i}, 0")
    a(f"s_branch {lm}")
    a(f"{lp}:")
    l1load()
    if yv:
        a("s_waitcnt vmcnt(0)")
    a(f"{lm}:")
    for i in range(4):
        x = 64 + 4 * i
        a(f"s_waitcnt vmcnt({yv+3-i})")
        a(f"ds_write_b128 v10, v[{x}:{x+3}] offset:{L_MEM + 1024*i}")
        a(f"v_max3_u32 v24, {('v24' if i else 'v' + str(x))}, v{x}, v{x+1}")
        a(f"v_max3_u32 v24, v24, v{x+2}, v{x+3}")
    a("v_cmp_eq_u32 vcc, -1, v24")
    retry(a, lp, done)
    tries(a, 0)
    if STAMP == 1:
        a("s_mov_b32 s83, s70")
    a("s_waitcnt lgkmcnt(0)")
    stamp(a, 0)
    a("s_barrier")
    for i in range(4):
        for e in range(2):
            a(f"v_smfmac_f32_16x16x64_bf16 v[{16+4*e}:{19+4*e}], v[{64+4*i}:{67+4*i}], a[{32*e+8*i}:{32*e+8*i+7}], v3")
    if VXPOS == 2:
        vx_load(a)
    else:
        a("s_nop 6")
    a("""
    v_permlane32_swap_b32 v16, v18
    v_permlane32_swap_b32 v17, v19
    v_permlane32_swap_b32 v20, v22
    v_permlane32_swap_b32 v21, v23
    v_add_f32 v16, v16, v18
    v_add_f32 v17, v17, v19
    v_add_f32 v18, v20, v22
    v_add_f32 v19, v21, v23
    ds_write_b128 v14, v[16:19]
    s_mov_b64 exec, 1
    ds_add_u32 v29, v30
    s_mov_b64 exec, -1
    s_add_u32 s58, s58, 4
    """)
    last = a.lab("v_last")
    k1 = a.lab("v_k1")
    rl = a.lab("v_rl")
    a(f"""
    s_bitcmp1_b32 s44, 0
    s_cbranch_scc1 {k1}
    s_mov_b32 s70, 0
    {rl}:
    ds_read_b32 v24, v29
    """)
    for u in range(4):
        a(f"ds_read_b64 v[{16+2*u}:{17+2*u}], v13 offset:{1024*u}")
    a("""
    s_waitcnt lgkmcnt(2)
    v_cmp_ne_u32 vcc, s58, v24
    v_add_f32 v16, v16, v18
    v_add_f32 v17, v17, v19
    s_waitcnt lgkmcnt(0)
    """)
    retry(a, rl, done)
    a("""
    v_add_f32 v20, v20, v22
    v_add_f32 v21, v21, v23
    v_add_f32 v16, v16, v20
    v_add_f32 v17, v17, v21
    """)
    pack_cols(a, 16)
    a(f"""
    buffer_store_dword v18, v4, s[12:15], s62 offen {st}
    ds_write_b32 v5, v18
    {k1}:
    s_cmp_eq_u32 s60, 63
    s_cbranch_scc1 {last}
    """)
    stamp(a, 1)
    for h in range(4):
        a(f"ds_read_b128 v[{80+4*h}:{83+4*h}], v27 offset:{L_VWX + 4096*h}")
    for i in range(16):
        a(f"v_mov_b32 v{96+i}, 0")
    if SL_V:
        sv = a.lab("v_sv")
        a(f"""
        s_bitcmp1_b32 s44, 0
        s_cbranch_scc0 {sv}
        s_sleep {E("SL_V1", 3)}
        {sv}:
        s_sleep {SL_V}
        """)
    vp = a.lab("v_vp")
    a("s_mov_b32 s70, 0")
    a(f"{vp}:")
    for s_ in range(2):
        a(f"buffer_load_dwordx4 v[{64+4*s_}:{67+4*s_}], v11, s[12:15], s62 offen offset:{1024*s_} sc1")
    a("s_waitcnt vmcnt(0)")
    check_sentinel(a, range(64, 72), 20)
    retry(a, vp, done)
    tries(a, 1)
    stamp(a, 2)
    for ct in range(4):
        for s_ in range(2):
            w = 64 + ct * 16 + 8 * s_
            a(f"v_smfmac_f32_16x16x64_bf16 v[{96+4*ct}:{99+4*ct}], v[{64+4*s_}:{67+4*s_}], a[{w}:{w+7}], v3")
    if VXPOS == 0:
        vx_load(a)
    else:
        a("s_nop 1")
    for ct in range(4):
        d = 96 + 4 * ct
        a(f"v_cvt_pk_bf16_f32 v{d}, v{d}, v{d+1}")
        a(f"v_cvt_pk_bf16_f32 v{d+1}, v{d+2}, v{d+3}")
        a(f"ds_write_b64 v12, v[{d}:{d+1}] offset:{2048*ct}")
    if VXPOS == 3:
        vx_load(a)
    a("s_waitcnt lgkmcnt(0)")
    stamp(a, 3)
    a("s_barrier")
    for h in range(4):
        a(f"ds_read_b128 v[{96+4*h}:{99+4*h}], v2 offset:{L_PX + 1024*h}")
    for m in range(2):
        a(f"ds_read_b128 v[{112+8*m}:{115+8*m}], v31 offset:{512*m}")
        a(f"ds_read_b128 v[{116+8*m}:{119+8*m}], v25 offset:{1024*m}")
    for h in range(4):
        a(f"s_waitcnt lgkmcnt({7-h})")
        cc = "0" if h == 0 else "v[16:19]"
        a(f"v_mfma_f32_16x16x32_bf16 v[16:19], v[{80+4*h}:{83+4*h}], v[{96+4*h}:{99+4*h}], {cc}")
    for m in range(2):
        a(f"s_waitcnt lgkmcnt({2-2*m})")
        a(f"v_mfma_f32_16x16x32_bf16 v[16:19], v[{116+8*m}:{119+8*m}], v[{112+8*m}:{115+8*m}], v[16:19]")
    a("""
    s_mov_b32 exec_lo, 0x00ff00ff
    s_mov_b32 exec_hi, 0x00ff00ff
    s_nop 5
    """)
    for i in range(4):
        a(f"v_min_u32 v{16+i}, -2, v{16+i}")
    a("""
    buffer_store_dwordx4 v[16:19], v6, s[12:15], s63 offen sc1
    s_mov_b64 exec, -1
    """)
    stamp(a, 4)
    def gload(b):
        for i in range(4):
            a(f"buffer_load_dwordx4 v[{b+4*i}:{b+3+4*i}], v7, s[12:15], s63 offen offset:{512*i} sc1")

    def gsum(b, younger):
        a(f"s_waitcnt vmcnt({younger+2})")
        for i in range(4):
            a(f"v_add_f32 v{16+i}, v{b+i}, v{b+4+i}")
        a(f"s_waitcnt vmcnt({younger+1})")
        for i in range(4):
            a(f"v_add_f32 v{16+i}, v{16+i}, v{b+8+i}")
        a(f"s_waitcnt vmcnt({younger})")
        for i in range(4):
            a(f"v_add_f32 v{16+i}, v{16+i}, v{b+12+i}")
        a("""
        v_add_f32_dpp v20, v16, v16 row_ror:8 row_mask:0xf bank_mask:0x3
        v_add_f32_dpp v21, v17, v17 row_ror:8 row_mask:0xf bank_mask:0x3
        v_add_f32_dpp v20, v18, v18 row_ror:8 row_mask:0xf bank_mask:0xc
        v_add_f32_dpp v21, v19, v19 row_ror:8 row_mask:0xf bank_mask:0xc
        v_cmp_u_f32 vcc, v20, v21
        v_cvt_pk_bf16_f32 v20, v20, v21
        """)
        a(f"s_cbranch_vccz {gok}")
        check_sentinel(a, range(b, b + 16), 24)
        a("v_min_u32 v20, -2, v20")
        a("s_add_u32 s70, s70, 1")
        a(f"s_cbranch_vccz {gok}")
    a("""
    s_add_u32 s61, s61, 0x4000
    s_and_b32 s61, s61, 0xffff
    s_mov_b32 s70, 1
    """)
    gp = a.lab("v_gp")
    gok = a.lab("v_gok")

    def ga_hook():
        if SL_G:
            a(f"s_sleep {SL_G}")
        gload(96)
    hooks = {GA: ga_hook}
    if GB >= 0:
        hooks[GB] = lambda: gload(112)
    if KXPOS == 5:
        kx_dma(a)
    phase_f(a, 9 if KXPOS == 5 else 1, hooks)
    stamp(a, 5)
    a(f"{gp}:")
    if GB >= 0:
        gsum(96, 4)
        gload(96)
        gsum(112, 4)
        gload(112)
    else:
        gsum(96, 0)
        gload(96)
    a(f"""
    s_cmp_lt_u32 s70, {TMO}
    s_cbranch_scc1 {gp}
    s_branch {done}
    {gok}:
    """)
    a(f"buffer_store_dword v20, v8, s[12:15], s61 offen {st}")
    tries(a, 2)
    nr = a.lab("v_nr")
    a(f"""
    s_xor_b32 s45, s61, 0x8000
    buffer_store_dword v26, v8, s[12:15], s45 offen {st}
    s_bitcmp1_b32 s44, 0
    s_cbranch_scc1 {nr}
    s_xor_b32 s45, s62, 0x4000
    buffer_store_dword v26, v4, s[12:15], s45 offen {st}
    {nr}:
    """)
    if STAMP == 1:
        a("s_lshl_b32 s79, s70, 16")
        a("s_or_b32 s79, s79, s83")
    stamp(a, 6)
    stamp_dump(a)
    a(f"""
    s_add_u32 s60, s60, 1
    s_add_u32 s62, s62, 0x2000
    s_and_b32 s62, s62, 0x7fff
    s_add_u32 s63, s63, 262144
    """)
    if SL_L1:
        a(f"s_sleep {SL_L1}")
    a(f"""
    s_branch {loop}
    {last}:
    s_waitcnt lgkmcnt(0)
    s_barrier
    s_branch {done}
    """)


def gen_chain(a):
    name = "k3_chain_kernel"
    kernel_header(a, name)
    done = a.lab("c_done")
    a(f"""
    s_cmp_ge_u32 s2, 256
    s_cbranch_scc1 {done}
    s_load_dwordx4 s[20:23], s[0:1], {KA['dbg']}
    v_and_b32 v1, 63, v0
    v_lshrrev_b32 v2, 6, v0
    s_nop 0
    v_readfirstlane_b32 s44, v2
    s_waitcnt lgkmcnt(0)
    """)
    srd(a, 12, 22, 23, WS_SIZE)
    srd(a, 16, 20, 21, 256)
    if E("CTOUCH", 0):
        here = a.lab("c_here")
        ce = a.lab("c_ct")
        a(f"""
        s_getpc_b64 s[24:25]
        {here}:
        v_lshlrev_b32 v3, 7, v0
        v_mov_b32 v5, s25
        v_add_co_u32 v4, vcc, s24, v3
        s_nop 1
        v_addc_co_u32 v5, vcc, 0, v5, vcc
        v_cmp_gt_u32 vcc, {done} - {here}, v3
        s_and_saveexec_b64 s[26:27], vcc
        s_cbranch_execz {ce}
        global_load_dword v109, v[4:5], off
        {ce}:
        s_mov_b64 exec, s[26:27]
        """)
    gstamp(a, 0)
    if STAMP == 3:
        a("s_memrealtime s[90:91]")
    wk.mod1_issue(a)
    roles(a, done)
    if STAMP == 3:
        a(f"""
        s_lshl_b32 s82, s40, 5
        s_add_u32 s82, s82, s41
        s_lshl_b32 s82, s82, 2
        s_add_u32 s82, s82, {WS_STAMP + 0x80000:#x}
        v_mov_b32 v3, s90
        v_mov_b32 v4, 0
        buffer_store_dword v3, v4, s[12:15], s82 offen
        """)
    chain = a.lab("c_chain")
    a(f"""
    s_cmp_lt_u32 s41, 16
    s_cbranch_scc1 {chain}
    """)
    wk.workers(a, done)
    a(f"{chain}:")
    for r in range(4, 16):
        a(f"v_mov_b32 v{r}, 0")
    wk.tstamp(a, 0)
    assert WS_QKRING == WS_MRING + 0x80000
    a(f"""
    v_mov_b32 v32, -1
    v_mov_b32 v33, -1
    v_mov_b32 v34, -1
    v_mov_b32 v35, -1
    v_lshlrev_b32 v2, 4, v1
    s_lshl_b32 s45, s40, 16
    s_lshl_b32 s46, s41, 12
    s_add_u32 s45, s45, s46
    s_and_b32 s46, s44, 3
    s_lshl_b32 s46, s46, 10
    s_add_u32 s45, s45, s46
    s_lshr_b32 s46, s44, 2
    s_lshl_b32 s46, s46, 19
    s_add_u32 s45, s45, s46
    s_add_u32 s45, s45, {WS_MRING:#x}
    buffer_store_dwordx4 v[32:35], v2, s[12:15], s45 offen sc1
    s_lshl_b32 s45, s40, 15
    s_lshl_b32 s46, s41, 11
    s_add_u32 s45, s45, s46
    s_lshl_b32 s46, s44, 8
    s_add_u32 s45, s45, s46
    s_add_u32 s45, s45, {WS_VRING:#x}
    s_mov_b64 exec, 0xffff
    buffer_store_dwordx4 v[32:35], v2, s[12:15], s45 offen sc1
    s_mov_b64 exec, -1
    """)
    if E("TOUCH", 2) == 2:
        a(f"""
        s_load_dwordx4 s[4:7], s[0:1], {KA['Wq']}
        s_load_dwordx2 s[8:9], s[0:1], {KA['Wv']}
        v_lshrrev_b32 v2, 3, v0
        v_lshlrev_b32 v2, 13, v2
        v_and_b32 v3, 7, v0
        v_lshl_add_u32 v2, v3, 7, v2
        s_lshl_b32 s45, s41, 19
        s_lshl_b32 s46, s40, 10
        s_add_u32 s45, s45, s46
        s_waitcnt lgkmcnt(0)
        """)
        for i, (lo, hi) in enumerate(((6, 7), (8, 9), (4, 5))):
            srd(a, 24, lo, hi, 1024 * 8192)
            a(f"buffer_load_dword v{109+i}, v2, s[24:27], s45 offen")
    if E("TOUCH", 2) == 1:
        a(f"""
        s_lshr_b32 s46, s44, 2
        s_lshl_b32 s46, s46, 3
        s_add_u32 s46, s46, {KA['Wk']}
        s_load_dwordx2 s[4:5], s[0:1], s46
        v_bfe_u32 v2, v0, 3, 5
        v_lshlrev_b32 v2, 13, v2
        v_and_b32 v3, 7, v0
        v_lshl_add_u32 v2, v3, 7, v2
        s_and_b32 s45, s41, 7
        s_lshl_b32 s45, s45, 18
        s_lshr_b32 s46, s41, 3
        s_lshl_b32 s46, s46, 22
        s_add_u32 s45, s45, s46
        s_add_u32 s45, s45, {256*8192}
        s_lshl_b32 s46, s40, 10
        s_add_u32 s45, s45, s46
        s_waitcnt lgkmcnt(0)
        """)
        srd(a, 24, 4, 5, 1024 * 8192)
        a(f"buffer_load_dword v110, v2, s[24:27], s45 offen")
    a(f"""
    v_lshlrev_b32 v2, 4, v1
    v_and_b32 v3, 8, v1
    v_cmp_eq_u32 vcc, 0, v3
    v_mov_b32 v3, 0xeeeeeeee
    v_mov_b32 v4, 0x44444444
    v_cndmask_b32 v3, v3, v4, vcc
    v_and_b32 v100, 15, v1
    v_lshrrev_b32 v101, 4, v1
    v_and_b32 v102, 1, v101
    v_lshrrev_b32 v103, 1, v101
    v_lshlrev_b32 v104, 2, v102
    v_lshl_add_u32 v104, v103, 1, v104
    v_and_b32 v105, 1, v1
    v_add_u32 v104, v104, v105
    v_and_b32 v106, 7, v1
    v_bfe_u32 v107, v1, 3, 1
    s_lshr_b32 s42, s41, 2
    s_and_b32 s43, s41, 3
    s_lshl_b32 s49, s40, 2
    s_add_u32 s49, s49, s42
    s_lshl_b32 s45, s44, 14
    """)
    a("""
    v_lshlrev_b32 v22, 3, v101
    v_bfe_u32 v23, v1, 2, 2
    v_add_u32 v22, v22, v23
    v_and_b32 v23, 3, v1
    v_lshlrev_b32 v24, 3, v23
    v_lshl_add_u32 v20, v22, 6, v24
    v_lshl_add_u32 v21, v22, 7, v24
    v_lshrrev_b32 v22, 2, v1
    v_lshlrev_b32 v23, 4, v23
    v_lshl_add_u32 v24, v22, 13, v23
    v_lshrrev_b32 v22, 3, v1
    v_lshlrev_b32 v23, 4, v106
    v_lshl_add_u32 v25, v22, 11, v23
    """)
    vinit = a.lab("v_init")
    join = a.lab("c_join")
    a(f"""
    s_cmp_ge_u32 s44, 4
    s_cbranch_scc1 {vinit}
    """)
    a(f"""
    s_lshr_b32 s50, s44, 1
    s_and_b32 s51, s44, 1
    s_load_dwordx4 s[4:7], s[0:1], {KA['Wq']}
    s_lshl_b32 s46, s49, 8
    s_lshl_b32 s48, s43, 6
    s_add_u32 s46, s46, s48
    s_lshl_b32 s48, s44, 21
    s_add_u32 s46, s46, s48
    s_lshl_b32 s52, s51, 5
    s_xor_b32 s53, s50, 1
    s_lshl_b32 s53, s53, 16
    s_add_u32 s52, s52, s53
    v_add_u32 v20, s52, v20
    s_waitcnt lgkmcnt(0)
    """)
    srd(a, 24, 6, 7, 1024 * 8192)
    srd(a, 28, 4, 5, 1024 * 8192)
    a(f"""
    s_lshl_b32 s52, s40, 16
    s_lshl_b32 s53, s42, 12
    s_add_u32 s52, s52, s53
    s_lshl_b32 s53, s43, 10
    s_add_u32 s52, s52, s53
    s_lshl_b32 s53, s51, 9
    s_add_u32 s52, s52, s53
    s_lshl_b32 s53, s50, 7
    s_add_u32 s52, s52, s53
    s_add_u32 s52, s52, {WS_QKRING:#x}
    v_lshlrev_b32 v4, 8, v107
    v_lshl_add_u32 v4, v104, 4, v4
    v_lshrrev_b32 v5, 1, v106
    v_lshl_add_u32 v4, v5, 2, v4
    v_add_u32 v4, s52, v4
    v_mov_b32 v13, -1
    """)
    a(f"""
    s_xor_b32 s52, s50, 1
    s_lshl_b32 s52, s52, 10
    s_lshl_b32 s53, s51, 8
    s_add_u32 s52, s52, s53
    s_add_u32 s52, s52, {L_KV}
    v_lshrrev_b32 v5, 1, v106
    v_lshlrev_b32 v5, 2, v5
    v_lshl_add_u32 v5, v104, 4, v5
    v_lshl_add_u32 v5, v107, 7, v5
    v_add_u32 v5, s52, v5
    s_lshl_b32 s67, s49, 12
    s_lshl_b32 s53, s43, 10
    s_add_u32 s67, s67, s53
    s_add_u32 s67, s67, {WS_MKV:#x}
    """)
    a(f"""
    v_mov_b32 v32, -1
    v_mov_b32 v33, -1
    v_mov_b32 v34, -1
    v_mov_b32 v35, -1
    s_lshl_b32 s53, s44, 17
    s_add_u32 s53, s53, s67
    """)
    for i in range(PFD // 4):
        a("buffer_store_dwordx4 v[32:35], v2, s[12:15], s53 offen sc1")
        a(f"s_add_u32 s53, s53, {4 << 17}")
    a(f"""
    s_lshl_b32 s52, s41, 14
    s_lshl_b32 s53, s44, 12
    s_add_u32 s52, s52, s53
    s_lshl_b32 s53, s40, 9
    s_add_u32 s52, s52, s53
    s_add_u32 s52, s52, {WS_G + PFD*262144:#x}
    v_and_b32 v15, 31, v1
    v_lshlrev_b32 v15, 4, v15
    v_add_u32 v15, s52, v15
    """)
    a(f"""
    s_lshl_b32 s52, s40, 11
    s_lshl_b32 s53, s44, 7
    s_add_u32 s52, s52, s53
    s_add_u32 s52, s52, {WS_FLG + FQ + 512:#x}
    v_lshlrev_b32 v14, 9, v105
    v_add_u32 v14, s52, v14
    s_mov_b32 s69, 0
    """)
    a(f"""
    s_lshl_b32 s52, s40, 2
    s_add_u32 s52, s52, s44
    s_mul_i32 s52, s52, 24576
    s_add_u32 s52, s52, {WS_QKV + 8192:#x}
    v_add_u32 v6, s52, v2
    s_lshl_b32 s52, s40, 16
    s_lshl_b32 s53, s44, 12
    s_add_u32 s52, s52, s53
    s_add_u32 s52, s52, {WS_QKRING:#x}
    v_add_u32 v7, s52, v2
    s_lshl_b32 s52, s44, 10
    s_add_u32 s52, s52, {L_PX}
    v_lshlrev_b32 v8, 8, v101
    v_lshl_add_u32 v8, v106, 4, v8
    v_lshl_add_u32 v8, v107, 3, v8
    v_add_u32 v8, s52, v8
    s_lshl_b32 s52, s44, 8
    s_add_u32 s52, s52, {L_PM}
    v_xor_b32 v9, 1, v103
    v_lshlrev_b32 v9, 7, v9
    v_lshl_add_u32 v9, v106, 4, v9
    v_lshl_add_u32 v9, v102, 3, v9
    v_lshl_add_u32 v9, v107, 2, v9
    v_add_u32 v9, s52, v9
    v_cmp_gt_u32 vcc, 32, v1
    v_mov_b32 v28, 0
    v_mov_b32 v29, 0xff800000
    v_cndmask_b32 v28, v28, v29, vcc
    v_mov_b32 v29, v28
    v_mov_b32 v30, v28
    v_mov_b32 v31, v28
    s_mov_b32 s66, 0x3e0293ee
    """)
    if E("TWAIT", 1):
        a("s_waitcnt vmcnt(0)")
    wk.tstamp(a, 4)
    for r in range(2):
        stage_issue(a, 24 + 4 * r, 24, [16 * i * 8192 for i in range(16)])
        a("s_add_u32 s45, s45, 0x10000")
    a("s_waitcnt vmcnt(0)")
    wk.tstamp(a, 5)
    a("s_barrier")
    wk.tstamp(a, 6)
    wk.zwait(a, done, 16)
    nr = a.lab("c_nr")
    a(f"""
    s_cmp_lg_u32 s44, 0
    s_cbranch_scc1 {nr}
    s_or_b32 s47, s39, 0x100
    v_mov_b32 v16, s47
    s_lshl_b32 s52, s40, 6
    s_lshl_b32 s53, s41, 2
    s_add_u32 s52, s52, s53
    s_add_u32 s52, s52, {CTL_READY:#x}
    v_mov_b32 v17, 0
    s_mov_b64 exec, 1
    buffer_store_dword v16, v17, s[12:15], s52 offen sc1
    s_mov_b64 exec, -1
    {nr}:
    """)
    stage_read(a, 20, [(4 * f, 2048 * f) for f in range(32)], 256)
    a(f"""
    s_mov_b32 s63, 0
    s_mov_b32 s68, {2 if VXPOS == 1 else 1}
    """)
    wk.tstamp(a, 1)
    a("s_barrier")
    wk.tstamp(a, 2)
    kv_wait(a, done)
    wk.tstamp(a, 3)
    if KXPOS == 5:
        a("s_lshl_b32 s52, s44, 13")
        a(f"s_add_u32 s52, s52, {L_KX}")
        a("v_add_u32 v6, s52, v2")
    else:
        kx_prefetch(a, 63)
    a(f"""
    s_barrier
    s_setprio 1
    s_branch {join}
    """)
    a(f"""
    {vinit}:
    s_sub_u32 s54, s44, 4
    s_lshr_b32 s51, s54, 1
    s_and_b32 s50, s54, 1
    s_load_dwordx4 s[4:7], s[0:1], {KA['Wv']}
    s_load_dwordx2 s[8:9], s[0:1], {KA['mem0']}
    s_waitcnt lgkmcnt(0)
    """)
    srd(a, 24, 4, 5, 1024 * 8192)
    srd(a, 28, 6, 7, 4096 * 2048)
    srd(a, 32, 8, 9, 16384)
    a(f"""
    s_lshl_b32 s45, s54, 12
    s_add_u32 s45, s45, 0x20000
    v_add_u32 v20, s45, v20
    v_add_u32 v21, s45, v21
    v_add_u32 v22, s45, v2
    s_lshl_b32 s46, s40, 2
    s_add_u32 s46, s46, s54
    s_lshl_b32 s46, s46, 18
    s_lshl_b32 s48, s41, 7
    s_add_u32 s46, s46, s48
    """)
    wo_reg = lambda i: 64 + 16 * (i & 3) + 4 * (i >> 2)
    wv_reg = lambda i: 32 * (i & 1) + 4 * (i >> 1)
    for i in range(16):
        a(f"s_add_u32 s48, s46, {8*i*2048:#x}")
        a(f"buffer_load_dwordx4 a[{wo_reg(i)}:{wo_reg(i)+3}], v25, s[28:31], s48 offen")
    a(f"""
    s_lshl_b32 s52, s40, 15
    s_lshl_b32 s53, s42, 11
    s_add_u32 s52, s52, s53
    s_lshl_b32 s53, s43, 9
    s_add_u32 s52, s52, s53
    s_lshl_b32 s53, s51, 8
    s_add_u32 s52, s52, s53
    s_add_u32 s52, s52, {WS_VRING:#x}
    v_bfe_u32 v4, v1, 1, 1
    v_lshlrev_b32 v4, 7, v4
    v_lshl_add_u32 v4, v104, 4, v4
    v_and_b32 v5, 12, v100
    v_add_u32 v4, v4, v5
    v_add_u32 v4, s52, v4
    v_mov_b32 v26, -1
    """)
    a(f"""
    s_lshl_b32 s52, s51, 5
    s_add_u32 s52, s52, {L_KV + 512}
    v_and_b32 v5, 14, v100
    v_lshlrev_b32 v5, 1, v5
    v_lshl_add_u32 v5, v104, 6, v5
    v_add_u32 v5, s52, v5
    """)
    a(f"""
    s_lshl_b32 s52, s41, 14
    s_lshl_b32 s53, s54, 12
    s_add_u32 s52, s52, s53
    s_add_u32 s52, s52, {WS_G:#x}
    v_lshlrev_b32 v6, 7, v101
    v_lshl_add_u32 v6, v106, 4, v6
    v_lshl_add_u32 v7, v107, 11, v6
    v_add_u32 v7, s52, v7
    s_lshl_b32 s53, s40, 9
    s_add_u32 s52, s52, s53
    v_add_u32 v6, s52, v6
    v_and_b32 v30, 31, v1
    v_lshlrev_b32 v30, 4, v30
    v_lshl_add_u32 v30, v103, 18, v30
    v_add_u32 v30, s52, v30
    v_mov_b32 v32, -1
    v_mov_b32 v33, -1
    v_mov_b32 v34, -1
    v_mov_b32 v35, -1
    """)
    for i in range(PFD // 2):
        a(f"s_mov_b32 s53, {i*524288}")
        a("buffer_store_dwordx4 v[32:35], v30, s[12:15], s53 offen sc1")
    a(f"""
    s_lshl_b32 s55, s40, 16
    s_add_u32 s55, s55, {WS_MRING:#x}
    s_lshl_b32 s52, s41, 10
    s_lshl_b32 s53, s54, 8
    s_add_u32 s52, s52, s53
    s_add_u32 s52, s52, s55
    v_lshlrev_b32 v8, 4, v100
    v_lshl_add_u32 v8, v101, 2, v8
    v_add_u32 v8, s52, v8
    s_lshl_b32 s53, s54, 12
    v_add_u32 v10, s53, v2
    v_add_u32 v9, s55, v10
    s_lshl_b32 s52, s40, 15
    s_lshl_b32 s53, s54, 11
    s_add_u32 s52, s52, s53
    s_add_u32 s52, s52, {WS_VRING:#x}
    v_add_u32 v11, s52, v2
    s_lshl_b32 s52, s54, 9
    s_add_u32 s52, s52, {L_VWM}
    v_lshlrev_b32 v12, 4, v100
    v_lshl_add_u32 v12, v102, 3, v12
    v_lshl_add_u32 v12, v103, 8, v12
    v_add_u32 v12, s52, v12
    s_lshl_b32 s52, s51, 3
    s_add_u32 s52, s52, {L_VRED}
    v_add_u32 v13, s52, v2
    s_lshl_b32 s52, s54, 10
    s_add_u32 s52, s52, {L_VRED}
    v_add_u32 v14, s52, v2
    s_lshl_b32 s52, s40, 2
    s_add_u32 s52, s52, s54
    s_mul_i32 s52, s52, 24576
    s_add_u32 s52, s52, {WS_QKV + 16384:#x}
    v_add_u32 v15, s52, v2
    s_lshl_b32 s52, s54, 10
    v_add_u32 v27, s52, v2
    """)
    a(f"""
    v_lshlrev_b32 v30, 11, v106
    v_lshl_add_u32 v30, v101, 5, v30
    v_lshl_add_u32 v30, v107, 2, v30
    s_lshl_b32 s52, s54, 9
    """)
    for i in range(4):
        for p in range(4):
            a(f"buffer_load_dword v{112+4*i+p}, v30, s[32:35], s52 offen offset:{128*i + 8*p}")
    a(f"""
    s_lshl_b32 s46, s49, 8
    s_lshl_b32 s48, s43, 6
    s_add_u32 s46, s46, s48
    s_lshl_b32 s48, s54, 21
    s_add_u32 s46, s46, s48
    """)
    for i in range(16):
        a(f"s_add_u32 s48, s46, {16*i*8192:#x}")
        a(f"buffer_load_dwordx4 a[{wv_reg(i)}:{wv_reg(i)+3}], v24, s[24:27], s48 offen")
    a("s_waitcnt vmcnt(16)")
    for grp in range(8):
        if grp == 4:
            a("s_barrier")
            a("s_waitcnt vmcnt(0)")
        g4 = grp & 3
        reg = wo_reg if grp < 4 else wv_reg
        for j in range(4):
            r = reg(4 * g4 + j)
            a(f"ds_write_b128 v22, a[{r}:{r+3}] offset:{1024*j}")
        a("s_waitcnt lgkmcnt(0)")
        if grp < 4:
            stage_read(a, 21, [(64 + 16 * ct + 4 * g4, 32 * ct) for ct in range(4)], 512)
        else:
            stage_read(a, 20, [(32 * e + 4 * (2 * g4 + h), 2048 * h + 32 * e) for h in range(2) for e in range(2)], 256)
    a("""
    s_mov_b32 s65, 0
    s_waitcnt vmcnt(0)
    s_barrier
    s_barrier
    """)
    a(f"""
    v_subrev_u32 v28, 8192, v15
    v_lshlrev_b32 v31, 4, v100
    v_lshl_add_u32 v31, v103, 8, v31
    v_add_u32 v31, {L_PM}, v31
    s_lshl_b32 s52, s54, 11
    s_add_u32 s52, s52, {L_VWM}
    v_add_u32 v25, s52, v2
    v_mov_b32 v29, {L_TICK + 16}
    v_mov_b32 v30, 0
    ds_write_b32 v29, v30
    v_mov_b32 v30, 1
    s_mov_b32 s58, 0
    s_mov_b32 s64, 0
    s_lshl_b32 s59, s54, 13
    s_add_u32 s59, s59, {L_KX}
    """)
    if KXPOS == 5:
        kx_dma(a)
    vx_load(a)
    phase_f(a, 0)
    a("s_mov_b32 s63, 0")
    a("s_waitcnt lgkmcnt(0)")
    for i in range(16):
        a(f"v_min_u32 v{64+i}, -2, v{112+i}")
    for i in range(8):
        a(f"v_mov_b32 v{16+i}, 0")
    a(f"{join}:")
    gstamp(a, 1)
    nh = a.lab("c_nh")
    rp = a.lab("c_rp")
    a(f"""
    s_mov_b32 s60, 0
    s_mov_b32 s61, 0
    s_mov_b32 s62, 0
    s_cmp_lg_u32 s44, 0
    s_cbranch_scc1 {nh}
    v_lshlrev_b32 v17, 3, v1
    s_lshl_b32 s46, s40, 3
    v_mov_b32 v21, s46
    s_mov_b32 s45, {CTL_READY:#x}
    s_mov_b32 s70, 0
    {rp}:
    buffer_load_dwordx2 v[18:19], v17, s[12:15], s45 offen sc1
    buffer_load_dwordx2 v[22:23], v21, s[12:15], s45 offen offset:512 sc1
    s_waitcnt vmcnt(0)
    v_min3_u32 v20, v18, v19, v22
    v_min_u32 v20, v20, v23
    v_cmp_eq_u32 vcc, 0, v20
    """)
    retry(a, rp, done)
    a(f"""
    v_cmp_eq_u32 s[52:53], v18, v16
    v_cmp_eq_u32 vcc, v19, v16
    v_cmp_eq_u32 s[54:55], v22, v16
    v_cmp_eq_u32 s[56:57], v23, v16
    s_lshl_b32 s46, s40, 3
    s_nop 3
    s_and_b64 s[52:53], s[52:53], vcc
    s_and_b64 s[52:53], s[52:53], s[54:55]
    s_and_b64 s[52:53], s[52:53], s[56:57]
    s_lshr_b64 s[52:53], s[52:53], s46
    s_and_b32 s52, s52, 0xff
    s_cmp_eq_u32 s52, 0xff
    s_cselect_b32 s52, {0 if FORCE_SLOW else 1}, 0
    v_mov_b32 v16, s52
    v_mov_b32 v17, {L_TICK}
    ds_write_b32 v17, v16
    {nh}:
    s_waitcnt lgkmcnt(0)
    s_barrier
    v_mov_b32 v17, {L_TICK}
    ds_read_b32 v16, v17
    s_waitcnt lgkmcnt(0)
    v_readfirstlane_b32 s52, v16
    """)
    gstamp(a, 2)
    lsf, lss, lvf, lvs = (a.lab(x) for x in ("sf", "ss", "vf", "vs"))
    a(f"""
    s_nop 3
    s_cmp_ge_u32 s44, 4
    s_cbranch_scc1 {lvf}
    s_cmp_eq_u32 s52, 0
    s_cbranch_scc1 {lss}
    """)
    s_loop(a, done, True)
    a(f"{lss}:")
    s_loop(a, done, False)
    a(f"""
    {lvf}:
    s_cmp_eq_u32 s52, 0
    s_cbranch_scc1 {lvs}
    """)
    v_loop(a, done, True)
    a(f"{lvs}:")
    v_loop(a, done, False)
    a(f"""
    {done}:
    s_endpgm
    """)
    return name, kd(name, 256, accum=128), f"grid=(256,1,1) block=(512,1,1) lds={LDS_BYTES}"
```

```python
import sys, os

NAME = "adaLN_cond__memory_aug_recurrent_mem_tr__dense_activation_gelu__prompt"

WS_MOD = 0x0000000
WS_MODP = 0x0010000
WS_CTL = 0x0100000
WS_FLG = 0x0102000
FA, FC, FF1, FW, FF2, FL, FQ, FMD = 0, 52224, 17408, 21504, 25600, 29696, 33792, 50176
WS_P1 = 0x9000000
WS_P2 = 0xB000000
WS_STAMP = 0xF000000
WS_MRING = 0x7000000
WS_QKRING = 0x7080000
WS_VRING = 0x7100000
WS_G = 0x7800000
WS_H1 = 0x0400000
WS_X1 = 0x0800000
WS_H2 = 0x0C00000
WS_MKV = 0x1000000
WS_QKV = 0x2000000
WS_OX = 0x5000000
WS_F = 0x6000000
WS_SIZE = 268435456

KA = dict(x=0, mem0=8, Wq=16, Wk=24, Wv=32, Wo=40, seg=48, Bx=56, w1=64, b1=72, w2=80, b2=88,
          c=96, wmod=104, out=112, dbg=120, ws=128)


class Asm:
    def __init__(self):
        self.l = []
        self.uid = 0

    def __call__(self, s):
        for line in s.strip().split("\n"):
            line = line.strip()
            if not line:
                continue
            if line.endswith(":"):
                self.l.append(line)
            else:
                self.l.append("    " + line)

    def lab(self, base):
        self.uid += 1
        return f"L_{base}_{self.uid}"

    def text(self):
        return "\n".join(self.l) + "\n"


def srd(a, d, base_lo, base_hi, size, off=0):
    if off:
        a(f"s_add_u32 s{d}, s{base_lo}, {off:#x}")
        a(f"s_addc_u32 s{d+1}, s{base_hi}, 0")
        a(f"s_and_b32 s{d+1}, s{d+1}, 0xffff")
    else:
        a(f"s_mov_b32 s{d}, s{base_lo}")
        a(f"s_and_b32 s{d+1}, s{base_hi}, 0xffff")
    a(f"s_mov_b32 s{d+2}, {size:#x}")
    a(f"s_mov_b32 s{d+3}, 0x00020000")


def kernel_header(a, name):
    a.l.append(f".globl {name}")
    a.l.append(".p2align 8")
    a.l.append(f".type {name},@function")
    a.l.append(f"{name}:")


def kd(name, vgpr, sgpr=102, accum=None):
    if accum is None:
        accum = (vgpr + 3) // 4 * 4
    return f""".p2align 6
.amdhsa_kernel {name}
  .amdhsa_next_free_vgpr {vgpr}
  .amdhsa_next_free_sgpr {sgpr}
  .amdhsa_accum_offset {accum}
  .amdhsa_group_segment_fixed_size 0
  .amdhsa_kernarg_size 136
  .amdhsa_user_sgpr_count 2
  .amdhsa_user_sgpr_kernarg_segment_ptr 1
  .amdhsa_system_sgpr_workgroup_id_x 1
.end_amdhsa_kernel
"""


def rnd_bf16(a, v, tmp=None):
    a(f"v_cvt_pk_bf16_f32 v{v}, 0, v{v}")


def wave_sum_to_sgpr(a, v, s):
    a("s_nop 1")
    for sh in (1, 2, 4, 8):
        a(f"v_add_f32_dpp v{v}, v{v}, v{v} row_shr:{sh} row_mask:0xf bank_mask:0xf bound_ctrl:0")
        a("s_nop 1")
    a(f"v_add_f32_dpp v{v}, v{v}, v{v} row_bcast:15 row_mask:0xa bank_mask:0xf")
    a("s_nop 1")
    a(f"v_add_f32_dpp v{v}, v{v}, v{v} row_bcast:31 row_mask:0xc bank_mask:0xf")
    a("s_nop 1")
    a(f"v_readlane_b32 s{s}, v{v}, 63")


def gen_mod(a):
    name = "k0_mod_kernel"
    kernel_header(a, name)
    done = a.lab("mod_done")
    a(f"""
    s_cmp_ge_u32 s2, 192
    s_cbranch_scc1 {done}
    s_load_dwordx2 s[4:5], s[0:1], {KA['c']}
    s_load_dwordx2 s[6:7], s[0:1], {KA['wmod']}
    s_load_dwordx2 s[20:21], s[0:1], {KA['ws']}
    s_load_dwordx2 s[22:23], s[0:1], {KA['mem0']}
    v_and_b32 v1, 3, v0
    v_lshrrev_b32 v2, 2, v0
    s_waitcnt lgkmcnt(0)
    """)
    srd(a, 8, 4, 5, 2048)
    srd(a, 12, 6, 7, 1024 * 6144 * 2)
    srd(a, 16, 20, 21, WS_SIZE)
    srd(a, 32, 22, 23, 16384)
    a("""
    v_lshlrev_b32 v3, 5, v2
    buffer_load_dwordx4 v[8:11], v3, s[8:11], 0 offen
    buffer_load_dwordx4 v[12:15], v3, s[8:11], 0 offen offset:16
    """)
    a("""
    s_mov_b32 s36, 196608
    v_mul_lo_u32 v4, v2, s36
    v_lshlrev_b32 v5, 4, v1
    v_add_u32 v4, v4, v5
    s_lshl_b32 s37, s2, 6
    """)
    for i in range(16):
        a(f"buffer_load_dwordx4 v[{32+4*i}:{35+4*i}], v4, s[12:15], s37 offen")
        if i < 15:
            a("v_add_u32 v4, 12288, v4")
    PF0 = int(os.environ.get("PF0", "2"))
    if PF0:
        a(f"""
        s_load_dwordx4 s[40:43], s[0:1], {KA['Wq']}
        s_load_dwordx2 s[44:45], s[0:1], {KA['Wv']}
        s_lshl_b32 s38, s2, 12
        v_lshlrev_b32 v7, 4, v0
        v_add_u32 v7, s38, v7
        s_waitcnt lgkmcnt(0)
        """)
        for m, (lo, hi) in enumerate(((40, 41), (42, 43), (44, 45))[:PF0]):
            srd(a, 48, lo, hi, 1024 * 8192)
            for i in range(11):
                a(f"s_mov_b32 s38, {i*786432}")
                a(f"buffer_load_dwordx4 v[{120+4*(i%2)}:{123+4*(i%2)}], v7, s[48:51], s38 offen")
    skipm = a.lab("mod_skipm")
    a(f"""
    s_cmp_ge_u32 s2, 16
    s_cbranch_scc1 {skipm}
    s_lshl_b32 s38, s2, 12
    v_lshlrev_b32 v7, 4, v0
    v_add_u32 v7, s38, v7
    v_mov_b32 v104, 0
    v_mov_b32 v105, 0
    v_mov_b32 v106, 0
    v_mov_b32 v107, 0
    s_mov_b32 s39, {WS_CTL:#x}
    buffer_store_dwordx4 v[104:107], v7, s[16:19], s39 offen
    {skipm}:
    s_waitcnt vmcnt(0)
    """)
    for i in range(8):
        a(f"v_lshlrev_b32 v{16+2*i}, 16, v{8+i}")
        a(f"v_and_b32 v{17+2*i}, 0xffff0000, v{8+i}")
    for i in range(16):
        r = 16 + i
        a(f"v_mul_f32 v110, 0xbfb8aa3b, v{r}")
        a("v_exp_f32 v110, v110")
        a("s_nop 0")
        a("v_add_f32 v110, 1.0, v110")
        a("v_rcp_f32 v110, v110")
        a("s_nop 0")
        a(f"v_mul_f32 v{r}, v{r}, v110")
        rnd_bf16(a, r)
    for e in range(8):
        a(f"v_mov_b32 v{112+e}, 0")
    for i in range(16):
        for p in range(4):
            w = 32 + 4 * i + p
            a(f"v_lshlrev_b32 v110, 16, v{w}")
            a(f"v_and_b32 v111, 0xffff0000, v{w}")
            a(f"v_fmac_f32 v{112+2*p}, v110, v{16+i}")
            a(f"v_fmac_f32 v{113+2*p}, v111, v{16+i}")
    a("""
    v_lshlrev_b32 v3, 5, v0
    ds_write_b128 v3, v[112:115]
    ds_write_b128 v3, v[116:119] offset:16
    s_waitcnt lgkmcnt(0)
    s_barrier
    v_cmp_gt_u32 vcc, 32, v0
    s_and_saveexec_b64 s[40:41], vcc
    """)
    fin = a.lab("mod_fin")
    a(f"s_cbranch_execz {fin}")
    a("v_lshlrev_b32 v3, 2, v0")
    a("v_mov_b32 v5, 0")
    for blk in range(4):
        for i in range(16):
            a(f"ds_read_b32 v{32+i}, v3 offset:{(blk*16+i)*128}")
        a("s_waitcnt lgkmcnt(0)")
        for i in range(16):
            a(f"v_add_f32 v5, v5, v{32+i}")
    rnd_bf16(a, 5)
    a(f"""
    s_lshl_b32 s38, s2, 7
    buffer_store_dword v5, v3, s[16:19], s38 offen
    {fin}:
    s_mov_b64 exec, s[40:41]
    {done}:
    s_endpgm
    """)
    return name, kd(name, 128), "grid=(192,1,1) block=(256,1,1) lds=8192"


def gen_ln(a, idx):
    name = f"k{1 if idx == 0 else 6}_ln_kernel"
    kernel_header(a, name)
    done = a.lab("ln_done")
    a(f"""
    s_cmp_ge_u32 s2, 512
    s_cbranch_scc1 {done}
    s_load_dwordx2 s[4:5], s[0:1], {KA['x']}
    s_load_dwordx2 s[20:21], s[0:1], {KA['ws']}
    v_lshrrev_b32 v1, 6, v0
    v_and_b32 v2, 63, v0
    s_waitcnt lgkmcnt(0)
    """)
    if idx == 0:
        srd(a, 8, 4, 5, 2048 * 2048)
    else:
        srd(a, 8, 20, 21, 2048 * 2048, WS_X1)
    srd(a, 12, 20, 21, 2048 * 2048, WS_H1 if idx == 0 else WS_H2)
    srd(a, 16, 20, 21, 6144 * 4, WS_MOD)
    if idx == 0:
        a("""
        s_lshl_b32 s25, s2, 12
        v_lshlrev_b32 v68, 4, v0
        v_add_u32 v68, s25, v68
        """)
    if idx == 0 and not os.environ.get("NOPF"):
        a(f"""
        s_load_dwordx4 s[40:43], s[0:1], {KA['Wq']}
        s_load_dwordx2 s[44:45], s[0:1], {KA['Wv']}
        s_waitcnt lgkmcnt(0)
        """)
        for m, (lo, hi) in enumerate(((40, 41), (42, 43), (44, 45))[int(os.environ.get("PF0", "2")):]):
            srd(a, 48, lo, hi, 1024 * 8192)
            for i in range(4):
                a(f"s_mov_b32 s25, {i*2097152}")
                a(f"buffer_load_dwordx4 v[{72+4*((m*4+i)%4)}:{75+4*((m*4+i)%4)}], v68, s[48:51], s25 offen")
    sh_off = (0 if idx == 0 else 3) * 4096
    sc_off = sh_off + 4096
    a(f"""
    s_lshl_b32 s22, s2, 13
    v_lshlrev_b32 v3, 11, v1
    v_lshlrev_b32 v4, 4, v2
    v_add_u32 v3, v3, v4
    buffer_load_dwordx4 v[8:11], v3, s[8:11], s22 offen
    buffer_load_dwordx4 v[12:15], v3, s[8:11], s22 offen offset:1024
    v_lshlrev_b32 v5, 5, v2
    """)
    a(f"s_mov_b32 s23, {sh_off}")
    a(f"s_mov_b32 s24, {sc_off}")
    for half in range(2):
        for q in range(2):
            o = half * 2048 + q * 16
            a(f"buffer_load_dwordx4 v[{32+half*8+q*4}:{35+half*8+q*4}], v5, s[16:19], s23 offen offset:{o}")
            a(f"buffer_load_dwordx4 v[{48+half*8+q*4}:{51+half*8+q*4}], v5, s[16:19], s24 offen offset:{o}")
    a("s_waitcnt vmcnt(8)")
    for i in range(8):
        a(f"v_lshlrev_b32 v{16+2*i}, 16, v{8+i}")
        a(f"v_and_b32 v{17+2*i}, 0xffff0000, v{8+i}")
    a("v_add_f32 v6, v16, v17")
    for i in range(2, 16):
        a(f"v_add_f32 v6, v6, v{16+i}")
    wave_sum_to_sgpr(a, 6, 26)
    a("""
    v_mov_b32 v7, s26
    v_mul_f32 v7, 0x3a800000, v7
    """)
    a("v_mov_b32 v6, 0")
    for i in range(16):
        a(f"v_sub_f32 v64, v{16+i}, v7")
        a("v_fmac_f32 v6, v64, v64")
    wave_sum_to_sgpr(a, 6, 27)
    a("""
    v_mov_b32 v6, s27
    v_mul_f32 v6, 0x3a800000, v6
    """)
    rnd_bf16(a, 6)
    rnd_bf16(a, 7)
    a("v_add_f32 v6, 0x3727c5ac, v6")
    rnd_bf16(a, 6)
    a("v_sqrt_f32 v6, v6")
    a("s_nop 0")
    rnd_bf16(a, 6)
    a("v_rcp_f32 v6, v6")
    a("s_waitcnt vmcnt(0)")
    for i in range(16):
        r = 16 + i
        a(f"v_sub_f32 v{r}, v{r}, v7")
        rnd_bf16(a, r)
        a(f"v_mul_f32 v{r}, v{r}, v6")
        rnd_bf16(a, r)
        a(f"v_add_f32 v64, 1.0, v{48+i}")
        rnd_bf16(a, 64)
        a(f"v_mul_f32 v{r}, v{r}, v64")
        rnd_bf16(a, r)
        a(f"v_add_f32 v{r}, v{r}, v{32+i}")
    for i in range(8):
        a(f"v_cvt_pk_bf16_f32 v{8+i}, v{16+2*i}, v{17+2*i}")
    a(f"""
    buffer_store_dwordx4 v[8:11], v3, s[12:15], s22 offen
    buffer_store_dwordx4 v[12:15], v3, s[12:15], s22 offen offset:1024
    {done}:
    s_endpgm
    """)
    return name, kd(name, 88), "grid=(512,1,1) block=(256,1,1) lds=0"


def gen_gemm(a, kind):
    cfg = {
        'qkv': dict(K=1024, N=12288, BN=128, lda=2048, ldb=8192, ldc=24576, idx=2),
        'wo': dict(K=4096, N=1024, BN=64, lda=8192, ldb=2048, ldc=2048, idx=5),
        'ffn1': dict(K=1024, N=3584, BN=128, lda=2048, ldb=7168, ldc=7168, idx=7),
        'ffn2': dict(K=3584, N=1024, BN=64, lda=7168, ldb=2048, ldc=2048, idx=8),
    }[kind]
    K, N, BN, lda, ldb, ldc = (cfg[k] for k in ('K', 'N', 'BN', 'lda', 'ldb', 'ldc'))
    name = f"k{cfg['idx']}_{kind}_kernel"
    NS = 4
    BK = 32
    NT = N // BN
    nwg = 16 * NT
    KT = K // BK
    TN = BN // 64
    BROW = BN * 2
    AST = 128 * BK * 2
    BST = BK * BROW
    STAGE = AST + BST
    nA = 2
    nB = BST // 4096
    NL = nA + nB
    rows_per_instr = 1024 // BROW
    kernel_header(a, name)
    done = a.lab("g_done")
    a(f"""
    s_cmp_ge_u32 s2, {nwg}
    s_cbranch_scc1 {done}
    s_load_dwordx2 s[20:21], s[0:1], {KA['ws']}
    s_and_b32 s42, s2, 7
    s_lshr_b32 s43, s2, 3
    """)
    if kind == 'qkv':
        a("""
        s_and_b32 s40, s43, 15
        s_lshr_b32 s41, s43, 4
        s_lshl_b32 s41, s41, 3
        s_add_u32 s41, s41, s42
        """)
    else:
        a("""
        s_and_b32 s40, s43, 1
        s_lshl_b32 s42, s42, 1
        s_add_u32 s40, s40, s42
        s_lshr_b32 s41, s43, 1
        """)
    if kind == 'qkv':
        a(f"""
        s_lshr_b32 s42, s41, 5
        s_lshl_b32 s42, s42, 3
        s_add_u32 s42, s42, {KA['Wq']}
        s_load_dwordx2 s[6:7], s[0:1], s42
        s_and_b32 s43, s41, 31
        """)
    else:
        bw = {'wo': 'Wo', 'ffn1': 'w1', 'ffn2': 'w2'}[kind]
        a(f"s_load_dwordx2 s[6:7], s[0:1], {KA[bw]}")
        a("s_mov_b32 s43, s41")
    if kind == 'wo':
        a(f"s_load_dwordx2 s[4:5], s[0:1], {KA['x']}")
    if kind == 'ffn1':
        a(f"s_load_dwordx2 s[4:5], s[0:1], {KA['b1']}")
    if kind == 'ffn2':
        a(f"s_load_dwordx2 s[4:5], s[0:1], {KA['b2']}")
        a(f"s_load_dwordx2 s[22:23], s[0:1], {KA['out']}")
    a("""
    v_and_b32 v1, 63, v0
    v_lshrrev_b32 v2, 6, v0
    s_nop 0
    v_readfirstlane_b32 s44, v2
    s_waitcnt lgkmcnt(0)
    """)
    a_off = {'qkv': WS_H1, 'wo': WS_OX, 'ffn1': WS_H2, 'ffn2': WS_F}[kind]
    srd(a, 8, 20, 21, 2048 * lda, a_off)
    bsize = {'qkv': 1024 * 8192, 'wo': 4096 * 2048, 'ffn1': 1024 * 7168, 'ffn2': 3584 * 2048}[kind]
    srd(a, 12, 6, 7, bsize)
    if kind == 'qkv':
        srd(a, 16, 20, 21, 2048 * ldc, WS_QKV)
    elif kind == 'wo':
        srd(a, 16, 20, 21, 2048 * ldc, WS_X1)
    elif kind == 'ffn1':
        srd(a, 16, 20, 21, 2048 * ldc, WS_F)
    else:
        srd(a, 16, 22, 23, 2048 * ldc)
    a(f"""
    v_lshrrev_b32 v3, 2, v1
    s_lshl_b32 s45, s44, 5
    v_add_u32 v3, s45, v3
    v_and_b32 v4, 3, v1
    s_lshl_b32 s46, s40, 7
    s_mov_b32 s47, {lda}
    """)
    for i in range(nA):
        a(f"""
        v_add_u32 v5, {16*i}, v3
        v_lshrrev_b32 v6, 2, v5
        v_and_b32 v6, 3, v6
        v_xor_b32 v6, v6, v4
        v_lshlrev_b32 v6, 4, v6
        v_add_u32 v5, s46, v5
        v_mul_lo_u32 v5, v5, s47
        v_add_u32 v{10+i}, v5, v6
        """)
    lpr = BROW // 16
    sh = {16: 4, 8: 3}[lpr]
    a(f"""
    v_lshrrev_b32 v3, {sh}, v1
    s_mul_i32 s45, s44, {rows_per_instr*nB}
    v_add_u32 v3, s45, v3
    v_and_b32 v4, {lpr-1}, v1
    s_lshl_b32 s46, s43, {BROW.bit_length()-1}
    s_mov_b32 s47, {ldb}
    """)
    for i in range(nB):
        a(f"v_add_u32 v5, {rows_per_instr*i}, v3")
        if BN == 128:
            a("v_and_b32 v6, 3, v5")
            a("v_lshlrev_b32 v6, 2, v6")
        else:
            a("v_and_b32 v6, 2, v5")
            a("v_lshlrev_b32 v6, 1, v6")
        a(f"""
        v_xor_b32 v6, v6, v4
        v_lshlrev_b32 v6, 4, v6
        v_mul_lo_u32 v5, v5, s47
        v_add_u32 v5, s46, v5
        v_add_u32 v{14+i}, v5, v6
        """)
    a("""
    s_lshr_b32 s48, s44, 1
    s_and_b32 s49, s44, 1
    v_and_b32 v3, 31, v1
    s_lshl_b32 s45, s48, 6
    v_add_u32 v3, s45, v3
    v_lshrrev_b32 v4, 2, v3
    v_and_b32 v4, 3, v4
    v_lshrrev_b32 v5, 5, v1
    v_lshlrev_b32 v3, 6, v3
    """)
    for ks in range(2):
        a(f"""
        v_add_u32 v6, {2*ks}, v5
        v_xor_b32 v6, v6, v4
        v_lshlrev_b32 v6, 4, v6
        v_add_u32 v{18+ks}, v3, v6
        """)
    a(f"""
    v_lshrrev_b32 v3, 5, v1
    v_lshlrev_b32 v3, 3, v3
    v_bfe_u32 v4, v1, 2, 2
    v_add_u32 v3, v3, v4
    v_bfe_u32 v5, v1, 4, 1
    v_lshlrev_b32 v5, 4, v5
    v_and_b32 v6, 3, v1
    v_lshlrev_b32 v6, 2, v6
    v_add_u32 v5, v5, v6
    s_mul_i32 s45, s49, {BN//2}
    v_add_u32 v5, s45, v5
    """)
    if BN == 128:
        a("v_lshlrev_b32 v7, 2, v4")
    else:
        a("v_and_b32 v7, 2, v4")
        a("v_lshlrev_b32 v7, 1, v7")
    a(f"v_mul_u32_u24 v3, {BROW}, v3")
    for tn in range(TN):
        a(f"""
        v_add_u32 v6, {32*tn}, v5
        v_lshrrev_b32 v8, 3, v6
        v_xor_b32 v8, v8, v7
        v_lshlrev_b32 v8, 4, v8
        v_and_b32 v6, 4, v6
        v_lshlrev_b32 v6, 1, v6
        v_add_u32 v8, v8, v6
        v_add_u32 v{22+tn}, v3, v8
        """)
    ACC = 64
    nacc = 2 * TN * 16
    for r in range(nacc):
        a(f"v_mov_b32 v{ACC+r}, 0")
    FR = 26
    fsz = 8 + 4 * TN

    def fa(s, tm):
        return FR + s * fsz + tm * 4

    def fb(s, tn):
        return FR + s * fsz + 8 + tn * 4

    a(f"""
    s_mov_b32 s50, 0
    s_mov_b32 s51, 0
    s_lshl_b32 s52, s44, 11
    s_mul_i32 s53, s44, {nB*1024}
    s_add_u32 s53, s53, {AST}
    """)

    def dma(stage):
        for i in range(nA):
            a(f"s_add_u32 m0, s52, {stage*STAGE + 1024*i}")
            a("s_nop 0")
            a(f"buffer_load_dwordx4 v{10+i}, s[8:11], s50 offen lds")
        for i in range(nB):
            a(f"s_add_u32 m0, s53, {stage*STAGE + 1024*i}")
            a("s_nop 0")
            a(f"buffer_load_dwordx4 v{14+i}, s[12:15], s51 offen lds")
        a(f"s_add_u32 s50, s50, {BK*2}")
        a(f"s_add_u32 s51, s51, {BK*ldb}")

    def reads(stage, ks, s):
        for tm in range(2):
            a(f"ds_read_b128 v[{fa(s,tm)}:{fa(s,tm)+3}], v{18+ks} offset:{stage*STAGE + tm*2048}")
        for tn in range(TN):
            o = stage * STAGE + AST + ks * 16 * BROW
            a(f"ds_read_b64_tr_b16 v[{fb(s,tn)}:{fb(s,tn)+1}], v{22+tn} offset:{o}")
            a(f"ds_read_b64_tr_b16 v[{fb(s,tn)+2}:{fb(s,tn)+3}], v{22+tn} offset:{o + 4*BROW}")

    def mfmas(s):
        for tm in range(2):
            for tn in range(TN):
                c = ACC + (tm * TN + tn) * 16
                a(f"v_mfma_f32_32x32x16_bf16 v[{c}:{c+15}], v[{fb(s,tn)}:{fb(s,tn)+3}], v[{fa(s,tm)}:{fa(s,tm)+3}], v[{c}:{c+15}]")

    nrd = 2 + 2 * TN
    for st in range(NS - 1):
        dma(st)
    loop = a.lab("g_loop")
    a("s_mov_b32 s54, 0")
    a(f"{loop}:")
    for st in range(NS):
        a(f"s_waitcnt vmcnt({(NS-2)*NL})")
        a("s_barrier")
        if not (os.environ.get("GX") == "nord" and kind == 'qkv'):
            reads(st, 0, 0)
            reads(st, 1, 1)
        if not (os.environ.get("GX") == "nodma" and kind == 'qkv'):
            dma((st + NS - 1) % NS)
        a(f"s_waitcnt lgkmcnt({nrd})")
        mfmas(0)
        a("s_waitcnt lgkmcnt(0)")
        mfmas(1)
    a(f"""
    s_add_u32 s54, s54, {NS}
    s_cmp_lt_u32 s54, {KT}
    s_cbranch_scc1 {loop}
    s_nop 15
    s_waitcnt vmcnt(0)
    """)
    a(f"""
    v_and_b32 v3, 31, v1
    s_lshl_b32 s45, s40, 7
    s_lshl_b32 s46, s48, 6
    s_add_u32 s45, s45, s46
    v_add_u32 v3, s45, v3
    v_lshrrev_b32 v4, 5, v1
    v_lshlrev_b32 v4, 2, v4
    s_mul_i32 s45, s41, {BN}
    s_mul_i32 s46, s49, {BN//2}
    s_add_u32 s45, s45, s46
    v_add_u32 v4, s45, v4
    s_mov_b32 s47, {ldc}
    v_mul_lo_u32 v5, v3, s47
    v_lshlrev_b32 v6, 1, v4
    v_add_u32 v5, v5, v6
    v_lshrrev_b32 v61, 5, v1
    v_lshlrev_b32 v61, 3, v61
    v_add_u32 v61, v61, v5
    """)
    if kind == 'qkv':
        a(f"""
        s_lshl_b32 s45, s40, 2
        s_lshl_b32 s46, s48, 1
        s_add_u32 s45, s45, s46
        s_mul_i32 s45, s45, 786432
        s_mul_i32 s46, s43, 24576
        s_add_u32 s45, s45, s46
        s_lshr_b32 s46, s41, 5
        s_lshl_b32 s46, s46, 13
        s_add_u32 s45, s45, s46
        s_lshl_b32 s46, s49, 11
        s_add_u32 s45, s45, s46
        v_and_b32 v62, 15, v1
        v_lshlrev_b32 v62, 4, v62
        v_bfe_u32 v63, v1, 4, 1
        v_lshl_add_u32 v62, v63, 12, v62
        v_lshrrev_b32 v63, 5, v1
        v_lshl_add_u32 v62, v63, 8, v62
        v_add_u32 v62, s45, v62
        """)
    if kind in ('wo', 'ffn2'):
        srd(a, 24, 20, 21, 6144 * 4, WS_MOD)
        gate_off = (2 if kind == 'wo' else 5) * 4096
        a(f"s_mov_b32 s55, {gate_off}")
        a("v_lshlrev_b32 v7, 2, v4")
        if kind == 'wo':
            srd(a, 28, 4, 5, 2048 * 2048)
        else:
            srd(a, 28, 20, 21, 2048 * 2048, WS_X1)
            srd(a, 32, 4, 5, 2048)
    if kind == 'ffn1':
        srd(a, 32, 4, 5, 7168)
    T = 26
    for tn in range(TN):
        if kind in ('wo', 'ffn2'):
            for rr in range(4):
                a(f"buffer_load_dwordx4 v[{T+4*rr}:{T+4*rr+3}], v7, s[24:27], s55 offen offset:{(tn*32+8*rr)*4}")
        if kind in ('ffn1', 'ffn2'):
            a("v_lshlrev_b32 v8, 1, v4")
            for rr in range(4):
                a(f"buffer_load_dwordx2 v[{T+16+2*rr}:{T+17+2*rr}], v8, s[32:35], 0 offen offset:{(tn*32+8*rr)*2}")
        for tm in range(2):
            c = ACC + (tm * TN + tn) * 16
            if kind in ('wo', 'ffn2'):
                a(f"v_add_u32 v9, {tm*32*ldc}, v5")
                for rr in range(4):
                    a(f"buffer_load_dwordx2 v[{T+24+2*rr}:{T+25+2*rr}], v9, s[28:31], 0 offen offset:{(tn*32+8*rr)*2}")
            a("s_waitcnt vmcnt(0)")
            for rr in range(4):
                for j in range(4):
                    r = c + 4 * rr + j
                    if kind == 'qkv':
                        continue
                    rnd_bf16(a, r)
                    if kind in ('ffn1', 'ffn2'):
                        b = T + 16 + 2 * rr + (j >> 1)
                        if j & 1:
                            a(f"v_and_b32 v60, 0xffff0000, v{b}")
                        else:
                            a(f"v_lshlrev_b32 v60, 16, v{b}")
                        a(f"v_add_f32 v{r}, v{r}, v60")
                        rnd_bf16(a, r)
                    if kind == 'ffn1':
                        a(f"v_mul_f32 v60, v{r}, v{r}")
                        a(f"v_mul_f32 v60, 0x3d372713, v60")
                        a("v_add_f32 v60, 1.0, v60")
                        a(f"v_mul_f32 v60, v60, v{r}")
                        a("v_mul_f32 v60, 0xc0135761, v60")
                        a("v_exp_f32 v60, v60")
                        a("s_nop 0")
                        a("v_add_f32 v60, 1.0, v60")
                        a("v_rcp_f32 v60, v60")
                        a("s_nop 0")
                        a(f"v_mul_f32 v{r}, v{r}, v60")
                    if kind in ('wo', 'ffn2'):
                        a(f"v_mul_f32 v{r}, v{r}, v{T+4*rr+j}")
                        rnd_bf16(a, r)
                        xr = T + 24 + 2 * rr + (j >> 1)
                        if j & 1:
                            a(f"v_and_b32 v60, 0xffff0000, v{xr}")
                        else:
                            a(f"v_lshlrev_b32 v60, 16, v{xr}")
                        a(f"v_add_f32 v{r}, v{r}, v60")
                dst = c + 4 * (rr & ~1) + 2 * (rr & 1)
                a(f"v_cvt_pk_bf16_f32 v{dst}, v{c+4*rr}, v{c+4*rr+1}")
                a(f"v_cvt_pk_bf16_f32 v{dst+1}, v{c+4*rr+2}, v{c+4*rr+3}")
            if kind == 'qkv':
                a(f"v_add_u32 v9, {tm*786432}, v62")
            elif tm == 1:
                a(f"v_add_u32 v9, {32*ldc}, v61")
            else:
                a("v_mov_b32 v9, v61")
            a("s_nop 0")
            for pr in range(2):
                b = c + 8 * pr
                a(f"v_permlane32_swap_b32 v{b}, v{b+2}")
                a(f"v_permlane32_swap_b32 v{b+1}, v{b+3}")
            for pr in range(2):
                b = c + 8 * pr
                off = tn * 1024 + pr * 512 if kind == 'qkv' else (tn * 32 + 16 * pr) * 2
                a(f"buffer_store_dwordx4 v[{b}:{b+3}], v9, s[16:19], 0 offen offset:{off}")
    a(f"""
    {done}:
    s_endpgm
    """)
    nv = ACC + nacc
    return name, kd(name, nv), f"grid=({nwg},1,1) block=(256,1,1) lds={NS*STAGE}"


def gen_xattn(a):
    name = "k4_xattn_kernel"
    kernel_header(a, name)
    done = a.lab("x_done")
    LROW = 272
    WLDS = 48 * LROW
    a(f"""
    s_cmp_ge_u32 s2, 512
    s_cbranch_scc1 {done}
    s_load_dwordx2 s[20:21], s[0:1], {KA['ws']}
    v_and_b32 v1, 63, v0
    v_lshrrev_b32 v2, 6, v0
    s_nop 0
    v_readfirstlane_b32 s44, v2
    s_lshl_b32 s40, s2, 2
    s_add_u32 s40, s40, s44
    s_lshr_b32 s41, s40, 5
    s_and_b32 s42, s40, 31
    s_waitcnt lgkmcnt(0)
    """)
    srd(a, 8, 20, 21, 2048 * 24576, WS_QKV)
    srd(a, 12, 20, 21, 64 * 196608, WS_MKV)
    srd(a, 16, 20, 21, 2048 * 8192, WS_OX)
    a(f"""
    s_mul_i32 s45, s41, 786432
    s_mul_i32 s46, s42, 24576
    s_add_u32 s45, s45, s46
    s_mul_i32 s47, s41, 196608
    s_mul_i32 s46, s42, 6144
    s_add_u32 s47, s47, s46
    s_add_u32 s47, s47, 2048
    """)
    a(f"""
    v_lshlrev_b32 v3, 4, v1
    v_add_u32 v5, 4096, v3
    v_lshrrev_b32 v4, 4, v1
    v_lshlrev_b32 v4, 4, v4
    v_and_b32 v6, 7, v1
    v_lshlrev_b32 v6, 8, v6
    v_add_u32 v6, v6, v4
    s_add_u32 s48, s45, 8192
    s_add_u32 s49, s45, 16384
    """)
    Q = 16
    Kf = 48
    for qt, vv in enumerate((3, 5)):
        for ks in range(4):
            r = Q + (qt * 4 + ks) * 4
            a(f"buffer_load_dwordx4 v[{r}:{r+3}], v{vv}, s[8:11], s45 offen offset:{1024*ks}")
    for kt, vv in enumerate((3, 5)):
        for ks in range(4):
            r = Kf + (kt * 4 + ks) * 4
            a(f"buffer_load_dwordx4 v[{r}:{r+3}], v{vv}, s[8:11], s48 offen offset:{1024*ks}")
    for ks in range(4):
        r = Kf + (8 + ks) * 4
        a(f"buffer_load_dwordx4 v[{r}:{r+3}], v6, s[12:15], s47 offen offset:{64*ks}")
    a(f"""
    v_lshrrev_b32 v7, 4, v1
    v_and_b32 v9, 15, v1
    v_mul_u32_u24 v8, {LROW}, v9
    v_add_u32 v8, v8, v4
    v_lshlrev_b32 v9, 4, v9
    v_mul_u32_u24 v10, {LROW}, v7
    v_add_u32 v10, v10, v9
    s_mul_i32 s50, s44, {WLDS}
    v_add_u32 v10, s50, v10
    v_add_u32 v8, s50, v8
    v_lshlrev_b32 v11, 8, v7
    v_add_u32 v11, v11, v9
    s_add_u32 s51, s47, 2048
    """)
    VS = 96
    for i in range(8):
        a(f"buffer_load_dwordx4 v[{VS+4*i}:{VS+4*i+3}], v{3 if i < 4 else 5}, s[8:11], s49 offen offset:{1024*(i&3)}")
    for i in range(2):
        a(f"buffer_load_dwordx4 v[{VS+32+4*i}:{VS+35+4*i}], v11, s[12:15], s51 offen offset:{1024*i}")
    for r in range(4):
        a(f"v_mov_b32 v{136+r}, 0")
    a(f"ds_write_b128 v10, v[136:139] offset:{40*LROW}")
    a(f"ds_write_b128 v10, v[136:139] offset:{44*LROW}")
    a("s_waitcnt vmcnt(0)")
    for i in range(8):
        a(f"ds_write_b128 v8, v[{VS+4*i}:{VS+4*i+3}] offset:{(i>>2)*16*LROW + (i&3)*64}")
    for i in range(8, 10):
        a(f"ds_write_b128 v10, v[{VS+4*i}:{VS+4*i+3}] offset:{4*i*LROW}")
    S = 96
    for r in range(24):
        a(f"v_mov_b32 v{S+r}, 0")
    a("s_nop 1")
    pairs = [(0, 0), (0, 1), (1, 1), (2, 0), (2, 1)]
    for ks in range(4):
        for kt, qt in pairs:
            c = S + (kt * 2 + qt) * 4
            ka = Kf + (kt * 4 + ks) * 4
            qa = Q + (qt * 4 + ks) * 4
            a(f"v_mfma_f32_16x16x32_bf16 v[{c}:{c+3}], v[{ka}:{ka+3}], v[{qa}:{qa+3}], v[{c}:{c+3}]")
    a(f"""
    s_waitcnt lgkmcnt(0)
    v_lshrrev_b32 v12, 4, v1
    v_lshlrev_b32 v12, 2, v12
    v_and_b32 v13, 15, v1
    v_mov_b32 v14, 0xff800000
    v_cmp_le_u32 s[52:53], 32, v1
    v_xor_b32 v15, 16, v1
    v_lshlrev_b32 v15, 2, v15
    v_xor_b32 v2, 32, v1
    v_lshlrev_b32 v2, 2, v2
    s_nop 4
    """)
    for r in range(4):
        a(f"v_add_u32 v120, {r}, v12")
        a("v_cmp_gt_u32 vcc, v120, v13")
        a("s_nop 1")
        for t in (0, 3):
            c = S + t * 4 + r
            a(f"v_cndmask_b32 v{c}, v{c}, v14, vcc")
    for qt in range(2):
        for r in range(4):
            c = S + (4 + qt) * 4 + r
            a(f"v_cndmask_b32 v{c}, v{c}, v14, s[52:53]")
    a(f"""
    v_lshrrev_b32 v12, 4, v1
    v_lshlrev_b32 v12, 2, v12
    v_bfe_u32 v13, v1, 2, 2
    v_add_u32 v12, v12, v13
    v_mul_u32_u24 v12, {LROW}, v12
    v_and_b32 v13, 3, v1
    v_lshlrev_b32 v13, 3, v13
    v_add_u32 v12, v12, v13
    v_add_u32 v12, s50, v12
    """)
    for dt in range(8):
        for kt in range(3):
            r = 16 + (dt * 3 + kt) * 2
            a(f"ds_read_b64_tr_b16 v[{r}:{r+1}], v12 offset:{kt*16*LROW + 32*dt}")
    a("s_mov_b32 s54, 0x3e0293ee")
    P = 64
    for qt in range(2):
        tiles = [(0, 0), (2, 0)] if qt == 0 else [(0, 1), (1, 1), (2, 1)]
        regs = [S + (kt * 2 + q) * 4 + r for kt, q in tiles for r in range(4)]
        a(f"v_max_f32 v120, v{regs[0]}, v{regs[1]}")
        for i in range(2, len(regs), 2):
            a(f"v_max3_f32 v120, v120, v{regs[i]}, v{regs[i+1]}")
        a("""
        ds_bpermute_b32 v121, v15, v120
        s_waitcnt lgkmcnt(0)
        v_max_f32 v120, v120, v121
        ds_bpermute_b32 v121, v2, v120
        s_waitcnt lgkmcnt(0)
        v_max_f32 v120, v120, v121
        v_mul_f32 v120, s54, v120
        """)
        for r in regs:
            a(f"v_fma_f32 v{r}, v{r}, s54, -v120")
            a(f"v_exp_f32 v{r}, v{r}")
        a("s_nop 0")
        a(f"v_add_f32 v121, v{regs[0]}, v{regs[1]}")
        for r in regs[2:]:
            a(f"v_add_f32 v121, v121, v{r}")
        a("""
        ds_bpermute_b32 v122, v15, v121
        s_waitcnt lgkmcnt(0)
        v_add_f32 v121, v121, v122
        ds_bpermute_b32 v122, v2, v121
        s_waitcnt lgkmcnt(0)
        v_add_f32 v121, v121, v122
        v_rcp_f32 v121, v121
        s_nop 0
        """)
        for r in regs:
            a(f"v_mul_f32 v{r}, v{r}, v121")
        for kt, q in tiles:
            c = S + (kt * 2 + q) * 4
            p = P + (q * 3 + kt) * 2
            a(f"v_cvt_pk_bf16_f32 v{p}, v{c}, v{c+1}")
            a(f"v_cvt_pk_bf16_f32 v{p+1}, v{c+2}, v{c+3}")
    O = 96
    for r in range(64):
        a(f"v_mov_b32 v{O+r}, 0")
    a("s_nop 1")
    for qt in range(2):
        kts = (0, 2) if qt == 0 else (0, 1, 2)
        for kt in kts:
            for dt in range(8):
                c = O + (qt * 8 + dt) * 4
                v = 16 + (dt * 3 + kt) * 2
                p = P + (qt * 3 + kt) * 2
                a(f"v_mfma_f32_16x16x16_bf16 v[{c}:{c+3}], v[{v}:{v+1}], v[{p}:{p+1}], v[{c}:{c+3}]")
    a(f"""
    v_and_b32 v3, 15, v1
    v_lshlrev_b32 v3, 13, v3
    v_lshrrev_b32 v4, 4, v1
    v_lshlrev_b32 v4, 3, v4
    v_add_u32 v3, v3, v4
    s_lshl_b32 s45, s41, 18
    s_lshl_b32 s46, s42, 8
    s_add_u32 s45, s45, s46
    s_add_u32 s46, s45, {16*8192}
    s_nop 7
    """)
    for qt in range(2):
        for dt in range(8):
            c = O + (qt * 8 + dt) * 4
            a(f"v_cvt_pk_bf16_f32 v{c}, v{c}, v{c+1}")
            a(f"v_cvt_pk_bf16_f32 v{c+1}, v{c+2}, v{c+3}")
            a(f"buffer_store_dwordx2 v[{c}:{c+1}], v3, s[16:19], s{45+qt} offen offset:{32*dt}")
    a(f"""
    {done}:
    s_endpgm
    """)
    return name, kd(name, 160), f"grid=(512,1,1) block=(256,1,1) lds={4*WLDS}"
```

```python
import os
from lib1 import *

E = lambda k, d: int(os.environ.get(k, str(d)))
TMO = 0x80000
SPIN = E("SPIN", 8)
SPA = E("SPA", 16)
M16 = E("M16", 1)
LOOKAT = E("LOOKAT", 12)
MIDB = E("MIDB", 6)
L_BC = 147456
L_EX = 131072
LDS_BYTES = 147456 + 256


def spin(a, vaddr, soff, sseg, vtmp, done, sleep=None):
    lp = a.lab("spin")
    ok = a.lab("spok")
    a(f"""
    s_mov_b32 s70, 0
    {lp}:
    buffer_load_dword v{vtmp}, v{vaddr}, s[12:15], {soff} offen sc1
    s_waitcnt vmcnt(0)
    v_cmp_ge_u32 vcc, s{sseg}, v{vtmp}
    s_add_u32 s70, s70, 1
    s_cbranch_vccz {ok}
    s_sleep {SPIN if sleep is None else sleep}
    s_cmp_lt_u32 s70, {TMO}
    s_cbranch_scc1 {lp}
    s_branch {done}
    {ok}:
    """)


def zwait(a, done, vt):
    lp = a.lab("zw")
    ok = a.lab("zwok")
    a(f"""
    s_cmp_lg_u32 s44, 0
    s_cbranch_scc1 {ok}
    v_and_b32 v{vt}, 7, v1
    v_lshlrev_b32 v{vt}, 5, v{vt}
    s_mov_b32 s70, 0
    {lp}:
    buffer_load_dword v{vt+1}, v{vt}, s[16:19], 0 offen sc1
    s_waitcnt vmcnt(0)
    v_add_u32_dpp v{vt+1}, v{vt+1}, v{vt+1} row_ror:1 row_mask:0xf bank_mask:0xf
    s_nop 1
    v_add_u32_dpp v{vt+1}, v{vt+1}, v{vt+1} row_ror:2 row_mask:0xf bank_mask:0xf
    s_nop 1
    v_add_u32_dpp v{vt+1}, v{vt+1}, v{vt+1} row_ror:4 row_mask:0xf bank_mask:0xf
    v_cmp_ne_u32 vcc, 0x100, v{vt+1}
    s_add_u32 s70, s70, 1
    s_cbranch_vccz {ok}
    s_sleep 4
    s_cmp_lt_u32 s70, {TMO}
    s_cbranch_scc1 {lp}
    s_branch {done}
    {ok}:
    """)


def set_flag(a, soff, sseg, vt, wave=0):
    sk = a.lab("sf")
    if wave is not None:
        a(f"s_cmp_lg_u32 s44, {wave}")
        a(f"s_cbranch_scc1 {sk}")
    a(f"""
    v_mov_b32 v{vt}, s{sseg}
    v_add_u32 v{vt}, 1, v{vt}
    v_mov_b32 v{vt+1}, 0
    s_mov_b64 exec, 1
    buffer_store_dword v{vt}, v{vt+1}, s[12:15], s{soff} offen sc1
    s_mov_b64 exec, -1
    {sk}:
    """)


def wstamp(a, vt, slot=0, kind=None, sseg=60):
    if E("STAMP", 0) != 3:
        return
    a(f"""
    s_memrealtime s[80:81]
    s_lshl_b32 s82, s40, 5
    s_add_u32 s82, s82, s41
    s_lshl_b32 s82, s82, 3
    s_add_u32 s82, s82, s44
    s_lshl_b32 s82, s82, 6
    s_add_u32 s82, s82, s{sseg}
    s_lshl_b32 s82, s82, 4
    s_add_u32 s82, s82, {WS_STAMP + (0x400000 if kind == 'qkv' else 0x100000) + 4*slot:#x}
    v_mov_b32 v{vt+1}, 0
    s_waitcnt lgkmcnt(0)
    v_mov_b32 v{vt}, s80
    s_mov_b64 exec, 1
    buffer_store_dword v{vt}, v{vt+1}, s[12:15], s82 offen
    s_mov_b64 exec, -1
    """)


def tstamp(a, idx):
    if E("STAMP", 0) != 3:
        return
    sk = a.lab("ts")
    a(f"""
    s_cmp_lg_u32 s44, 0
    s_cbranch_scc1 {sk}
    s_memrealtime s[80:81]
    s_lshl_b32 s82, s40, 5
    s_add_u32 s82, s82, s41
    s_lshl_b32 s82, s82, 6
    s_add_u32 s82, s82, {WS_STAMP + 0x700000 + 4*idx:#x}
    v_mov_b32 v127, 0
    s_waitcnt lgkmcnt(0)
    v_mov_b32 v126, s80
    s_mov_b64 exec, 1
    buffer_store_dword v126, v127, s[12:15], s82 offen
    s_mov_b64 exec, -1
    {sk}:
    """)


def cstamp(a, i, kind, cond=None):
    if E("STAMP", 0) != 4 or kind != os.environ.get("CKIND", "qkv"):
        return
    sk = a.lab("cs")
    if cond:
        a(f"s_cmp_lg_u32 s60, {E('CSEG', 30)}")
        a(f"s_cbranch_scc1 {sk}")
    a("s_memtime s[80:81]")
    if i in (0, 7):
        a("s_memrealtime s[82:83]")
    a("s_waitcnt lgkmcnt(0)")
    a(f"s_mov_b32 s{84+i}, s80")
    if i in (0, 7):
        a(f"s_mov_b32 s{92 + (i == 7)}, s82")
    if i == 7:
        a(f"""
        s_lshl_b32 s82, s40, 5
        s_add_u32 s82, s82, s41
        s_lshl_b32 s82, s82, 3
        s_add_u32 s82, s82, s44
        s_lshl_b32 s82, s82, 6
        s_add_u32 s82, s82, {WS_STAMP:#x}
        v_mov_b32 v11, 0
        """)
        for j in range(10):
            a(f"v_mov_b32 v10, s{84+j}")
            a(f"buffer_store_dword v10, v11, s[12:15], s82 offen offset:{4*j}")
    a(f"{sk}:")


def gelu(a, r, t):
    a(f"v_mul_f32 v{t}, v{r}, v{r}")
    a(f"v_mul_f32 v{t}, 0x3d372713, v{t}")
    a(f"v_add_f32 v{t}, 1.0, v{t}")
    a(f"v_mul_f32 v{t}, v{t}, v{r}")
    a(f"v_mul_f32 v{t}, 0xc0135761, v{t}")
    a(f"v_exp_f32 v{t}, v{t}")
    a("s_nop 0")
    a(f"v_add_f32 v{t}, 1.0, v{t}")
    a(f"v_rcp_f32 v{t}, v{t}")
    a("s_nop 0")
    a(f"v_mul_f32 v{r}, v{r}, v{t}")


NPC = 2


def phase_off(a, dst, src, kind):
    if kind == 'wo':
        a(f"s_and_b32 s{dst}, s{src}, 3")
        a(f"s_lshl_b32 s{dst}, s{dst}, 7")
    elif kind == 'qkv':
        a(f"s_and_b32 s{dst}, s{src}, 7")
        a(f"s_lshl_b32 s{dst}, s{dst}, 9")
    elif kind == 'f1':
        a(f"s_mul_i32 s{dst}, s{src}, 171")
        a(f"s_lshr_b32 s{dst}, s{dst}, 9")
        a(f"s_mul_i32 s{dst}, s{dst}, 3")
        a(f"s_sub_u32 s{dst}, s{src}, s{dst}")
        a(f"s_lshl_b32 s{dst}, s{dst}, 9")
    else:
        a(f"s_mov_b32 s{dst}, 0")


def gemm_role(a, kind, done, fin):
    NK = 28 if kind == 'f2' else 32
    KH = 16 * NK
    ld = {'wo': 2048, 'f1': 7168, 'f2': 2048, 'qkv': 8192}[kind]
    wsz = {'wo': 4096 * 2048, 'f1': 1024 * 7168, 'f2': 3584 * 2048, 'qkv': 1024 * 8192}[kind]
    wrow = kind in ('f1', 'qkv')
    if kind == 'qkv':
        a(f"""
        s_lshr_b32 s53, s48, 2
        s_cmp_lt_u32 s53, 2
        s_cselect_b32 s46, 1, 0
        s_xor_b32 s53, s53, s46
        s_lshl_b32 s46, s53, 3
        s_add_u32 s46, s46, {KA['Wq']}
        s_load_dwordx2 s[4:5], s[0:1], s46
        s_lshl_b32 s49, s40, 2
        s_and_b32 s46, s48, 3
        s_add_u32 s49, s49, s46
        """)
    else:
        a(f"s_load_dwordx2 s[4:5], s[0:1], {KA[{'wo': 'Wo', 'f1': 'w1', 'f2': 'w2'}[kind]]}")
    a(f"""
    s_load_dwordx2 s[6:7], s[0:1], {KA['b1']}
    s_and_b32 s50, s44, 3
    s_lshr_b32 s51, s44, 2
    s_waitcnt lgkmcnt(0)
    """)
    srd(a, 24, 4, 5, wsz)
    if kind == 'f1':
        a("s_mul_i32 s49, s42, 7")
        a("s_add_u32 s49, s49, s43")
    if kind == 'qkv' and E("QDELAY", 1):
        nq = a.lab("g_nq")
        nq2 = a.lab("g_nq2")
        a(f"s_cmp_lg_u32 s53, 0")
        a(f"s_cbranch_scc1 {nq}")
        zwait(a, done, 10)
        a(f"""
        s_cmp_lg_u32 s44, 0
        s_cbranch_scc1 {nq2}
        v_mov_b32 v10, {WS_FLG + FL:#x}
        s_mov_b32 s47, 0
        """)
        spin(a, 10, "0", 47, 11, done)
        a(f"""
        {nq2}:
        s_barrier
        {nq}:
        """)
    rpw = KH // 8
    a(f"""
    v_lshrrev_b32 v3, 4, v1
    v_and_b32 v4, 15, v1
    v_lshlrev_b32 v5, 2, v3
    v_xor_b32 v4, v4, v5
    v_mul_u32_u24 v3, {ld}, v3
    v_lshl_add_u32 v3, v4, 4, v3
    s_mul_i32 s46, s51, {KH}
    s_mul_i32 s47, s50, {rpw}
    s_add_u32 s46, s46, s47
    """)
    if wrow:
        a(f"s_mul_i32 s46, s46, {ld}")
        a("s_lshl_b32 s47, s49, 8")
    else:
        a(f"s_mul_i32 s47, s42, {2*KH}")
        a("s_add_u32 s46, s46, s47")
        a(f"s_mul_i32 s46, s46, {ld}")
        a("s_lshl_b32 s47, s43, 8")
    hlrows = 8 if wrow else 4
    b_chunk, b_half = (0, 1) if kind == 'qkv' else (1, 0)
    a(f"""
    s_add_u32 s46, s46, s47
    s_lshl_b32 s45, s51, 16
    s_mul_i32 s47, s50, {rpw*256}
    s_add_u32 s45, s45, s47
    v_bfe_u32 v4, v1, 2, 2
    v_bfe_u32 v5, v1, 4, 1
    v_lshlrev_b32 v5, 1, v5
    v_bfe_u32 v6, v1, {b_chunk}, 1
    v_add_u32 v5, v5, v6
    s_lshl_b32 s47, s50, 2
    v_add_u32 v5, s47, v5
    v_lshlrev_b32 v6, 2, v4
    v_xor_b32 v5, v5, v6
    v_lshlrev_b32 v5, 4, v5
    v_lshl_add_u32 v5, v4, 8, v5
    v_bfe_u32 v6, v1, {b_half}, 1
    v_lshl_add_u32 v5, v6, 3, v5
    v_lshrrev_b32 v6, 5, v1
    v_mul_u32_u24 v6, {hlrows*256}, v6
    v_add_u32 v5, v5, v6
    s_lshl_b32 s47, s51, 16
    v_add_u32 v5, s47, v5
    """)

    if M16:
        a(f"""
        v_bfe_u32 v4, v1, 2, 2
        v_xor_b32 v5, s50, v4
        v_lshlrev_b32 v5, 6, v5
        v_lshl_add_u32 v5, v4, 8, v5
        v_and_b32 v6, 3, v1
        v_lshl_add_u32 v5, v6, {4 if kind == 'qkv' else 3}, v5
        v_lshrrev_b32 v6, 4, v1
        v_lshl_add_u32 v5, v6, {11 if wrow else 10}, v5
        s_lshl_b32 s47, s51, 16
        v_add_u32 v5, s47, v5
        """)

    def rowstart(F, e):
        if M16:
            return 32 * (F >> 1) + e * (4 if wrow else 16) + (F & 1) * (8 if kind == 'qkv' else 32) / 256
        if wrow:
            return 16 * F + 4 * e
        if kind == 'f2':
            return 16 * F + 8 * e
        return 32 * (F >> 1) + 16 * e + 8 * (F & 1)
    for r in range(2):
        for i in range(rpw // 4):
            a(f"s_add_u32 m0, s45, {1024*i}")
            a(f"s_add_u32 s47, s46, {(r*KH//2 + 4*i)*ld:#x}")
            a("buffer_load_dwordx4 v3, s[24:27], s47 offen lds")
        a("s_waitcnt vmcnt(0)")
        a("s_barrier")
        for F in range(NK // 2):
            reg = (r * NK // 2 + F) * 4
            for e in range(2):
                a(f"ds_read_b64_tr_b16 a[{reg+2*e}:{reg+2*e+1}], v5 offset:{int(rowstart(F, e)*256)}")
            if F % 4 == 3:
                a("s_waitcnt lgkmcnt(0)")
        a("s_waitcnt lgkmcnt(0)")
        a("s_barrier")
        tstamp(a, (1 if kind == 'qkv' else 4) + r)
    aseg = {'wo': 262144, 'f1': 65536, 'f2': 229376, 'qkv': 65536}[kind]
    abase = {'wo': WS_OX, 'f1': WS_H2, 'f2': WS_F, 'qkv': WS_H1}[kind]
    ND = NK // 4
    a(f"""
    v_lshlrev_b32 v2, 4, v1
    s_mul_i32 s64, s44, {ND*1024}
    s_add_u32 s46, s64, {abase:#x}
    """)
    if not wrow:
        a(f"s_mul_i32 s47, s42, {2*NK*1024}")
        a("s_add_u32 s46, s46, s47")
    a(f"""
    v_add_u32 v3, s46, v2
    s_mul_i32 s46, s51, {NK*1024}
    v_add_u32 v4, s46, v2
    v_and_b32 v6, 15, v1
    v_lshlrev_b32 v6, 4, v6
    v_lshrrev_b32 v7, 4, v1
    v_lshl_add_u32 v6, v7, 9, v6
    {"v_add_u32 v4, s46, v6" if M16 else ""}
    s_lshl_b32 s46, s50, 12
    s_add_u32 s46, s46, {L_EX}
    v_add_u32 v5, s46, v2
    """)
    if wrow:
        a(f"""
        v_and_b32 v7, 3, v1
        v_lshlrev_b32 v7, 7, v7
        v_add_u32 v7, {WS_FLG + (FC if kind == 'f1' else FL):#x}, v7
        """)
    if kind == 'qkv':
        a(f"""
        s_mul_i32 s46, s49, 24576
        s_lshl_b32 s47, s53, 13
        s_add_u32 s46, s46, s47
        s_lshl_b32 s47, s50, 10
        s_add_u32 s46, s46, s47
        s_add_u32 s46, s46, {WS_QKV:#x}
        v_and_b32 v8, 15, v1
        v_lshlrev_b32 v8, 4, v8
        v_bfe_u32 v9, v1, 4, 1
        v_lshl_add_u32 v8, v9, 12, v8
        v_lshrrev_b32 v9, 5, v1
        v_lshl_add_u32 v8, v9, 8, v8
        v_add_u32 v8, s46, v{2 if M16 else 8}
        v_add_u32 v9, {4096 if M16 else 512}, v8
        s_lshl_b32 s52, s40, 2
        s_add_u32 s52, s52, s53
        s_lshl_b32 s52, s52, 2
        s_and_b32 s47, s48, 3
        s_add_u32 s52, s52, s47
        s_lshl_b32 s52, s52, 7
        s_add_u32 s52, s52, {WS_FLG + FQ:#x}
        """)
    elif kind == 'f1':
        a(f"""
        s_lshl_b32 s46, s49, 13
        s_lshl_b32 s47, s50, 11
        s_add_u32 s46, s46, s47
        s_add_u32 s46, s46, {WS_F:#x}
        v_add_u32 v8, s46, v{6 if M16 else 2}
        s_lshl_b32 s52, s49, 7
        s_add_u32 s52, s52, {WS_FLG + FF1:#x}
        """)
        srd(a, 28, 6, 7, 7168)
        a(f"""
        s_lshl_b32 s46, s49, 8
        s_lshl_b32 s47, s50, 6
        s_add_u32 s46, s46, s47
        v_lshrrev_b32 v9, {4 if M16 else 5}, v1
        v_lshlrev_b32 v9, 3, v9
        """)
        for rr in range(4):
            a(f"buffer_load_dwordx2 v[{32+2*rr}:{33+2*rr}], v9, s[28:31], s46 offen offset:{32*(rr&1) if M16 else 16*rr}")
        a(f"v_add_u32 v9, {256 if M16 else 1024}, v8")
        a("""
        s_mov_b32 s56, 0xbdd2d3e8
        s_mov_b32 s57, 0xbdd2d3e8
        v_mov_b32 v112, 0xc0135761
        v_mov_b32 v113, 0xc0135761
        s_waitcnt vmcnt(0)
        """)
        for i in range(8):
            a(f"v_lshlrev_b32 v{64+2*i}, 16, v{32+i}")
            a(f"v_and_b32 v{65+2*i}, 0xffff0000, v{32+i}")
    else:
        if kind == 'wo':
            a(f"""
            v_and_b32 v7, 7, v1
            v_lshlrev_b32 v7, 9, v7
            s_lshl_b32 s46, s42, 12
            s_add_u32 s46, s46, {WS_FLG + FA:#x}
            v_add_u32 v7, s46, v7
            """)
        else:
            a(f"""
            v_min_u32 v7, 6, v1
            v_lshlrev_b32 v7, 7, v7
            s_mul_i32 s46, s42, {7*128}
            s_add_u32 s46, s46, {WS_FLG + FF1:#x}
            v_add_u32 v7, s46, v7
            """)
        a(f"""
        s_lshl_b32 s46, s42, 16
        s_lshl_b32 s47, s43, 11
        s_add_u32 s46, s46, s47
        s_lshl_b32 s47, s50, 9
        s_add_u32 s46, s46, s47
        s_add_u32 s46, s46, {WS_P1 if kind == 'wo' else WS_P2:#x}
        v_and_b32 v8, 31, v1
        v_lshlrev_b32 v8, 4, v8
        v_lshrrev_b32 v9, 5, v1
        v_lshl_add_u32 v8, v9, 14, v8
        v_add_u32 v8, s46, v8
        v_add_u32 v9, 0x8000, v8
        s_lshl_b32 s52, s43, 9
        s_lshl_b32 s47, s42, 7
        s_add_u32 s52, s52, s47
        s_add_u32 s52, s52, {WS_FLG + (FW if kind == 'wo' else FF2):#x}
        """)
    oseg = {'f1': 229376, 'qkv': 786432}.get(kind, 262144)
    a(f"""
    s_mov_b32 s60, 0
    s_mov_b32 s61, 0
    s_mov_b32 s62, 0
    s_mov_b32 s63, 0
    s_mov_b32 s67, 0
    s_mov_b32 s68, 3
    v_mov_b32 v15, {L_BC}
    v_mov_b32 v14, 0
    ds_write_b32 v15, v14 offset:4
    """)

    def dma_if(lim):
        sk = a.lab("g_nd")
        a(f"""
        s_mov_b32 s69, 0
        s_cmp_gt_u32 s62, s{lim}
        s_cbranch_scc1 {sk}
        s_cmp_ge_u32 s62, s66
        s_cbranch_scc1 {sk}
        s_add_u32 s47, s61, 4096
        """)
        for hf in range(2):
            a(f"s_add_u32 m0, s64, {4096*hf}")
            a("s_nop 0")
            for i in range(4):
                if i + 4 * hf < min(ND, E("XDMA", 8)):
                    a(f"buffer_load_dwordx4 v3, s[12:15], s{61 if hf == 0 else 47} offen offset:{1024*i} sc1 lds")
        a(f"""
        s_add_u32 s61, s61, {aseg}
        s_add_u32 s62, s62, 1
        s_xor_b32 s64, s64, 0x10000
        s_mov_b32 s69, 1
        {sk}:
        """)

    NL = 1 if kind == 'f2' else 3

    def look_issue(first):
        a(f"s_add_u32 s54, s60, {first}")
        for i in range(NL):
            a(f"s_add_u32 s55, s54, {i}")
            phase_off(a, 46, 55, kind)
            a(f"buffer_load_dword v{11+i}, v7, s[12:15], s46 offen sc1")

    def look_eval():
        dn = a.lab("g_le")
        a("s_mov_b32 s46, s54")
        for i in range(3):
            a(f"v_cmp_ge_u32 vcc, s46, v{11 + min(i, NL - 1)}")
            a("s_nop 0")
            a(f"s_cbranch_vccnz {dn}")
            a("s_add_u32 s46, s46, 1")
        a(f"{dn}:")
        a("v_mov_b32 v11, s46")
        a("ds_write_b32 v15, v11")

    def epi_head():
        for i in range(4):
            a(f"ds_read_b128 v[{80+4*i}:{83+4*i}], v5 offset:{1024*i}")
        a("s_nop 7")
        for q in range(4):
            a(f"s_waitcnt lgkmcnt({3-q})")
            for i in range(4):
                a(f"v_add_f32 v{80+4*q+i}, v{80+4*q+i}, v{16+4*q+i}")

    def epi_tail():
        e = []
        for h in range(2):
            R = 80 + 8 * h
            if kind == 'f1':
                T = 96

                def rnd():
                    for i in range(8):
                        e.append(f"v_cvt_pk_bf16_f32 v{R+i}, 0, v{R+i}")
                rnd()
                for i in range(8):
                    e.append(f"v_add_f32 v{R+i}, v{R+i}, v{64+8*h+i}")
                rnd()
                for op in ("v_mul_f32 v{t}, v{r}, v{r}", "v_fma_f32 v{t}, v{t}, s56, v112", "v_mul_f32 v{t}, v{t}, v{r}",
                           "v_exp_f32 v{t}, v{t}", "v_add_f32 v{t}, 1.0, v{t}", "v_rcp_f32 v{t}, v{t}", "v_mul_f32 v{r}, v{r}, v{t}"):
                    for i in range(8):
                        e.append(op.format(t=T + i, r=R + i))
            if wrow:
                for i in range(4):
                    e.append(f"v_cvt_pk_bf16_f32 v{104+4*h+i}, v{R+2*i}, v{R+2*i+1}")
                e.append(f"buffer_store_dwordx4 v[{104+4*h}:{107+4*h}], v{8+h}, s[12:15], s63 offen sc1")
            else:
                o = 104 + 4 * h
                for i in range(4):
                    e.append(f"v_cvt_pk_bf16_f32 v{o+i}, v{R+2*i}, v{R+2*i+1}")
                e.append("s_nop 1")
                e.append(f"v_permlane{16 if M16 else 32}_swap_b32 v{o}, v{o+2}")
                e.append(f"v_permlane{16 if M16 else 32}_swap_b32 v{o+1}, v{o+3}")
                e.append(f"buffer_store_dwordx4 v[{o}:{o+3}], v{(8, 9)[h]}, s[12:15], s63 offen sc1")
        e.append(f"s_add_u32 s63, s63, {oseg}")
        return e
    NPRE = E("NPRE", 44) if kind == 'f1' else 1000
    split = kind == 'f1'
    D = 8

    def aoff(n):
        return 2048 * (n >> 1) + 256 * (n & 1) if M16 else 1024 * n

    def areads():
        for i in range(D):
            a(f"ds_read_b128 v[{32+4*i}:{35+4*i}], v4 offset:{aoff(i)}")

    def areads_if_late():
        sk = a.lab("g_pr")
        a("s_cmp_eq_u32 s65, 0")
        a(f"s_cbranch_scc1 {sk}")
        areads()
        a(f"{sk}:")

    def mfmas(extra=(), vm=0):
        extra = list(extra)
        a(f"s_setprio {E('PM', 1)}")
        for ks in range(NK):
            a(f"s_waitcnt lgkmcnt({min(D - 1, NK - 1 - ks)})")
            f = 32 + 4 * (ks % D)
            cc = "0" if ks == 0 else "v[16:31]"
            def fill(budget):
                cost = 0
                while extra and cost < budget:
                    x = extra.pop(0)
                    cost += 2 if ("v_exp" in x or "v_rcp" in x) else 1
                    a(x)
            if E("XNOMM", 0) and ks > 1:
                a("s_nop 7")
            elif M16:
                for ct in range(2):
                    c = 16 + 8 * (ks & 1) + 4 * ct
                    w = 8 * (ks >> 1) + 4 * ct
                    cc = "0" if ks < 2 else f"v[{c}:{c+3}]"
                    if wrow:
                        a(f"v_mfma_f32_16x16x32_bf16 v[{c}:{c+3}], a[{w}:{w+3}], v[{f}:{f+3}], {cc}")
                    else:
                        a(f"v_mfma_f32_16x16x32_bf16 v[{c}:{c+3}], v[{f}:{f+3}], a[{w}:{w+3}], {cc}")
                    if ct == 0:
                        fill(E("GAPC", 5) // 2)
            elif wrow:
                a(f"v_mfma_f32_32x32x16_bf16 v[16:31], a[{4*ks}:{4*ks+3}], v[{f}:{f+3}], {cc}")
            else:
                a(f"v_mfma_f32_32x32x16_bf16 v[16:31], v[{f}:{f+3}], a[{4*ks}:{4*ks+3}], {cc}")
            if ks + D < NK:
                a(f"ds_read_b128 v[{f}:{f+3}], v4 offset:{aoff(ks+D)}")
            fill((E("GAPC", 5) + 1) // 2 if M16 else E("GAPC", 5))
        for x in extra:
            a(x)
        a("v_xor_b32 v4, 0x10000, v4")
        a(f"s_setprio {E('PO', 0)}")
        cstamp(a, 2, kind, 1)
        a(f"s_waitcnt vmcnt({vm})")
        cstamp(a, 3, kind, 1)
    restart, nsp, g1r, loop0, loop1, tail, g1f = (a.lab("g_" + x) for x in ("restart", "nsp", "g1r", "loop0", "loop1", "tail", "g1f"))
    sp = a.lab("g_sp")
    if kind == 'qkv':
        zwait(a, done, 10)
    cstamp(a, 0, kind)
    a(f"""
    {restart}:
    s_cmp_lg_u32 s44, 0
    s_cbranch_scc1 {nsp}
    s_mov_b32 s70, 0
    {sp}:
    """)
    look_issue(0)
    a(f"""
    s_waitcnt vmcnt(0)
    v_cmp_ge_u32 vcc, s60, v11
    s_add_u32 s70, s70, 1
    s_cbranch_vccz {sp}_ok
    s_sleep {SPIN}
    s_cmp_lt_u32 s70, {TMO}
    s_cbranch_scc1 {sp}
    s_branch {done}
    {sp}_ok:
    """)
    look_eval()
    a(f"""
    {nsp}:
    s_waitcnt lgkmcnt(0)
    s_barrier
    ds_read_b32 v14, v15
    s_waitcnt lgkmcnt(0)
    v_readfirstlane_b32 s66, v14
    s_nop 3
    """)
    a(f"{restart}_go:")
    wstamp(a, 10, 1, kind)
    dma_if(60)
    a(f"""
    s_cmp_eq_u32 s51, 1
    s_cbranch_scc1 {g1r}
    s_add_u32 s59, s60, 1
    """)
    dma_if(59)
    w0 = a.lab("g_w0")
    a(f"""
    s_cmp_eq_u32 s69, 1
    s_cbranch_scc1 {w0}
    s_waitcnt vmcnt(0)
    {w0}:
    s_waitcnt vmcnt({ND})
    """)
    a(f"""
    s_mov_b32 s65, 1
    {loop0}:
    s_barrier
    """)
    wstamp(a, 10, 2, kind)
    cstamp(a, 1, kind, 1)
    areads_if_late()
    a("ds_read_b32 v14, v15")
    sk = a.lab("g_nl")
    a(f"s_cmp_lg_u32 s44, 0")
    a(f"s_cbranch_scc1 {sk}")
    look_issue(1)
    a(f"{sk}:")
    mfmas()
    ne = a.lab("g_ne")
    nw = a.lab("g_nw")
    ex0 = a.lab("g_ex0")
    a(f"""
    v_readfirstlane_b32 s66, v14
    s_barrier
    s_nop 6
    """)
    cstamp(a, 4, kind, 1)
    for i in range(4):
        a(f"ds_write_b128 v5, v[{16+4*i}:{19+4*i}] offset:{1024*i}")
    a(f"""
    s_cmp_lg_u32 s44, 0
    s_cbranch_scc1 {ne}
    """)
    look_eval()
    a(f"""
    {ne}:
    s_add_u32 s60, s60, 1
    """)
    if E("WFIRST", 1):
        a("s_waitcnt lgkmcnt(0)")
    dma_if(60)
    a("s_mov_b32 s65, s69")
    a("s_add_u32 s59, s60, 1")
    dma_if(59)
    a(f"""
    s_cmp_le_u32 s66, s60
    s_cbranch_scc1 {ex0}
    s_cmp_eq_u32 s65, 0
    s_cbranch_scc1 {nw}
    s_waitcnt vmcnt(0) lgkmcnt(0)
    s_branch {loop0}
    {nw}:
    """)
    areads()
    a(f"s_waitcnt lgkmcnt({D})")
    if E("STAMP", 0) == 4:
        a("s_sub_u32 s60, s60, 1")
        cstamp(a, 5, kind, 1)
        a("s_add_u32 s60, s60, 1")
    a(f"""
    s_branch {loop0}
    {ex0}:
    s_cmp_lg_u32 s44, 0
    s_cbranch_scc1 {ex0}_n
    s_sleep {E("SLX", 6)}
    """)
    look_issue(0)
    a("s_waitcnt vmcnt(0)")
    look_eval()
    a(f"""
    {ex0}_n:
    s_waitcnt lgkmcnt(0)
    s_barrier
    ds_read_b32 v14, v15
    s_waitcnt lgkmcnt(0)
    v_readfirstlane_b32 s66, v14
    s_barrier
    s_cmp_gt_u32 s66, s60
    s_cbranch_scc1 {restart}_go
    s_branch {tail}
    """)
    nfl, nep, nw1, mm2, jn = (a.lab("g_" + x) for x in ("nfl", "nep", "nw1", "mm2", "jn"))
    FB = 2 if split else 1
    a(f"""
    {g1r}:
    s_mov_b32 s65, 1
    s_branch {loop1}_e
    {loop1}:
    s_mov_b32 s65, 0
    {loop1}_e:
    s_barrier
    """)
    cstamp(a, 1, kind, 1)
    a(f"""
    ds_read_b32 v14, v15
    s_bitcmp1_b32 s67, {FB}
    s_cbranch_scc0 {nfl}
    s_sub_u32 s59, s60, {FB+1}
    """)
    set_flag(a, 52, 59, 10, wave=4)
    wstamp(a, 10, 0, kind, 59)
    a(f"""
    {nfl}:
    s_bitcmp1_b32 s67, 0
    s_cbranch_scc0 {nep}
    """)
    epi_head()
    tail_ops = epi_tail()
    if not split:
        for x in tail_ops:
            a(x)
    a(f"""
    {nep}:
    s_waitcnt lgkmcnt(0)
    v_readfirstlane_b32 s66, v14
    s_nop 3
    """)
    dma_if(60)
    a("s_or_b32 s65, s65, s69")
    a("s_add_u32 s59, s60, 1")
    dma_if(59)
    if split:
        for x in tail_ops[:NPRE]:
            a(x)
    a(f"""
    s_cmp_eq_u32 s65, 0
    s_cbranch_scc1 {nw1}
    s_waitcnt vmcnt(0)
    s_barrier
    """)
    areads()
    a(f"""
    s_branch {jn}
    {nw1}:
    """)
    areads()
    cstamp(a, 5, kind, 1)
    a(f"""
    s_barrier
    {jn}:
    """)
    cstamp(a, 4, kind, 1)
    if split:
        a(f"""
        s_bitcmp1_b32 s67, 0
        s_cbranch_scc1 {mm2}
        """)
        mfmas()
        a(f"s_branch {mm2}_d")
        a(f"{mm2}:")
        mfmas(tail_ops[NPRE:], vm=2)
        a(f"{mm2}_d:")
    else:
        mfmas()
    a(f"""
    s_lshl_b32 s67, s67, 1
    s_or_b32 s67, s67, 1
    s_add_u32 s60, s60, 1
    s_cmp_gt_u32 s66, s60
    s_cbranch_scc1 {loop1}
    s_barrier
    ds_read_b32 v14, v15
    s_waitcnt lgkmcnt(0)
    v_readfirstlane_b32 s66, v14
    s_barrier
    """)
    dma_if(60)
    a("s_sub_u32 s59, s60, 1")
    wstamp(a, 10, 3, kind, 59)
    epi_head()
    for x in epi_tail():
        a(x)
    a(f"""
    v_mov_b32 v10, 1
    s_mov_b64 exec, 1
    s_waitcnt vmcnt(0)
    ds_add_rtn_u32 v10, v15, v10 offset:4
    s_waitcnt lgkmcnt(0)
    v_readfirstlane_b32 s46, v10
    s_mov_b64 exec, -1
    s_mov_b32 s67, 0
    s_nop 1
    s_cmp_lg_u32 s46, s68
    s_cbranch_scc1 {g1f}
    """)
    set_flag(a, 52, 59, 10, wave=None)
    wstamp(a, 10, 0, kind, 59)
    a(f"""
    {g1f}:
    s_add_u32 s68, s68, 4
    s_cmp_gt_u32 s66, s60
    s_cbranch_scc1 {g1r}
    {tail}:
    s_cmp_lt_u32 s60, 64
    s_cbranch_scc1 {restart}
    s_barrier
    """)
    cstamp(a, 7, kind)
    a(f"s_branch {fin}")


LH = 32768


def rnd16(a, base):
    for i in range(16):
        a(f"v_cvt_pk_bf16_f32 v{base+i}, 0, v{base+i}")


def pk16(a, op, d, x, y, bcast=False, neg=False):
    for i in range(0, 16, 2):
        if bcast:
            yy = y & ~1
            sel = "op_sel:[0,1] op_sel_hi:[1,1]" if y & 1 else "op_sel_hi:[1,0]"
            a(f"{op} v[{d+i}:{d+i+1}], v[{x+i}:{x+i+1}], v[{yy}:{yy+1}] {sel}" + (" neg_lo:[0,1] neg_hi:[0,1]" if neg else ""))
        else:
            a(f"{op} v[{d+i}:{d+i+1}], v[{x+i}:{x+i+1}], v[{y+i}:{y+i+1}]")


def modload(a, base, idx):
    a(f"s_mov_b32 s46, {WS_MOD + idx*4096}")
    for half in range(2):
        for q in range(2):
            r = base + half * 8 + q * 4
            a(f"buffer_load_dwordx4 v[{r}:{r+3}], v3, s[12:15], s46 offen offset:{half*2048 + q*16} sc1")


def ln_consts(a, dst):
    a(f"""
    s_mul_i32 s46, s44, 2064
    s_add_u32 s46, s46, {LH}
    v_add_u32 v10, s46, v2
    v_and_b32 v11, 7, v1
    v_lshrrev_b32 v12, 3, v1
    v_mul_u32_u24 v13, 2064, v11
    v_lshl_add_u32 v13, v12, 4, v13
    s_lshl_b32 s46, s44, 8
    s_add_u32 s46, s46, {LH}
    v_add_u32 v13, s46, v13
    v_lshlrev_b32 v11, 4, v11
    v_lshl_add_u32 v11, v12, 9, v11
    s_lshl_b32 s46, s44, 13
    s_lshl_b32 s47, s42, 7
    s_add_u32 s46, s46, s47
    s_add_u32 s46, s46, {dst:#x}
    v_add_u32 v11, s46, v11
    v_add_u32 v12, 4096, v11
    """)


def ln_tail(a):
    for i in range(8):
        a(f"v_lshlrev_b32 v{64+2*i}, 16, v{96+i}")
        a(f"v_and_b32 v{65+2*i}, 0xffff0000, v{96+i}")
    for i in range(4):
        a(f"v_pk_add_f32 v[{80+2*i}:{81+2*i}], v[{64+2*i}:{65+2*i}], v[{72+2*i}:{73+2*i}]")
    a("v_pk_add_f32 v[80:81], v[80:81], v[84:85]")
    a("v_pk_add_f32 v[82:83], v[82:83], v[86:87]")
    a("v_pk_add_f32 v[80:81], v[80:81], v[82:83]")
    a("v_add_f32 v14, v80, v81")
    wave_sum_to_sgpr(a, 14, 46)
    a("""
    s_nop 1
    v_mov_b32 v15, s46
    v_mul_f32 v15, 0x3a800000, v15
    """)
    pk16(a, "v_pk_add_f32", 80, 64, 15, bcast=True, neg=True)
    a("v_pk_mul_f32 v[104:105], v[80:81], v[80:81]")
    a("v_pk_mul_f32 v[106:107], v[82:83], v[82:83]")
    for i in range(4, 16, 2):
        d = 104 + (i & 2)
        a(f"v_pk_fma_f32 v[{d}:{d+1}], v[{80+i}:{81+i}], v[{80+i}:{81+i}], v[{d}:{d+1}]")
    a("v_pk_add_f32 v[104:105], v[104:105], v[106:107]")
    a("v_add_f32 v14, v104, v105")
    rnd_bf16(a, 15)
    wave_sum_to_sgpr(a, 14, 47)
    pk16(a, "v_pk_add_f32", 64, 64, 15, bcast=True, neg=True)
    a("""
    v_mov_b32 v14, s47
    v_mul_f32 v14, 0x3a800000, v14
    """)
    rnd_bf16(a, 14)
    a("v_add_f32 v14, 0x3727c5ac, v14")
    rnd_bf16(a, 14)
    a("v_sqrt_f32 v14, v14")
    a("s_nop 0")
    rnd_bf16(a, 14)
    a("v_rcp_f32 v14, v14")
    rnd16(a, 64)
    pk16(a, "v_pk_mul_f32", 64, 64, 14, bcast=True)
    rnd16(a, 64)
    pk16(a, "v_pk_mul_f32", 64, 64, 32)
    rnd16(a, 64)
    pk16(a, "v_pk_add_f32", 64, 64, 48)
    for i in range(8):
        a(f"v_cvt_pk_bf16_f32 v{104+i}, v{64+2*i}, v{65+2*i}")
    a(f"""
    ds_write_b128 v10, v[104:107]
    ds_write_b128 v10, v[108:111] offset:1024
    s_waitcnt lgkmcnt(0)
    s_barrier
    ds_read_b128 v[104:107], v13
    ds_read_b128 v[108:111], v13 offset:128
    s_waitcnt lgkmcnt(1)
    buffer_store_dwordx4 v[104:107], v11, s[12:15], s63 offen sc1
    s_waitcnt lgkmcnt(0)
    buffer_store_dwordx4 v[108:111], v12, s[12:15], s63 offen sc1
    s_waitcnt vmcnt(0)
    s_barrier
    """)
    set_flag(a, 52, 60, 14)


def row_off(a, v):
    a(f"""
    s_lshl_b32 s46, s42, 3
    s_add_u32 s46, s46, s44
    s_lshl_b32 s46, s46, 11
    v_add_u32 v{v}, s46, v2
    """)


L_M1 = 140000 // 256 * 256


def mod1_issue(a):
    a(f"""
    s_load_dwordx4 s[8:11], s[0:1], {KA['c']}
    v_lshrrev_b32 v5, 3, v0
    v_mul_u32_u24 v6, {2*12288}, v5
    v_and_b32 v7, 7, v0
    v_lshl_add_u32 v6, v7, 4, v6
    v_add_u32 v7, 12288, v6
    v_lshlrev_b32 v5, 2, v5
    s_lshr_b32 s50, s2, 5
    s_and_b32 s51, s2, 31
    s_mul_i32 s52, s50, {128*12288}
    s_lshl_b32 s53, s51, 7
    s_add_u32 s52, s52, s53
    s_lshl_b32 s53, s50, 8
    s_waitcnt lgkmcnt(0)
    """)
    srd(a, 28, 10, 11, 1024 * 12288)
    srd(a, 32, 8, 9, 2048)
    a("""
    buffer_load_dword v8, v5, s[32:35], s53 offen
    buffer_load_dwordx4 v[12:15], v6, s[28:31], s52 offen
    buffer_load_dwordx4 v[16:19], v7, s[28:31], s52 offen
    """)


def mod1_finish(a):
    a("""
    s_waitcnt vmcnt(0)
    v_lshlrev_b32 v9, 16, v8
    v_and_b32 v10, 0xffff0000, v8
    v_mul_f32 v20, 0xbfb8aa3b, v9
    v_mul_f32 v21, 0xbfb8aa3b, v10
    v_exp_f32 v20, v20
    v_exp_f32 v21, v21
    s_nop 0
    v_add_f32 v20, 1.0, v20
    v_add_f32 v21, 1.0, v21
    v_rcp_f32 v20, v20
    v_rcp_f32 v21, v21
    s_nop 0
    v_mul_f32 v9, v9, v20
    v_mul_f32 v10, v10, v21
    """)
    rnd_bf16(a, 9)
    rnd_bf16(a, 10)
    for p in range(4):
        a(f"v_lshlrev_b32 v28, 16, v{12+p}")
        a(f"v_and_b32 v29, 0xffff0000, v{12+p}")
        a(f"v_lshlrev_b32 v30, 16, v{16+p}")
        a(f"v_and_b32 v31, 0xffff0000, v{16+p}")
        a(f"v_mul_f32 v{20+2*p}, v28, v9")
        a(f"v_mul_f32 v{21+2*p}, v29, v9")
        a(f"v_fmac_f32 v{20+2*p}, v30, v10")
        a(f"v_fmac_f32 v{21+2*p}, v31, v10")
    a("s_nop 1")
    for i in range(8):
        a(f"v_add_f32_dpp v{20+i}, v{20+i}, v{20+i} row_ror:8 row_mask:0xf bank_mask:0xf")
    a("s_nop 1")
    for i in range(4):
        a(f"v_permlane16_swap_b32 v{20+i}, v{24+i}")
    for i in range(4):
        a(f"v_add_f32 v{20+i}, v{20+i}, v{24+i}")
    a("s_nop 1")
    for i in range(2):
        a(f"v_permlane32_swap_b32 v{20+i}, v{22+i}")
    for i in range(2):
        a(f"v_add_f32 v{20+i}, v{20+i}, v{22+i}")
    sk = a.lab("m1")
    a(f"""
    v_and_b32 v22, 7, v1
    v_lshlrev_b32 v22, 5, v22
    v_bfe_u32 v23, v1, 4, 1
    v_lshl_add_u32 v22, v23, 4, v22
    v_lshrrev_b32 v23, 5, v1
    v_lshl_add_u32 v22, v23, 3, v22
    s_lshl_b32 s52, s44, 8
    s_add_u32 s52, s52, {L_M1}
    v_add_u32 v22, s52, v22
    ds_write_b64 v22, v[20:21]
    s_waitcnt lgkmcnt(0)
    s_barrier
    s_cmp_lg_u32 s44, 1
    s_cbranch_scc1 {sk}
    v_lshlrev_b32 v22, 2, v1
    v_add_u32 v23, {L_M1}, v22
    """)
    for i in range(8):
        a(f"ds_read_b32 v{24+i}, v23 offset:{256*i}")
    a("s_waitcnt lgkmcnt(0)")
    for st in (4, 2, 1):
        for i in range(st):
            a(f"v_add_f32 v{24+i}, v{24+i}, v{24+st+i}")
    a(f"""
    s_lshl_b32 s52, s2, 8
    s_add_u32 s52, s52, {WS_MODP:#x}
    buffer_store_dword v24, v22, s[12:15], s52 offen sc1
    {sk}:
    """)


def mod_issue(a):
    for i in range(16):
        a(f"s_add_u32 s46, s53, {i*12288}")
        a(f"buffer_load_dwordx4 v[{32+4*i}:{35+4*i}], v4, s[28:31], s46 offen")


def mod_finish(a, younger):
    for i in range(16):
        a(f"s_waitcnt vmcnt({younger + 15 - i})")
        for p in range(4):
            w = 32 + 4 * i + p
            a(f"v_lshlrev_b32 v104, 16, v{w}")
            a(f"v_and_b32 v105, 0xffff0000, v{w}")
            if i == 0:
                a(f"v_mul_f32 v{96+2*p}, v104, v16")
                a(f"v_mul_f32 v{97+2*p}, v105, v16")
            else:
                a(f"v_fmac_f32 v{96+2*p}, v104, v{16+i}")
                a(f"v_fmac_f32 v{97+2*p}, v105, v{16+i}")
    sk = a.lab("m_sk")
    a("""
    v_lshlrev_b32 v104, 5, v0
    ds_write_b128 v104, v[96:99]
    ds_write_b128 v104, v[100:103] offset:16
    v_lshlrev_b32 v105, 2, v1
    s_lshl_b32 s46, s44, 11
    v_add_u32 v104, s46, v105
    s_waitcnt lgkmcnt(0)
    """)
    for i in range(8):
        a(f"ds_read_b32 v{96+i}, v104 offset:{256*i}")
    a("s_waitcnt lgkmcnt(0)")
    for st in (4, 2, 1):
        for i in range(st):
            a(f"v_add_f32 v{96+i}, v{96+i}, v{96+st+i}")
    a(f"""
    v_lshlrev_b32 v104, 2, v0
    ds_write_b32 v104, v96 offset:16384
    s_waitcnt lgkmcnt(0)
    s_barrier
    s_cmp_lg_u32 s44, 0
    s_cbranch_scc1 {sk}
    """)
    for i in range(8):
        a(f"ds_read_b32 v{96+i}, v105 offset:{16384 + 256*i}")
    a("s_waitcnt lgkmcnt(0)")
    for st in (4, 2, 1):
        for i in range(st):
            a(f"v_add_f32 v{96+i}, v{96+i}, v{96+st+i}")
    rnd_bf16(a, 96)
    a(f"""
    s_lshl_b32 s46, s53, 1
    buffer_store_dword v96, v105, s[12:15], s46 offen sc1
    {sk}:
    """)


def ln1_role(a, done):
    assert WS_MOD == 0
    a(f"""
    s_load_dwordx2 s[4:5], s[0:1], {KA['x']}
    v_lshlrev_b32 v2, 4, v1
    v_lshlrev_b32 v3, 5, v1
    s_lshl_b32 s55, s43, 2
    s_add_u32 s55, s55, s42
    s_waitcnt lgkmcnt(0)
    """)
    srd(a, 24, 4, 5, 2048 * 2048)
    row_off(a, 7)
    a("s_lshl_b32 s63, s43, 16")
    a("buffer_load_dwordx4 a[0:3], v7, s[24:27], s63 offen")
    a("buffer_load_dwordx4 a[4:7], v7, s[24:27], s63 offen offset:1024")
    tstamp(a, 1)
    zwait(a, done, 8)
    a("s_barrier")
    tstamp(a, 2)
    a("v_lshlrev_b32 v4, 4, v0")
    for k in range(8):
        a(f"s_mov_b32 s46, {WS_MODP + 8192*k:#x}")
        a(f"buffer_load_dwordx4 v[{32+4*k}:{35+4*k}], v4, s[12:15], s46 offen sc1")
    nx = a.lab("l_nx")
    a(f"""
    s_cmp_lg_u32 s44, 0
    s_cbranch_scc1 {nx}
    s_cmp_ge_u32 s42, 2
    s_cbranch_scc1 {nx}
    s_or_b32 s47, s39, 0x100
    v_mov_b32 v8, s47
    v_mov_b32 v9, 0
    s_lshl_b32 s46, s40, 3
    s_lshl_b32 s47, s42, 2
    s_add_u32 s46, s46, s47
    s_add_u32 s46, s46, {WS_CTL + 4096 + 512:#x}
    s_mov_b64 exec, 1
    buffer_store_dword v8, v9, s[12:15], s46 offen sc1
    s_mov_b64 exec, -1
    {nx}:
    """)
    ln_consts(a, WS_H1)
    a(f"""
    s_lshl_b32 s52, s43, 9
    s_lshl_b32 s47, s42, 7
    s_add_u32 s52, s52, s47
    s_add_u32 s52, s52, {WS_FLG + FL:#x}
    s_mov_b32 s60, s43
    s_waitcnt vmcnt(0)
    """)
    for st in (16, 8, 4):
        for i in range(st):
            a(f"v_add_f32 v{32+i}, v{32+i}, v{32+st+i}")
    for i in range(4):
        rnd_bf16(a, 32 + i)
    a("""
    ds_write_b128 v4, v[32:35]
    s_waitcnt lgkmcnt(0)
    s_barrier
    """)
    for base, off in ((48, 0), (32, 4096)):
        for half in range(2):
            for q in range(2):
                r = base + half * 8 + q * 4
                a(f"ds_read_b128 v[{r}:{r+3}], v3 offset:{off + half*2048 + q*16}")
    a("s_waitcnt lgkmcnt(0)")
    for i in range(16):
        a(f"v_add_f32 v{32+i}, 1.0, v{32+i}")
    rnd16(a, 32)
    tstamp(a, 5)
    lnsub = a.lab("l_sub")
    lnend = a.lab("l_end")
    a(f"{lnsub}:")
    a("s_lshl_b32 s63, s60, 16")
    for i in range(8):
        a(f"v_accvgpr_read_b32 v{96+i}, a{i}")
    ln_tail(a)
    a(f"""
    s_cmp_ge_u32 s60, 8
    s_cbranch_scc1 {lnend}
    """)
    for n in range(1, 8):
        a(f"s_add_u32 s63, s63, {8*65536}")
        a(f"buffer_load_dwordx4 a[{8*n}:{8*n+3}], v7, s[24:27], s63 offen")
        a(f"buffer_load_dwordx4 a[{8*n+4}:{8*n+7}], v7, s[24:27], s63 offen offset:1024")
    a("s_waitcnt vmcnt(0)")
    a(f"{lnend}:")
    for i in range(56):
        a(f"v_accvgpr_mov_b32 a{i}, a{i+8}")
    a(f"""
    s_add_u32 s60, s60, 8
    s_cmp_lt_u32 s60, 64
    s_cbranch_scc1 {lnsub}
    """)
    tstamp(a, 6)


def mod2(a):
    a(f"""
    s_load_dwordx4 s[8:11], s[0:1], {KA['c']}
    v_lshrrev_b32 v5, 3, v0
    s_mov_b32 s46, {16*12288}
    v_mul_lo_u32 v4, v5, s46
    v_and_b32 v6, 7, v0
    v_lshl_add_u32 v4, v6, 4, v4
    v_lshlrev_b32 v5, 5, v5
    s_waitcnt lgkmcnt(0)
    """)
    srd(a, 28, 10, 11, 1024 * 12288)
    srd(a, 32, 8, 9, 2048)
    a("buffer_load_dwordx4 v[8:11], v5, s[32:35], 0 offen")
    a("buffer_load_dwordx4 v[12:15], v5, s[32:35], 0 offen offset:16")
    a("s_waitcnt vmcnt(0)")
    for i in range(8):
        a(f"v_lshlrev_b32 v{16+2*i}, 16, v{8+i}")
        a(f"v_and_b32 v{17+2*i}, 0xffff0000, v{8+i}")
    for op in ("v_mul_f32 v{t}, 0xbfb8aa3b, v{r}", "v_exp_f32 v{t}, v{t}", "v_add_f32 v{t}, 1.0, v{t}", "v_rcp_f32 v{t}, v{t}",
               "v_mul_f32 v{r}, v{r}, v{t}"):
        for i in range(16):
            a(op.format(t=112 + i, r=16 + i))
    rnd16(a, 16)
    ml = a.lab("m_loop")
    a(f"""
    s_lshl_b32 s53, s55, 9
    s_add_u32 s53, s53, 4096
    {ml}:
    """)
    mod_issue(a)
    mod_finish(a, 0)
    a(f"""
    s_barrier
    s_add_u32 s53, s53, 128
    s_and_b32 s46, s53, 511
    s_cmp_lg_u32 s46, 0
    s_cbranch_scc1 {ml}
    s_lshl_b32 s54, s55, 7
    s_add_u32 s54, s54, {WS_FLG + FMD:#x}
    s_mov_b32 s60, 0
    s_waitcnt vmcnt(0)
    """)
    set_flag(a, 54, 60, 8)
    tstamp(a, 7)


def mod_wait(a, done, level):
    nsp = a.lab("mw")
    a(f"""
    s_cmp_lg_u32 s44, 0
    s_cbranch_scc1 {nsp}
    v_and_b32 v8, 15, v1
    v_lshlrev_b32 v8, 7, v8
    s_mov_b32 s46, {WS_FLG + FMD:#x}
    s_mov_b32 s47, {level}
    """)
    spin(a, 8, "s46", 47, 9, done, sleep=2)
    a(f"{nsp}:")
    a("s_barrier")


def red_role(a, kind, done):
    a(f"""
    s_load_dwordx2 s[4:5], s[0:1], {KA['x' if kind == 'c' else 'out']}
    s_load_dwordx2 s[6:7], s[0:1], {KA['b2']}
    v_lshlrev_b32 v2, 4, v1
    v_lshlrev_b32 v3, 5, v1
    s_waitcnt lgkmcnt(0)
    """)
    srd(a, 24, 4, 5, 2048 * 2048)
    srd(a, 28, 6, 7, 2048)
    mod_wait(a, done, 0)
    if kind == 'c':
        modload(a, 16, 2)
        modload(a, 32, 4)
        modload(a, 48, 3)
        a("s_waitcnt vmcnt(0)")
        for i in range(16):
            a(f"v_add_f32 v{32+i}, 1.0, v{32+i}")
        rnd16(a, 32)
    else:
        modload(a, 16, 5)
        a("buffer_load_dwordx4 v[48:51], v2, s[28:31], 0 offen")
        a("buffer_load_dwordx4 v[52:55], v2, s[28:31], 0 offen offset:1024")
        a("s_waitcnt vmcnt(0)")
        for i in range(8):
            a(f"v_lshlrev_b32 v{32+2*i}, 16, v{48+i}")
            a(f"v_and_b32 v{33+2*i}, 0xffff0000, v{48+i}")
    P = WS_P1 if kind == 'c' else WS_P2
    a(f"""
    s_lshl_b32 s46, s42, 14
    s_lshl_b32 s47, s44, 11
    s_add_u32 s46, s46, s47
    s_add_u32 s46, s46, {P:#x}
    v_add_u32 v4, s46, v2
    v_and_b32 v5, 31, v1
    v_lshlrev_b32 v5, 7, v5
    v_add_u32 v5, {WS_FLG + (FW if kind == 'c' else FF2):#x}, v5
    v_lshlrev_b32 v6, 2, v1
    s_lshl_b32 s46, s44, 9
    v_add_u32 v6, s46, v6
    s_lshl_b32 s46, s44, 12
    v_add_u32 v7, s46, v3
    """)
    row_off(a, 8)
    a(f"v_add_u32 v9, {WS_X1:#x}, v8")
    if kind == 'c':
        ln_consts(a, WS_H2)
        a(f"""
        s_lshl_b32 s52, s43, 9
        s_lshl_b32 s47, s42, 7
        s_add_u32 s52, s52, s47
        s_add_u32 s52, s52, {WS_FLG + FC:#x}
        """)
    a("s_mov_b32 s60, s43")
    loop = a.lab("r_loop")
    a(f"""
    {loop}:
    s_lshl_b32 s61, s60, 18
    s_lshl_b32 s63, s60, 16
    """)
    if kind == 'c':
        a("buffer_load_dwordx4 a[0:3], v8, s[24:27], s63 offen")
        a("buffer_load_dwordx4 a[4:7], v8, s[24:27], s63 offen offset:1024")
    nsp = a.lab("r_nsp")
    a(f"s_cmp_lg_u32 s44, 0")
    a(f"s_cbranch_scc1 {nsp}")
    spin(a, 5, "0", 60, 14, done)
    a(f"{nsp}:")
    a("s_barrier")
    wstamp(a, 14, 1)
    for kq in range(4):
        if kq:
            a(f"s_add_u32 s61, s61, 65536")
        for c2 in range(2):
            r = 96 + (kq * 2 + c2) * 4
            a(f"buffer_load_dwordx4 v[{r}:{r+3}], v4, s[12:15], s61 offen offset:{1024*c2} sc1")
    if kind == 'f':
        a("buffer_load_dwordx4 a[0:3], v9, s[12:15], s63 offen sc1")
        a("buffer_load_dwordx4 a[4:7], v9, s[12:15], s63 offen offset:1024 sc1")
    ex = 2 if kind == 'f' else 0
    for kq in range(4):
        a(f"s_waitcnt vmcnt({6-2*kq+ex})")
        d = 64 if kq == 0 else 80
        for i in range(8):
            a(f"v_lshlrev_b32 v{d+2*i}, 16, v{96+8*kq+i}")
            a(f"v_and_b32 v{d+2*i+1}, 0xffff0000, v{96+8*kq+i}")
        if kq:
            for i in range(8):
                a(f"v_pk_add_f32 v[{64+2*i}:{65+2*i}], v[{64+2*i}:{65+2*i}], v[{80+2*i}:{81+2*i}]")
    for c2 in range(2):
        for j in range(8):
            a(f"ds_write_b32 v6, v{64+8*c2+j} offset:{4096*j + 256*c2}")
    a("""
    s_waitcnt lgkmcnt(0)
    s_barrier
    """)
    wstamp(a, 14, 2)
    a("""
    ds_read_b128 v[64:67], v7
    ds_read_b128 v[68:71], v7 offset:16
    ds_read_b128 v[72:75], v7 offset:2048
    ds_read_b128 v[76:79], v7 offset:2064
    s_waitcnt vmcnt(0)
    """)
    for i in range(8):
        a(f"v_accvgpr_read_b32 v{96+i}, a{i}")
    for i in range(8):
        a(f"v_lshlrev_b32 v{80+2*i}, 16, v{96+i}")
        a(f"v_and_b32 v{81+2*i}, 0xffff0000, v{96+i}")
    a("s_waitcnt lgkmcnt(0)")
    rnd16(a, 64)
    if kind == 'f':
        pk16(a, "v_pk_add_f32", 64, 64, 32)
        rnd16(a, 64)
    pk16(a, "v_pk_mul_f32", 64, 64, 16)
    rnd16(a, 64)
    pk16(a, "v_pk_add_f32", 64, 64, 80)
    for i in range(8):
        a(f"v_cvt_pk_bf16_f32 v{96+i}, v{64+2*i}, v{65+2*i}")
    if kind == 'f':
        a("buffer_store_dwordx4 v[96:99], v8, s[24:27], s63 offen")
        a("buffer_store_dwordx4 v[100:103], v8, s[24:27], s63 offen offset:1024")
    else:
        a("buffer_store_dwordx4 v[96:99], v9, s[12:15], s63 offen sc1")
        a("buffer_store_dwordx4 v[100:103], v9, s[12:15], s63 offen offset:1024 sc1")
        ln_tail(a)
    wstamp(a, 14)
    a(f"""
    s_add_u32 s60, s60, {3 if kind == 'c' else 2}
    s_cmp_lt_u32 s60, 64
    s_cbranch_scc1 {loop}
    s_branch {done}
    """)


def att_role(a, done, nphase=4):
    LROW = 272
    WLDS = 48 * LROW
    a(f"""
    s_mul_i32 s46, s42, 24576
    s_add_u32 s46, s46, {WS_QKV:#x}
    v_lshlrev_b32 v2, 4, v1
    v_add_u32 v3, s46, v2
    v_add_u32 v5, 4096, v3
    v_lshrrev_b32 v4, 4, v1
    v_and_b32 v9, 15, v1
    s_lshl_b32 s46, s42, 12
    s_add_u32 s46, s46, {WS_MKV:#x}
    v_and_b32 v6, 7, v1
    v_lshlrev_b32 v6, 4, v6
    v_lshl_add_u32 v6, v4, 7, v6
    v_add_u32 v6, s46, v6
    v_and_b32 v7, 31, v1
    v_lshlrev_b32 v7, 4, v7
    v_lshrrev_b32 v10, 5, v1
    v_lshl_add_u32 v7, v10, 10, v7
    v_add_u32 v7, s46, v7
    s_mul_i32 s50, s44, {WLDS}
    v_mul_u32_u24 v8, {LROW}, v9
    v_lshl_add_u32 v8, v4, 4, v8
    v_add_u32 v8, s50, v8
    v_bfe_u32 v11, v1, 2, 3
    v_mul_u32_u24 v11, {LROW}, v11
    v_lshl_add_u32 v11, v10, 6, v11
    v_and_b32 v12, 3, v1
    v_lshl_add_u32 v11, v12, 4, v11
    v_add_u32 v11, s50, v11
    """)
    a(f"""
    v_mul_u32_u24 v14, {LROW}, v4
    v_lshl_add_u32 v14, v9, 4, v14
    v_add_u32 v14, s50, v14
    v_mov_b32 v16, 0
    v_mov_b32 v17, 0
    v_mov_b32 v18, 0
    v_mov_b32 v19, 0
    ds_write_b128 v14, v[16:19] offset:{40*LROW}
    ds_write_b128 v14, v[16:19] offset:{44*LROW}
    v_lshlrev_b32 v12, 2, v4
    v_bfe_u32 v13, v1, 2, 2
    v_add_u32 v12, v12, v13
    v_mul_u32_u24 v12, {LROW}, v12
    v_and_b32 v13, 3, v1
    v_lshl_add_u32 v12, v13, 3, v12
    v_add_u32 v12, s50, v12
    v_lshlrev_b32 v13, 10, v13
    s_lshl_b32 s46, s42, 12
    s_add_u32 s46, s46, {WS_MKV:#x}
    v_add_u32 v13, s46, v13
    v_lshlrev_b32 v10, 9, v4
    v_lshl_add_u32 v10, v9, 4, v10
    s_lshl_b32 s46, s42, 13
    s_add_u32 s46, s46, {WS_OX:#x}
    v_add_u32 v10, s46, v10
    s_lshl_b32 s52, s42, 9
    s_lshl_b32 s47, s43, 7
    s_add_u32 s52, s52, s47
    s_add_u32 s52, s52, {WS_FLG + FA:#x}
    v_min_u32 v42, 2, v1
    v_lshlrev_b32 v42, 9, v42
    s_lshl_b32 s46, s40, 11
    s_and_b32 s47, s42, 3
    s_lshl_b32 s47, s47, 7
    s_add_u32 s46, s46, s47
    s_add_u32 s46, s46, {WS_FLG + FQ:#x}
    v_add_u32 v48, s46, v42
    s_mul_i32 s46, s42, 24576
    s_add_u32 s46, s46, {WS_QKV:#x}
    v_lshlrev_b32 v49, 7, v1
    v_add_u32 v49, s46, v49
    v_cmp_le_u32 s[56:57], 32, v1
    v_lshlrev_b32 v14, 2, v4
    s_mov_b32 s54, 0x3e0293ee
    s_mov_b32 s60, s43
    """)
    for r in range(4):
        a(f"v_add_u32 v15, {r}, v14")
        a(f"v_cmp_gt_u32 s[{84+2*r}:{85+2*r}], v15, v9")
    a(f"""
    v_and_b32 v41, 15, v1
    v_lshlrev_b32 v41, 2, v41
    s_lshl_b32 s46, s40, 6
    s_add_u32 s46, s46, {WS_CTL + 4096:#x}
    s_mov_b32 s47, 0
    """)
    spin(a, 41, "s46", 47, 40, done)
    loop = a.lab("a_loop")
    a(f"""
    {loop}:
    s_mul_i32 s45, s60, {0 if E("NOLD", 0) else 786432}
    s_add_u32 s48, s45, 8192
    s_add_u32 s49, s45, 16384
    s_lshl_b32 s61, s60, 17
    s_lshl_b32 s63, s60, 18
    """)
    spin(a, 48, "0", 60, 40, done)
    Q, Kf = 0, 32
    for qt, vv in enumerate((3, 5)):
        for ks in range(4):
            r = Q + (qt * 4 + ks) * 4
            a(f"buffer_load_dwordx4 a[{r}:{r+3}], v{vv}, s[12:15], s45 offen offset:{1024*ks} sc1")
    for kt, vv in enumerate((3, 5)):
        for ks in range(4):
            r = Kf + (kt * 4 + ks) * 4
            a(f"buffer_load_dwordx4 a[{r}:{r+3}], v{vv}, s[12:15], s48 offen offset:{1024*ks} sc1")
    VS = 16
    WD = E("WD", 0)
    if WD:
        a(f"s_add_u32 s46, s60, {WD}")
        a("v_cmp_ge_u32 vcc, s46, v40")
    for i in range(8):
        a(f"buffer_load_dwordx4 v[{VS+4*i}:{VS+4*i+3}], v{3 if i < 4 else 5}, s[12:15], s49 offen offset:{1024*(i&3)} sc1")
    a("s_waitcnt vmcnt(0)")
    if WD:
        nw = a.lab("a_nw")
        a(f"""
        s_cbranch_vccnz {nw}
        s_add_u32 s46, s45, {WD*786432}
        buffer_load_dword v50, v49, s[12:15], s46 offen sc1
        s_add_u32 s46, s46, 8192
        buffer_load_dword v51, v49, s[12:15], s46 offen sc1
        s_add_u32 s46, s46, 8192
        buffer_load_dword v52, v49, s[12:15], s46 offen sc1
        {nw}:
        """)
    for i in range(8):
        a(f"ds_write_b128 v8, v[{VS+4*i}:{VS+4*i+3}] offset:{(i>>2)*16*LROW + (i&3)*64}")
    S = 56

    def smm(kt, qt, ks):
        c = S + (kt * 2 + qt) * 4
        ka = Kf + (kt * 4 + ks) * 4
        qa = Q + (qt * 4 + ks) * 4
        cc = "0" if ks == 0 else f"v[{c}:{c+3}]"
        a(f"v_mfma_f32_16x16x32_bf16 v[{c}:{c+3}], a[{ka}:{ka+3}], a[{qa}:{qa+3}], {cc}")
    for ks in range(4):
        for kt, qt in ((0, 0), (0, 1), (1, 1)):
            smm(kt, qt, ks)
    VF = 80
    a("s_waitcnt lgkmcnt(0)")
    for dt in range(8):
        for kt in range(2):
            r = VF + (dt * 3 + kt) * 2
            a(f"ds_read_b64_tr_b16 a[{r}:{r+1}], v12 offset:{kt*16*LROW + 32*dt}")
        if dt == 3:
            a("s_waitcnt lgkmcnt(0)")
    a("v_mov_b32 v15, 0xff800000")
    for r in range(4):
        for t in (0, 3):
            c = S + t * 4 + r
            a(f"v_cndmask_b32 v{c}, v{c}, v15, s[{84+2*r}:{85+2*r}]")
    cp = a.lab("a_cp")
    fl = a.lab("a_fl")
    ok = a.lab("a_ok")
    a(f"""
    s_mov_b32 s70, 0
    {cp}:
    buffer_load_dword v40, v13, s[12:15], s61 offen sc1
    s_waitcnt vmcnt(0)
    v_cmp_eq_u32 vcc, -1, v40
    s_add_u32 s70, s70, 1
    s_cbranch_vccz {fl}
    {cp}_s:
    s_sleep {SPA}
    s_cmp_lt_u32 s70, {TMO}
    s_cbranch_scc1 {cp}
    s_branch {done}
    {fl}:
    """)
    wstamp(a, 16, 1)
    for ks in range(4):
        a(f"buffer_load_dwordx4 v[{24+4*ks}:{27+4*ks}], v6, s[12:15], s61 offen offset:{1024*ks} sc1")
    a("buffer_load_dwordx4 v[16:19], v7, s[12:15], s61 offen offset:512 sc1")
    a("buffer_load_dwordx4 v[20:23], v7, s[12:15], s61 offen offset:2560 sc1")
    a("s_waitcnt vmcnt(0)")
    a("v_max_u32 v40, v16, v17")
    for r in range(18, 40, 2):
        a(f"v_max3_u32 v40, v40, v{r}, v{r+1}")
    a(f"""
    v_cmp_eq_u32 vcc, -1, v40
    s_nop 0
    s_cbranch_vccnz {cp}_s
    """)
    for ks in range(4):
        for qt in range(2):
            c = S + (4 + qt) * 4
            qa = Q + (qt * 4 + ks) * 4
            cc = "0" if ks == 0 else f"v[{c}:{c+3}]"
            a(f"v_mfma_f32_16x16x32_bf16 v[{c}:{c+3}], v[{24+4*ks}:{27+4*ks}], a[{qa}:{qa+3}], {cc}")
    a(f"ds_write_b128 v11, v[16:19] offset:{32*LROW}")
    a(f"ds_write_b128 v11, v[20:23] offset:{32*LROW + 128}")
    a("s_waitcnt lgkmcnt(0)")
    for dt in range(8):
        r = VF + (dt * 3 + 2) * 2
        a(f"ds_read_b64_tr_b16 a[{r}:{r+1}], v12 offset:{32*LROW + 32*dt}")
    for qt in range(2):
        for r in range(4):
            c = S + (4 + qt) * 4 + r
            a(f"v_cndmask_b32 v{c}, v{c}, v15, s[56:57]")
    P = 24

    def xred(v, op):
        a(f"""
        v_mov_b32 v{v+1}, v{v}
        s_nop 1
        v_permlane16_swap_b32 v{v}, v{v+1}
        {op} v{v}, v{v}, v{v+1}
        v_mov_b32 v{v+1}, v{v}
        s_nop 1
        v_permlane32_swap_b32 v{v}, v{v+1}
        {op} v{v}, v{v}, v{v+1}
        """)
    for qt in range(2):
        tiles = [(0, 0), (2, 0)] if qt == 0 else [(0, 1), (1, 1), (2, 1)]
        regs = [S + (kt * 2 + q) * 4 + r for kt, q in tiles for r in range(4)]
        a(f"v_max_f32 v40, v{regs[0]}, v{regs[1]}")
        for i in range(2, len(regs), 2):
            a(f"v_max3_f32 v40, v40, v{regs[i]}, v{regs[i+1]}")
        xred(40, "v_max_f32")
        a("v_mul_f32 v40, s54, v40")
        for r in regs:
            a(f"v_fma_f32 v{r}, v{r}, s54, -v40")
        for r in regs:
            a(f"v_exp_f32 v{r}, v{r}")
        a(f"v_add_f32 v40, v{regs[0]}, v{regs[1]}")
        for r in regs[2:]:
            a(f"v_add_f32 v40, v40, v{r}")
        xred(40, "v_add_f32")
        a("v_rcp_f32 v40, v40")
        a("s_nop 0")
        for r in regs:
            a(f"v_mul_f32 v{r}, v{r}, v40")
        for kt, q in tiles:
            c = S + (kt * 2 + q) * 4
            p = P + (q * 3 + kt) * 2
            a(f"v_cvt_pk_bf16_f32 v{p}, v{c}, v{c+1}")
            a(f"v_cvt_pk_bf16_f32 v{p+1}, v{c+2}, v{c+3}")
    O = 64
    a("s_waitcnt lgkmcnt(0)")
    a("s_nop 0")
    for qt in range(2):
        kts = (0, 2) if qt == 0 else (0, 1, 2)
        for kt in kts:
            for dt in range(8):
                c = O + (qt * 8 + dt) * 4
                v = VF + (dt * 3 + kt) * 2
                p = P + (qt * 3 + kt) * 2
                cc = "0" if kt == 0 else f"v[{c}:{c+3}]"
                a(f"v_mfma_f32_16x16x16_bf16 v[{c}:{c+3}], a[{v}:{v+1}], v[{p}:{p+1}], {cc}")
    a("s_add_u32 s46, s63, 4096")
    for qt in range(2):
        for p in range(4):
            c = O + (qt * 8 + 2 * p) * 4
            for i in range(4):
                a(f"v_cvt_pk_bf16_f32 v{c+i}, v{c+2*i}, v{c+2*i+1}")
            if not E("NOO", 0):
                a(f"buffer_store_dwordx4 v[{c}:{c+3}], v10, s[12:15], s{63 if p < 2 else 46} offen offset:{(p&1)*2048 + qt*256} {'' if E('PLO', 0) else 'sc1'}")
    a("s_waitcnt vmcnt(0)")
    set_flag(a, 52, 60, 16, wave=None)
    wstamp(a, 16)
    a(f"""
    s_add_u32 s60, s60, {nphase}
    s_cmp_lt_u32 s60, 64
    s_cbranch_scc1 {loop}
    s_branch {done}
    """)


def gate(a, i, done):
    if i >= E("NST", 6):
        a(f"s_branch {done}")


def workers(a, done):
    lg, p2, lw, lf2, lf1, la, lc, nx = (a.lab(x) for x in ("w_g", "w_p2", "w_wo", "w_f2", "w_f1", "w_att", "w_c", "w_nx"))
    a(f"""
    s_sub_u32 s48, s41, 16
    """)
    tstamp(a, 0)
    a(f"""
    s_cmp_lt_u32 s48, 12
    s_cbranch_scc1 {lg}
    s_and_b32 s42, s48, 3
    s_mov_b32 s43, s40
    """)
    ln1_role(a, done)
    a(f"""
    s_cmp_lt_u32 s48, 14
    s_cbranch_scc1 {la}
    s_and_b32 s55, s48, 1
    s_lshl_b32 s55, s55, 3
    s_add_u32 s55, s55, s40
    """)
    mod2(a)
    a(f"""
    s_and_b32 s42, s40, 3
    s_lshr_b32 s43, s40, 2
    s_cmp_eq_u32 s48, 14
    s_cbranch_scc1 {lc}
    """)
    gate(a, 5, done)
    red_role(a, 'f', done)
    a(f"{lc}:")
    gate(a, 2, done)
    red_role(a, 'c', done)
    a(f"""
    {la}:
    s_lshl_b32 s42, s40, 2
    s_and_b32 s46, s44, 3
    s_add_u32 s42, s42, s46
    s_and_b32 s43, s48, 1
    s_lshl_b32 s43, s43, 1
    s_lshr_b32 s46, s44, 2
    s_add_u32 s43, s43, s46
    """)
    att_role(a, done)
    a(f"{lg}:")
    gemm_role(a, 'qkv', done, p2)
    a(f"{p2}:")
    tstamp(a, 3)
    a(f"""
    s_lshr_b32 s42, s40, 1
    s_and_b32 s43, s40, 1
    s_lshl_b32 s43, s43, 2
    s_and_b32 s46, s48, 3
    s_add_u32 s43, s43, s46
    s_cmp_lt_u32 s48, 4
    s_cbranch_scc1 {lw}
    s_cmp_lt_u32 s48, 8
    s_cbranch_scc1 {lf2}
    s_cmp_lg_u32 s43, 7
    s_cbranch_scc1 {lf1}
    s_mov_b32 s43, 2
    s_branch {lc}
    {lf1}:
    """)
    gate(a, 3, done)
    gemm_role(a, 'f1', done, done)
    a(f"{lf2}:")
    gate(a, 4, done)
    gemm_role(a, 'f2', done, done)
    a(f"{lw}:")
    gate(a, 1, done)
    gemm_role(a, 'wo', done, done)
```

```python
import sys, os
from lib1 import *
import chain7

def main():
    hdr = open(os.path.join(os.path.dirname(os.path.abspath(__file__)), "header.txt")).read()
    a = Asm()
    kernels = [chain7.gen_chain(a)]
    out = hdr
    for n, _, l in kernels:
        out += f"; @launch kernel={n} {l}\n"
    out += '.amdgcn_target "amdgcn-amd-amdhsa--gfx950"\n.text\n'
    out += a.text()
    out += '.section .rodata,"a"\n'
    for _, k, _ in kernels:
        out += k
    dst = sys.argv[1] if len(sys.argv) > 1 else f"/code/{NAME}.s"
    open(dst, "w").write(out)

main()
```

```python
import sys, os
from hop import Asm

def execmask(a, nl):
    if nl >= 64: return
    if nl <= 32:
        a(f"s_mov_b64 exec, {(1 << nl) - 1:#x}")
    else:
        a(f"s_mov_b32 exec_hi, {(1 << (nl - 32)) - 1:#x}")

def gen(name, hops, T=200, W=20, lds=90112, nwg=256, per=32, nw=4, load=None):
    a = Asm()
    a.l += [f".globl {name}", ".p2align 8", f".type {name},@function", f"{name}:"]
    done = a.lab("done")
    a(f"""
    s_cmp_ge_u32 s2, {nwg}
    s_cbranch_scc1 {done}
    s_load_dwordx4 s[4:7], s[0:1], 0
    v_and_b32 v1, 63, v0
    v_lshrrev_b32 v2, 6, v0
    s_nop 0
    v_readfirstlane_b32 s44, v2
    s_waitcnt lgkmcnt(0)
    s_mov_b32 s12, s4
    s_and_b32 s13, s5, 0xffff
    s_mov_b32 s14, 0x10000000
    s_mov_b32 s15, 0x00020000
    s_mov_b32 s16, s6
    s_and_b32 s17, s7, 0xffff
    s_mov_b32 s18, 0x10000
    s_mov_b32 s19, 0x00020000
    s_getreg_b32 s40, hwreg(HW_REG_XCC_ID)
    s_and_b32 s40, s40, 7
    """)
    tk = a.lab("tk")
    loader = a.lab("loader")
    a(f"""
    s_cmp_lg_u32 s44, 0
    s_cbranch_scc1 {tk}
    v_mov_b32 v3, 1
    s_lshl_b32 s45, s40, 8
    v_mov_b32 v4, s45
    s_mov_b64 exec, 1
    buffer_atomic_add v3, v4, s[12:15], 0 offen sc0
    s_waitcnt vmcnt(0)
    v_mov_b32 v4, 0
    ds_write_b32 v4, v3
    s_waitcnt lgkmcnt(0)
    s_mov_b64 exec, -1
    {tk}:
    s_barrier
    v_mov_b32 v4, 0
    ds_read_b32 v3, v4
    s_waitcnt lgkmcnt(0)
    v_readfirstlane_b32 s41, v3
    v_lshlrev_b32 v5, 4, v1
    v_lshlrev_b32 v6, 2, v1
    v_and_b32 v7, 15, v1
    v_lshlrev_b32 v7, 4, v7
    v_lshrrev_b32 v12, 4, v1
    v_lshl_add_u32 v7, v12, 2, v7
    v_lshlrev_b32 v12, 6, v12
    v_and_b32 v13, 7, v1
    v_lshl_add_u32 v12, v13, 3, v12
    s_nop 3
    s_cmp_ge_u32 s41, {per}
    s_cbranch_scc1 {loader if load else done}
    s_mov_b32 s60, 1
    s_mov_b32 s70, 0
    s_mov_b32 s71, 0
    """)
    loop = a.lab("loop")
    a(f"{loop}:")
    st = a.lab("st")
    a(f"""
    s_cmp_lg_u32 s60, {W}
    s_cbranch_scc1 {st}
    s_memrealtime s[80:81]
    s_mov_b32 s70, 0
    s_waitcnt lgkmcnt(0)
    {st}:
    v_mov_b32 v8, s60
    v_mov_b32 v9, s60
    v_mov_b32 v10, s60
    v_mov_b32 v11, s60
    """)
    base = 0x100000
    for hi, h in enumerate(hops):
        ty = h['ty']
        ring = h.get('ring', 0)
        stf = h.get('st', 'sc1' if ty == 'G' else '')
        ldf = h.get('ld', 'sc1')
        sl0 = h.get('sl0', 0); sl = h.get('sl', 0)
        comp = h.get('comp', 0)
        csz = h['csz']
        copies = h.get('copies', 1)
        copysz = per * 8 * csz
        slotsz = copysz * copies
        if ring:
            a(f"s_and_b32 s46, s60, {ring-1}")
        else:
            a("s_mov_b32 s46, s60")
        a(f"s_mul_i32 s46, s46, {slotsz}")
        a(f"s_add_u32 s46, s46, {base:#x}")
        base += slotsz * (ring if ring else T + 2)
        assert base < 0x8000000, base
        nost = a.lab("nost")
        if comp:
            a(f"s_sleep {comp}")
        npw = h.get('npw', 1)
        part = csz // npw
        assert part <= 1024
        a(f"s_cmp_ge_u32 s44, {npw}")
        a(f"s_cbranch_scc1 {nost}")
        if ty == 'G':
            a(f"s_mul_i32 s47, s41, {8*csz}")
            a(f"s_mul_i32 s48, s40, {csz}")
        else:
            a(f"s_mul_i32 s47, s40, {per*csz}")
            a(f"s_mul_i32 s48, s41, {csz}")
        a(f"""
        s_add_u32 s47, s47, s48
        s_mul_i32 s48, s44, {part}
        s_add_u32 s47, s47, s48
        s_add_u32 s47, s47, s46
        """)
        smode = h.get('smode', 'x4')
        if smode == 'x4':
            execmask(a, part // 16)
        for c in range(copies):
            if smode == 'x4':
                a(f"buffer_store_dwordx4 v[8:11], v5, s[12:15], s47 offen {stf}")
            elif smode == 'x2':
                a("s_mov_b32 exec_lo, 0x00ff00ff")
                a("s_mov_b32 exec_hi, 0x00ff00ff")
                a(f"buffer_store_dwordx2 v[8:9], v12, s[12:15], s47 offen {stf}")
            else:
                a(f"buffer_store_dword v8, v{6 if smode == 'lin' else 7}, s[12:15], s47 offen {stf}")
            if c + 1 < copies:
                a(f"s_add_u32 s47, s47, {copysz}")
        a("s_mov_b64 exec, -1")
        a(f"{nost}:")
        skip = a.lab("skip")
        ncw = h.get('ncw', 1 if ty == 'G' else nw)
        tot = 8 * csz if ty == 'G' else per * csz
        q = tot // ncw
        a(f"s_cmp_ge_u32 s44, {ncw}")
        a(f"s_cbranch_scc1 {skip}")
        a(f"s_mul_i32 s47, s{41 if ty == 'G' else 40}, {tot}")
        a(f"""
        s_mul_i32 s48, s44, {q}
        s_add_u32 s47, s47, s48
        s_add_u32 s47, s47, s46
        """)
        n = max(q // 1024, 1)
        if q < 1024: execmask(a, q // 16)
        if sl0:
            a(f"s_sleep {sl0}")
        pl = a.lab("pl"); ok = a.lab("ok")
        a("s_mov_b32 s50, 0")
        def issue(p, c):
            for i in range(n):
                if i % 4 == 0:
                    a(f"s_add_u32 s48, s47, {c*copysz + i*1024}")
                r = 16 + 4 * (p * n + i)
                a(f"buffer_load_dwordx4 v[{r}:{r+3}], v5, s[12:15], s48 offen offset:{1024*(i&3)} {ldf}")
        def check(p):
            regs = list(range(16 + 4 * p * n, 16 + 4 * (p + 1) * n))
            a(f"v_min3_u32 v14, v{regs[0]}, v{regs[1]}, v{regs[2]}")
            rest = regs[3:]
            while len(rest) >= 2:
                a(f"v_min3_u32 v14, v14, v{rest[0]}, v{rest[1]}")
                rest = rest[2:]
            if rest:
                a(f"v_min_u32 v14, v14, v{rest[0]}")
            a(f"""
            v_cmp_ne_u32 vcc, s60, v14
            s_nop 1
            s_cbranch_vccz {ok}
            s_add_u32 s70, s70, 1
            """)
        priv = h.get('priv', 0)
        if priv:
            sh = {8: 0, 4: 1, 2: 2}[copies]
            a(f"s_lshr_b32 s49, s40, {sh}")
            a(f"s_mul_i32 s49, s49, {copysz}")
            a("s_add_u32 s47, s47, s49")
        if copies > 1 and not priv:
            for c in range(copies):
                issue(c, c)
                if sl and c + 1 < copies: a(f"s_sleep {sl}")
            for c in range(copies):
                a(f"s_waitcnt vmcnt({(copies-1-c)*n})")
                check(c)
        a(f"{pl}:")
        issue(0, 0 if priv else copies - 1)
        a("s_waitcnt vmcnt(0)")
        check(0)
        a(f"""
        s_add_u32 s50, s50, 1
        s_cmp_lt_u32 s50, 0x40000
        s_cbranch_scc1 {pl}
        s_mov_b32 s71, 1
        {ok}:
        s_mov_b64 exec, -1
        {skip}:
        """)
        if h.get('bar', 1):
            a("s_barrier")
    fin = a.lab("fin")
    a(f"""
    s_cmp_eq_u32 s71, 1
    s_cbranch_scc1 {fin}
    s_add_u32 s60, s60, 1
    s_cmp_le_u32 s60, {T}
    s_cbranch_scc1 {loop}
    s_memrealtime s[82:83]
    s_waitcnt lgkmcnt(0)
    s_sub_u32 s82, s82, s80
    v_mov_b32 v8, s82
    v_mov_b32 v9, s70
    v_mov_b32 v10, s40
    v_mov_b32 v11, s41
    s_lshl_b32 s45, s2, 7
    s_lshl_b32 s46, s44, 4
    s_add_u32 s45, s45, s46
    v_mov_b32 v4, 0
    s_mov_b64 exec, 1
    buffer_store_dwordx4 v[8:11], v4, s[16:19], s45 offen
    {fin}:
    v_mov_b32 v4, 0x8000
    v_mov_b32 v8, 1
    s_mov_b64 exec, 1
    buffer_store_dword v8, v4, s[12:15], 0 offen sc1
    s_branch {done}
    """)
    if load:
        foot = load['foot']; depth = load.get('depth', 8); gap = load.get('gap', 0); share = load.get('share', 1)
        ll = a.lab("ll")
        a(f"""
        {loader}:
        s_mov_b32 s50, 0
        s_lshr_b32 s51, s2, {share.bit_length()-1}
        s_mul_i32 s51, s51, 0x9000
        s_lshl_b32 s52, s44, 12
        s_add_u32 s51, s51, s52
        s_lshl_b32 s53, s44, 12
        s_add_u32 s53, s53, 1024
        v_mov_b32 v4, 0x8000
        s_mov_b32 s54, 0
        {ll}:
        s_and_b32 s51, s51, {foot-1:#x}
        s_add_u32 s52, s51, 0x8000000
        s_mov_b32 m0, s53
        s_nop 0
        """)
        for i in range(4):
            a(f"buffer_load_dwordx4 v5, s[12:15], s52 offen offset:{1024*i} lds")
        a(f"s_waitcnt vmcnt({depth})")
        if gap: a(f"s_sleep {gap}")
        np_ = a.lab("np")
        a(f"""
        s_add_u32 s51, s51, {nw*4096}
        s_add_u32 s54, s54, 1
        s_and_b32 s55, s54, 63
        s_cmp_lg_u32 s55, 0
        s_cbranch_scc1 {ll}
        buffer_load_dword v8, v4, s[12:15], 0 offen sc1
        s_waitcnt vmcnt(0)
        v_readfirstlane_b32 s55, v8
        s_nop 3
        s_cmp_eq_u32 s55, 1
        s_cbranch_scc1 {np_}
        s_cmp_lt_u32 s54, 0x40000
        s_cbranch_scc1 {ll}
        {np_}:
        v_mov_b32 v8, 0
        v_mov_b32 v9, 0
        v_mov_b32 v10, s54
        v_mov_b32 v11, 99
        s_lshl_b32 s45, s2, 7
        s_lshl_b32 s46, s44, 4
        s_add_u32 s45, s45, s46
        v_mov_b32 v4, 0
        s_mov_b64 exec, 1
        buffer_store_dwordx4 v[8:11], v4, s[16:19], s45 offen
        """)
    a(f"""
    {done}:
    s_endpgm
    """)
    kd = f""".p2align 6
.amdhsa_kernel {name}
  .amdhsa_next_free_vgpr 256
  .amdhsa_next_free_sgpr 102
  .amdhsa_accum_offset 256
  .amdhsa_group_segment_fixed_size 0
  .amdhsa_kernarg_size 16
  .amdhsa_user_sgpr_count 2
  .amdhsa_user_sgpr_kernarg_segment_ptr 1
  .amdhsa_system_sgpr_workgroup_id_x 1
.end_amdhsa_kernel
"""
    return "\n".join(a.l) + "\n", kd, f"; @launch kernel={name} grid=({nwg},1,1) block=({64*nw},1,1) lds={lds}"

def build(tests, path):
    hdr = ""; body = ""; kds = ""
    for i, (nm, kw) in enumerate(tests):
        b, k, l = gen(f"b{i}_kernel", **kw)
        b = b.replace("L_", f"L{i}_")
        hdr += l + "\n"; body += b; kds += k
    out = hdr + '.amdgcn_target "amdgcn-amd-amdhsa--gfx950"\n.text\n' + body + '.section .rodata,"a"\n' + kds
    open(path, "w").write(out)
    open(path + ".names", "w").write("\n".join(f"{nm}\t{kw.get('T',200)-kw.get('W',20)+1}" for nm, kw in tests) + "\n")
```

```python
from hop2 import *
T = []
for sm in ('x4', 'lin', 'scat'):
  for sl0 in (2, 3, 4, 5):
    T.append((f"L per16 {sm} sl0={sl0}", dict(per=16, hops=[dict(ty='L', csz=1024, ring=4, npw=4, sl0=sl0, smode=sm)])))
for sm in ('x4', 'x2', 'lin'):
  for sl0 in (8, 10, 12):
    T.append((f"G per16 {sm} sl0={sl0}", dict(per=16, hops=[dict(ty='G', csz=1024, npw=4, ncw=4, sl0=sl0, smode=sm)])))
build(T, "b6.s")
```

```python
import os
from lib1 import *
import workers as wk

E = lambda k, d: int(os.environ.get(k, str(d)))
STAMP = E("STAMP", 0)
STEP = E("STEP", 20)
SL_G = E("SL_G", 6)
SL_L1 = E("SL_L1", 3)
SL_X = E("SL_X", 5)
SL_V = E("SL_V", 4)
KXPOS = 6
VXPOS = E("VXPOS", 2)
GA = E("GA", 1)
GB = E("GB", -1)
SL_K = E("SL_K", 0)
WARM = E("WARM", 4)
FORCE_SLOW = E("SLOW", 0)
SPLIT = E("SPLIT", 1)
NEAR = E("NEAR", 1)
FS = E("FS", 3)
TMO = 0x80000

L_MEM = 0
L_PX = 16384
L_PM = 20480
L_VWM = 53248
L_VRED = 49152
L_TICK = 26624
L_VWX = 32768
L_XL = 61440
L_KV = 27648
LDS_BYTES = wk.LDS_BYTES

PFD = 4
CTL_READY = WS_CTL + 4096


def gstamp(a, i):
    if STAMP == 2:
        a("s_memrealtime s[80:81]")
        a("s_memtime s[82:83]")
        a("s_waitcnt lgkmcnt(0)")
        a(f"s_mov_b32 s{72+i}, s80")
        a(f"s_mov_b32 s{76+i}, s82")


def hd(a, word, neg=False, val=None):
    if not E("HD", 0):
        return
    a("s_memrealtime s[80:81]")
    a("s_waitcnt lgkmcnt(0)")
    if neg:
        a("s_not_b32 s80, s80")
    a(f"""
    v_mov_b32 v126, {val or "s80"}
    v_mov_b32 v127, 0
    s_mov_b64 exec, 1
    buffer_atomic_umax v126, v127, s[16:19], 0 offen offset:{4*word}
    s_mov_b64 exec, -1
    """)


def stamp(a, i):
    if STAMP == 5:
        a(f"s_memtime s[{72+2*i}:{73+2*i}]")
    if STAMP == 1:
        a("s_memrealtime s[80:81]")
        a("s_waitcnt lgkmcnt(0)")
        a(f"s_mov_b32 s{72+i}, s80")


def tries(a, slot):
    if STAMP == 3:
        if slot == 0:
            a("s_mov_b32 s79, s70")
        else:
            a(f"s_lshl_b32 s83, s70, {8*slot}")
            a("s_or_b32 s79, s79, s83")


def stamp_dump(a):
    if STAMP == 5:
        n1 = a.lab("st5a")
        n2 = a.lab("st5b")
        a(f"""
        s_waitcnt lgkmcnt(0)
        s_cmp_lt_u32 s60, {E("S0", 8)}
        s_cbranch_scc0 {n1}
        """)
        for i in range(8):
            a(f"s_mov_b32 s{90+i}, 0")
        a(f"{n1}:")
        a("s_sub_u32 s89, s72, s88")
        a("s_add_u32 s90, s90, s89")
        for i in range(1, 7):
            a(f"s_sub_u32 s89, s{72+2*i}, s{70+2*i}")
            a(f"s_add_u32 s{90+i}, s{90+i}, s89")
        a(f"""
        s_mov_b32 s88, s84
        s_add_u32 s97, s97, 1
        s_cmp_lg_u32 s60, {E("S1", 56)}
        s_cbranch_scc1 {n2}
        s_lshl_b32 s89, s40, 4
        s_add_u32 s89, s89, s41
        s_lshl_b32 s89, s89, 3
        s_add_u32 s89, s89, s44
        s_lshl_b32 s89, s89, 5
        s_add_u32 s89, s89, {WS_STAMP:#x}
        v_mov_b32 v22, 0
        """)
        for i in range(8):
            a(f"v_mov_b32 v21, s{90+i}")
            a(f"buffer_store_dword v21, v22, s[12:15], s89 offen offset:{4*i}")
        a(f"{n2}:")
        return
    if STAMP not in (1, 2, 3):
        return
    if STAMP == 3:
        a(f"""
        s_memrealtime s[80:81]
        s_lshl_b32 s82, s40, 4
        s_add_u32 s82, s82, s41
        s_lshl_b32 s82, s82, 3
        s_add_u32 s82, s82, s44
        s_lshl_b32 s82, s82, 6
        s_add_u32 s82, s82, s60
        s_lshl_b32 s82, s82, 3
        s_add_u32 s82, s82, {WS_STAMP:#x}
        v_mov_b32 v22, 0
        v_mov_b32 v21, s79
        s_waitcnt lgkmcnt(0)
        v_mov_b32 v20, s80
        s_mov_b64 exec, 1
        buffer_store_dwordx2 v[20:21], v22, s[12:15], s82 offen
        s_mov_b64 exec, -1
        """)
        return
    nst = a.lab("nost")
    a(f"""
    s_cmp_lg_u32 s60, {STEP if STAMP == 1 else 62}
    s_cbranch_scc1 {nst}
    """)
    gstamp(a, 3)
    a(f"""
    s_lshl_b32 s82, s40, 4
    s_add_u32 s82, s82, s41
    s_lshl_b32 s82, s82, 3
    s_add_u32 s82, s82, s44
    s_lshl_b32 s82, s82, 5
    s_add_u32 s82, s82, {WS_STAMP:#x}
    v_mov_b32 v20, 0
    """)
    for i in range(8):
        a(f"v_mov_b32 v21, s{72+i}")
        a(f"buffer_store_dword v21, v20, s[12:15], s82 offen offset:{4*i}")
    a(f"{nst}:")


def check_sentinel(a, regs, tmp):
    regs = list(regs)
    a(f"v_max3_u32 v{tmp}, v{regs[0]}, v{regs[1]}, v{regs[2]}")
    rest = regs[3:]
    while len(rest) >= 2:
        a(f"v_max3_u32 v{tmp}, v{tmp}, v{rest[0]}, v{rest[1]}")
        rest = rest[2:]
    if rest:
        a(f"v_max_u32 v{tmp}, v{tmp}, v{rest[0]}")
    a(f"v_cmp_eq_u32 vcc, -1, v{tmp}")


COLD = []


def flush_cold(a):
    for blk in COLD:
        blk()
    COLD.clear()


def retry(a, lab, done):
    fail = a.lab("rt")
    a(f"s_cbranch_vccnz {fail}")
    COLD.append(lambda: a(f"""
    {fail}:
    s_add_u32 s70, s70, 1
    s_cmp_lt_u32 s70, {TMO}
    s_cbranch_scc1 {lab}
    s_branch {done}
    """))


def roles(a, done):
    tk = a.lab("tk")
    got = a.lab("got")
    sp = a.lab("sp")
    nz = a.lab("nz")
    a(f"""
    s_getreg_b32 s39, hwreg(HW_REG_XCC_ID)
    s_and_b32 s39, s39, 7
    s_cmp_lg_u32 s44, 1
    s_cbranch_scc1 {nz}
    v_mov_b32 v32, 0
    v_mov_b32 v33, 0
    v_mov_b32 v34, 0
    v_mov_b32 v35, 0
    v_lshlrev_b32 v4, 4, v1
    s_lshl_b32 s45, s2, 10
    s_add_u32 s45, s45, {WS_CTL:#x}
    buffer_store_dwordx4 v[32:35], v4, s[12:15], s45 offen sc1
    {nz}:
    """)
    if NEAR:
        nv = a.lab("nv")
        a(f"""
        s_cmp_lt_u32 s44, 4
        s_cbranch_scc1 {nv}
        s_mov_b32 s45, s59
        s_and_b32 s46, s44, 1
        s_lshl_b32 s46, s46, 13
        s_add_u32 s45, s45, s46
        s_add_u32 s45, s45, 0x4000
        s_xor_b32 s46, s45, 0x2000
        s_waitcnt lgkmcnt(0)
        s_memtime s[60:61]
        s_waitcnt lgkmcnt(0)
        s_load_dword s47, s[22:23], s45
        s_waitcnt lgkmcnt(0)
        s_memtime s[62:63]
        s_waitcnt lgkmcnt(0)
        s_load_dword s47, s[22:23], s46
        s_waitcnt lgkmcnt(0)
        s_memtime s[64:65]
        s_waitcnt lgkmcnt(0)
        s_sub_u32 s64, s64, s62
        s_sub_u32 s62, s62, s60
        s_cmp_gt_u32 s62, s64
        s_cselect_b32 s45, 1, 0
        s_xor_b32 s45, s45, s44
        s_lshr_b32 s46, s39, 2
        s_xor_b32 s45, s45, s46
        s_xor_b32 s45, s45, {1 if SPLIT == 1 else 0}
        s_and_b32 s45, s45, 1
        v_mov_b32 v3, s45
        s_lshl_b32 s46, s44, 2
        s_add_u32 s46, s46, {wk.L_BC + 16}
        v_mov_b32 v4, s46
        ds_write_b32 v4, v3
        {nv}:
        """)
    wk.mod1_finish(a)
    a(f"""
    s_cmp_lg_u32 s44, 1
    s_cbranch_scc1 {tk}
    v_mov_b32 v4, {wk.L_BC + 32}
    ds_read_b128 v[32:35], v4
    s_and_b32 s45, s2, 7
    s_lshl_b32 s45, s45, 7
    s_lshr_b32 s46, s2, 3
    s_lshl_b32 s46, s46, 2
    s_add_u32 s45, s45, s46
    s_add_u32 s45, s45, {WS_VOTE:#x}
    v_mov_b32 v4, 0
    s_waitcnt lgkmcnt(0)
    v_add3_u32 v32, v32, v33, v34
    v_add_u32 v32, v32, v35
    s_mov_b64 exec, 1
    buffer_store_dword v32, v4, s[12:15], s45 offen sc1
    s_mov_b64 exec, -1
    v_mov_b32 v3, 1
    {("s_mov_b32 s40, s39", "s_lshr_b32 s40, s2, 5", "s_and_b32 s40, s2, 3")[E("FAKEX", 0)]}
    s_lshl_b32 s45, s40, 5
    v_mov_b32 v4, 0
    s_waitcnt vmcnt(0)
    s_mov_b64 exec, 1
    buffer_atomic_add v3, v4, s[16:19], s45 offen sc0
    s_waitcnt vmcnt(0)
    v_readfirstlane_b32 s41, v3
    s_nop 3
    s_cmp_lt_u32 s41, 32
    s_cbranch_scc1 {got}
    v_mov_b32 v3, 1
    buffer_atomic_add v3, v4, s[16:19], 0 offen offset:16 sc0
    s_waitcnt vmcnt(0)
    v_readfirstlane_b32 s46, v3
    s_mov_b64 exec, -1
    v_and_b32 v4, 7, v1
    v_lshlrev_b32 v4, 5, v4
    s_mov_b32 s70, 0
    {sp}:
    s_sleep 8
    buffer_load_dword v3, v4, s[16:19], 0 offen sc1
    s_waitcnt vmcnt(0)
    s_mov_b32 s48, 0
    """)
    for i in range(8):
        a(f"v_readlane_b32 s{50+i}, v3, {i}")
    a("s_nop 3")
    for i in range(8):
        a(f"s_add_u32 s48, s48, s{50+i}")
    a(f"""
    s_add_u32 s70, s70, 1
    s_cmp_ge_u32 s70, {TMO}
    s_cbranch_scc1 {done}
    s_cmp_lt_u32 s48, 256
    s_cbranch_scc1 {sp}
    """)
    for i in range(8):
        a(f"""
        s_min_u32 s48, s{50+i}, 32
        s_mov_b32 s40, {i}
        s_add_u32 s41, s48, s46
        s_cmp_lt_u32 s41, 32
        s_cbranch_scc1 {got}
        s_sub_u32 s46, s41, 32
        """)
    a(f"""
    s_branch {done}
    {got}:
    s_mov_b64 exec, -1
    s_lshl_b32 s45, s40, 8
    s_or_b32 s45, s45, s41
    v_mov_b32 v3, s45
    v_mov_b32 v4, {wk.L_BC + 8}
    ds_write_b32 v4, v3
    s_waitcnt lgkmcnt(0)
    {tk}:
    s_barrier
    v_mov_b32 v4, {wk.L_BC + 8}
    ds_read_b32 v3, v4
    s_waitcnt lgkmcnt(0)
    v_readfirstlane_b32 s45, v3
    s_nop 3
    s_lshr_b32 s40, s45, 8
    s_and_b32 s41, s45, 0xff
    """)
    if SPLIT:
        a(f"""
        s_lshr_b32 s45, s40, 2
        s_xor_b32 s45, s45, {1 if SPLIT == 1 else 0}
        s_lshl_b32 s45, s45, 4
        s_and_b32 s40, s40, 3
        s_lshl_b32 s40, s40, 1
        s_lshr_b32 s46, s41, 4
        s_add_u32 s40, s40, s46
        s_and_b32 s41, s41, 15
        s_add_u32 s41, s41, s45
        """)


def stage_issue(a, sr, voff, soffs):
    for i, so in enumerate(soffs):
        a(f"s_add_u32 m0, s45, {1024*i}")
        a(f"s_add_u32 s48, s46, {so:#x}")
        a(f"buffer_load_dwordx4 v{voff}, s[{sr}:{sr+3}], s48 offen lds")


def stage_read(a, vtr, frags, second):
    for i, (r, off) in enumerate(frags):
        a(f"ds_read_b64_tr_b16 a[{r}:{r+1}], v{vtr} offset:{off}")
        a(f"ds_read_b64_tr_b16 a[{r+2}:{r+3}], v{vtr} offset:{off+second}")
        if i % 4 == 3:
            a("s_waitcnt lgkmcnt(0)")


def halves_add(a, d):
    a(f"v_permlane32_swap_b32 v{d}, v{d+2}")
    a(f"v_permlane32_swap_b32 v{d+1}, v{d+3}")
    a(f"v_add_f32 v{d}, v{d}, v{d+2}")
    a(f"v_add_f32 v{d+1}, v{d+1}, v{d+3}")


def pack_cols(a, d):
    a(f"""
    s_mov_b32 vcc_lo, 0x55555555
    s_mov_b32 vcc_hi, 0x55555555
    v_cndmask_b32_dpp v{d+2}, v{d+1}, v{d}, vcc quad_perm:[1,0,3,2] row_mask:0xf bank_mask:0xf
    s_not_b64 vcc, vcc
    v_cndmask_b32_dpp v{d+3}, v{d}, v{d+1}, vcc quad_perm:[1,0,3,2] row_mask:0xf bank_mask:0xf
    v_cvt_pk_bf16_f32 v{d+2}, v{d+2}, v{d+3}
    v_min_u32 v{d+2}, -2, v{d+2}
    """)


def kx_prefetch(a, t_off, base=32):
    a(f"s_add_u32 s46, s{t_off}, 4096")
    for kt in range(2):
        for ks in range(4):
            r = base + (kt * 4 + ks) * 4
            a(f"buffer_load_dwordx4 v[{r}:{r+3}], v6, s[12:15], s{t_off if kt == 0 else 46} offen offset:{1024*ks} sc1")


def vx_load(a, only=None):
    if only in (None, 0):
        a(f"s_add_u32 s46, s65, 4096")
    for ks in range(4):
        if only is not None and ks != only:
            continue
        for kt in range(2):
            r = 32 + (kt * 4 + ks) * 4
            a(f"buffer_load_dwordx4 v[{r}:{r+3}], v15, s[12:15], s{65 if kt == 0 else 46} offen offset:{1024*ks} sc1")
    if only in (None, 3):
        a(f"s_add_u32 s65, s65, {32*24576}")


def kx_dma(a):
    a("s_add_u32 s46, s64, 4096")
    for kt in range(2):
        a(f"s_add_u32 m0, s59, {4096*kt}")
        a("s_nop 0")
        for ks in range(4):
            a(f"buffer_load_dwordx4 v28, s[12:15], s{64 if kt == 0 else 46} offen offset:{1024*ks} sc1 lds")
    a(f"s_add_u32 s64, s64, {32*24576}")


def phase_f(a, younger, hooks={}, c0=0, c1=4):
    if younger is not None:
        a(f"s_waitcnt vmcnt({younger})")

    def drain(ct):
        c = 64 + ct * 8
        for i in range(4):
            a(f"v_cvt_pk_bf16_f32 v{c+i}, v{c+2*i}, v{c+2*i+1}")
        a(f"ds_write_b128 v10, v[{c}:{c+3}] offset:{L_VWX + ct*1024}")
    for ct in range(c0, c1):
        if ct in hooks:
            hooks[ct]()
        for ks in range(4):
            for kt in range(2):
                c = 64 + (ct * 2 + kt) * 4
                f = 32 + (kt * 4 + ks) * 4
                w = 64 + ct * 16 + ks * 4
                cc = "0" if ks == 0 else f"v[{c}:{c+3}]"
                a(f"v_mfma_f32_16x16x32_bf16 v[{c}:{c+3}], v[{f}:{f+3}], a[{w}:{w+3}], {cc}")
        if ct > 0:
            drain(ct - 1)
    if c1 == 4:
        a("s_nop 2")
        drain(3)
    if c1 in hooks:
        hooks[c1]()


def kv_wait(a, done):
    lp = a.lab("kv_lp")
    ok = a.lab("kv_ok")
    a(f"""
    s_cmp_gt_u32 s69, s68
    s_cbranch_scc1 {ok}
    s_mov_b32 s70, 0
    {lp}:
    v_and_b32 v22, 1, v1
    v_lshlrev_b32 v22, 9, v22
    buffer_load_dword v23, v22, s[12:15], s57 offen sc1
    s_waitcnt vmcnt(0)
    v_readlane_b32 s69, v23, 0
    v_readlane_b32 s45, v23, 1
    s_add_u32 s70, s70, 1
    s_nop 2
    s_min_u32 s69, s69, s45
    s_cmp_gt_u32 s69, s68
    s_cbranch_scc1 {ok}
    s_sleep 4
    s_cmp_lt_u32 s70, {TMO}
    s_cbranch_scc1 {lp}
    s_branch {done}
    {ok}:
    """)


def mkv_publish(a, st):
    sk = a.lab("s_np")
    a(f"""
    s_cmp_lg_u32 s44, 3
    s_cbranch_scc1 {sk}
    ds_read_b128 v[20:23], v6
    s_lshl_b32 s45, s60, 17
    s_add_u32 s45, s45, s67
    s_waitcnt lgkmcnt(0)
    v_min_u32 v20, -2, v20
    v_min_u32 v21, -2, v21
    v_min_u32 v22, -2, v22
    v_min_u32 v23, -2, v23
    buffer_store_dwordx4 v[20:23], v2, s[12:15], s45 offen sc1
    {sk}:
    """)


def s_loop(a, done, fast):
    st = "" if fast else "sc1"
    loop = a.lab("s_loop")
    a.align(E("PADS", 0))
    a(f"{loop}:")
    for i in range(4):
        a(f"v_mov_b32 v{16+i}, 0")
    a("s_add_u32 s58, s58, 4")
    a("s_mov_b32 s70, 1")
    a("s_waitcnt vmcnt(0)")
    a("s_barrier")
    if STAMP == 1:
        a("s_mov_b32 s78, s72")
    stamp(a, 0)
    for i in range(12):
        a(f"ds_read_b128 v[{64+4*i}:{67+4*i}], v2 offset:{L_MEM + 1024*i}")
    for i in range(16):
        if i < 4:
            a(f"s_waitcnt lgkmcnt(11)")
        else:
            a(f"s_waitcnt lgkmcnt({15-i})")
        a(f"v_smfmac_f32_16x16x64_bf16 v[16:19], v[{64+4*i}:{67+4*i}], a[{8*i}:{8*i+7}], v3")
        if i < 4:
            k = 12 + i
            a(f"ds_read_b128 v[{64+4*k}:{67+4*k}], v2 offset:{L_MEM + 1024*k}")
    a("s_nop 7")
    halves_add(a, 16)
    last = a.lab("s_last")
    xl = a.lab("s_xl")
    w2 = a.lab("s_w2")
    w3 = a.lab("s_w3")
    a(f"""
    v_cvt_pk_bf16_f32 v16, v16, v17
    ds_write_b16 v5, v16
    ds_write_b16_d16_hi v5, v16 offset:16
    s_mov_b64 exec, 1
    ds_add_u32 v29, v30
    s_mov_b64 exec, -1
    {xl}:
    ds_read_b32 v10, v29
    ds_read_b128 v[64:67], v2 offset:{L_XL}
    s_cmp_eq_u32 s60, 63
    s_cbranch_scc1 {last}
    s_cmp_ge_u32 s44, 2
    s_cbranch_scc1 {w2}
    s_waitcnt lgkmcnt(0)
    v_mfma_f32_16x16x32_bf16 v[16:19], v[32:35], v[64:67], 0
    {w2}_b:
    v_cmp_ne_u32 vcc, s58, v10
    s_nop 0
    """)
    stamp(a, 1)
    retry(a, xl, done)
    COLD.append(lambda: a(f"""
    {w2}:
    s_cmp_eq_u32 s44, 3
    s_cbranch_scc1 {w3}
    s_waitcnt lgkmcnt(0)
    v_mfma_f32_16x16x32_bf16 v[16:19], v[64:67], v[64:67], 0
    s_branch {w2}_b
    {w3}:
    s_sleep {E("SL_X3", 3)}
    s_branch {w3}_b
    """))
    a(f"""
    s_mov_b64 exec, s[50:51]
    s_nop 3
    v_min_u32 v16, -2, v16
    v_min_u32 v17, -2, v17
    v_min_u32 v18, -2, v18
    v_min_u32 v19, -2, v19
    buffer_store_dwordx4 v[16:19], v4, s[12:15], s61 offen {st}
    s_mov_b64 exec, -1
    {w3}_b:
    """)
    stamp(a, 2)
    if SL_X:
        a(f"s_sleep {SL_X}")
    xp = a.lab("s_xp")
    xf = a.lab("s_xf")
    xok = a.lab("s_xok")
    a("s_mov_b32 s70, 1")
    a(f"{xp}:")
    for j in range(4):
        a(f"buffer_load_dwordx4 v[{64+4*j}:{67+4*j}], v7, s[12:15], s61 offen offset:{1024*j} sc1")
        a(f"buffer_load_dword v{80+j}, v28, s[12:15], s61 offen offset:{256*j} sc1")
    a("s_waitcnt vmcnt(4)")
    for i in range(4):
        a(f"v_add_f32 v{16+i}, v{64+i}, v{68+i}")
    a("v_add_f32 v20, v80, v81")
    for j in (2, 3):
        a(f"s_waitcnt vmcnt({6-2*j})")
        for i in range(4):
            a(f"v_add_f32 v{16+i}, v{16+i}, v{64+4*j+i}")
        a(f"v_add_f32 v20, v20, v{80+j}")
    a(f"""
    v_cmp_u_f32 s[46:47], v16, v17
    v_cmp_u_f32 s[48:49], v18, v19
    v_cmp_u_f32 vcc, v20, v20
    v_max3_f32 v10, v16, v17, v18
    s_or_b64 s[46:47], s[46:47], s[48:49]
    v_max3_f32 v10, v10, v19, v20
    s_or_b64 vcc, vcc, s[46:47]
    s_cbranch_scc1 {xf}
    {xok}:
    """)

    def xcold():
        a(f"{xf}:")
        check_sentinel(a, range(64, 84), 11)
        a(f"""
        s_add_u32 s70, s70, 1
        s_cbranch_vccz {xok}
        s_cmp_lt_u32 s70, {TMO}
        s_cbranch_scc1 {xp}
        s_branch {done}
        """)
    COLD.append(xcold)
    tries(a, 0)
    if STAMP == 1:
        a("s_mov_b32 s79, s70")
    stamp(a, 3)

    def xred(op, nop=True):
        a(f"""
        {"s_nop 1" if nop else ""}
        {op}_dpp v11, v10, v10 row_ror:8 row_mask:0xf bank_mask:0xf
        {op}_dpp v10, v10, v10 row_ror:8 row_mask:0xf bank_mask:0xf
        s_nop 1
        v_permlane16_swap_b32 v10, v11
        {op} v12, v10, v11
        {op} v10, v10, v11
        s_nop 1
        v_permlane32_swap_b32 v10, v12
        {op} v10, v10, v12
        """)
    xred("v_max_f32", nop=False)
    a("v_mul_f32 v10, s66, v10")
    S = [16, 17, 18, 19, 20]
    for r in S:
        a(f"v_fma_f32 v{r}, v{r}, s66, -v10")
    for r in S:
        a(f"v_exp_f32 v{r}, v{r}")
    a("""
    v_add_f32 v10, v16, v17
    v_add_f32 v11, v18, v19
    v_add_f32 v10, v10, v20
    v_add_f32 v10, v10, v11
    """)
    xred("v_add_f32")
    a("v_rcp_f32 v10, v10")
    a("s_nop 0")
    for r in S:
        a(f"v_mul_f32 v{r}, v{r}, v10")
    a("""
    v_cvt_pk_bf16_f32 v16, v16, v17
    v_cvt_pk_bf16_f32 v17, v18, v19
    v_cvt_pk_bf16_f32 v18, v20, v20
    ds_write_b64 v8, v[16:17]
    ds_write_b16 v9, v18
    """)

    def ahead():
        nk = a.lab("s_nk")
        a(f"""
        s_add_u32 s63, s63, {32*24576}
        s_cmp_ge_u32 s44, 2
        s_cbranch_scc1 {nk}
        buffer_load_dwordx4 v[32:35], v6, s[12:15], s63 offen sc1
        {nk}:
        s_add_u32 s45, s63, {32*24576}
        s_mov_b64 exec, 0xf
        buffer_load_dword v15, v14, s[12:15], s45 offen sc1
        s_mov_b64 exec, -1
        """)
    WA = E("WA", 3)
    if WA == 3:
        ahead()
    a("s_waitcnt lgkmcnt(0)")
    stamp(a, 4)
    a("s_barrier")
    stamp(a, 5)
    if STAMP == 5:
        stamp(a, 6)
    if WA == 1:
        ahead()
    nr = a.lab("s_nr")
    a(f"""
    s_cmp_eq_u32 s44, 3
    s_cbranch_scc1 {nr}
    s_xor_b32 s45, s61, 0x8000
    s_mov_b64 exec, s[50:51]
    buffer_store_dwordx4 v[24:27], v4, s[12:15], s45 offen {st}
    s_mov_b64 exec, -1
    {nr}:
    """)
    mkv_publish(a, st)
    na = a.lab("s_na")
    a(f"""
    s_add_u32 s68, s60, 3
    s_min_u32 s68, s68, 63
    v_readlane_b32 s45, v0, 0
    v_readlane_b32 s46, v0, 1
    s_nop 0
    s_min_u32 s45, s45, s46
    s_max_u32 s69, s69, s45
    """)
    kv_wait(a, done)
    a(f"""
    s_add_u32 s45, s60, {E("AKD", 7)}
    s_min_u32 s45, s45, 63
    s_cmp_gt_u32 s69, s45
    s_cbranch_scc1 {na}
    v_and_b32 v22, 1, v1
    v_lshlrev_b32 v22, 9, v22
    buffer_load_dword v0, v22, s[12:15], s57 offen sc1
    {na}:
    """)
    stamp_dump(a)
    a(f"""
    s_add_u32 s60, s60, 1
    s_add_u32 s61, s61, 0x4000
    s_and_b32 s61, s61, 0xffff
    s_branch {loop}
    {last}:
    s_waitcnt lgkmcnt(0)
    s_barrier
    """)
    mkv_publish(a, st)
    if E("HD", 0):
        sk = a.lab("hd")
        a(f"s_cmp_lg_u32 s44, 0")
        a(f"s_cbranch_scc1 {sk}")
        hd(a, 6)
        a(f"{sk}:")
    a(f"s_branch {wk.REPL}")
    flush_cold(a)


def v_loop(a, done, fast):
    st = "" if fast else "sc1"
    loop = a.lab("v_loop")
    lp = a.lab("v_l1")
    lm = a.lab("v_l1m")
    assert VXPOS != 1
    a("s_mov_b32 s70, 1")
    a("v_mov_b32 v16, 0")
    a("v_mov_b32 v17, 0")
    a(f"s_branch {lm}")
    a.align(E("PADV", 0))
    a(f"{loop}:")
    a("s_mov_b32 s70, 1")

    def l1load():
        for i in range(4):
            a(f"buffer_load_dwordx4 v[{64+4*i}:{67+4*i}], v9, s[12:15], s61 offen offset:{1024*i} sc1")
    l1load()
    yv = 0
    if VXPOS == 1:
        vx_load(a)
        yv = 8
    for i in range(8):
        a(f"v_mov_b32 v{16+i}, 0")
    lok = a.lab("v_l1ok")

    def lchk(i):
        x = 64 + 4 * i
        a(f"ds_write_b128 v10, v[{x}:{x+3}] offset:{L_MEM + 1024*i}")
        a(f"v_max3_u32 v24, v{x}, v{x+1}, v{x+2}")
        a(f"v_max_u32 v24, v24, v{x+3}")
        a(f"v_cmp_eq_u32 s[{48+2*i}:{49+2*i}], -1, v24")

    def lany():
        a("""
        s_or_b64 s[46:47], s[48:49], s[50:51]
        s_or_b64 vcc, s[52:53], s[54:55]
        s_or_b64 vcc, vcc, s[46:47]
        """)

    def lcold():
        a(f"{lp}:")
        for i in range(4):
            sk = a.lab("v_ls")
            a(f"""
            s_mov_b64 exec, s[{48+2*i}:{49+2*i}]
            s_cbranch_execz {sk}
            buffer_load_dwordx4 v[{64+4*i}:{67+4*i}], v9, s[12:15], s61 offen offset:{1024*i} sc1
            {sk}:
            """)
        a(f"""
        s_mov_b64 exec, -1
        s_add_u32 s70, s70, 1
        s_cmp_ge_u32 s70, {TMO}
        s_cbranch_scc1 {done}
        s_waitcnt vmcnt(0)
        """)
        for i in range(4):
            sk = a.lab("v_lc")
            a(f"s_cmp_eq_u64 s[{48+2*i}:{49+2*i}], 0")
            a(f"s_cbranch_scc1 {sk}")
            lchk(i)
            a(f"{sk}:")
        lany()
        a(f"s_cbranch_scc1 {lp}")
        a(f"s_branch {lok}")
    COLD.append(lcold)
    a(f"{lm}:")
    for i in range(4):
        a(f"s_waitcnt vmcnt({3-i})")
        lchk(i)
    lany()
    a(f"s_cbranch_scc1 {lp}")
    a(f"{lok}:")
    tries(a, 0)
    if STAMP == 1:
        a("s_mov_b32 s83, s70")
    a("s_waitcnt lgkmcnt(0)")
    stamp(a, 0)
    a("s_barrier")
    if VXPOS == 4:
        vx_load(a)
    for i in range(4):
        if VXPOS == 5:
            vx_load(a, i)
        for e in range(2):
            a(f"v_smfmac_f32_16x16x64_bf16 v[{16+4*e}:{19+4*e}], v[{64+4*i}:{67+4*i}], a[{32*e+8*i}:{32*e+8*i+7}], v3")
    if VXPOS == 2:
        vx_load(a)
    else:
        a("s_nop 6")
    a("""
    v_permlane32_swap_b32 v16, v18
    v_permlane32_swap_b32 v17, v19
    v_permlane32_swap_b32 v20, v22
    v_permlane32_swap_b32 v21, v23
    v_add_f32 v16, v16, v18
    v_add_f32 v17, v17, v19
    v_add_f32 v18, v20, v22
    v_add_f32 v19, v21, v23
    ds_write_b128 v14, v[16:19]
    s_mov_b64 exec, 1
    ds_add_u32 v29, v30
    s_mov_b64 exec, -1
    s_add_u32 s58, s58, 4
    """)
    last = a.lab("v_last")
    k1 = a.lab("v_k1")
    rl = a.lab("v_rl")
    a(f"""
    s_bitcmp1_b32 s44, 0
    s_cbranch_scc1 {k1}
    s_mov_b32 s70, 0
    {rl}:
    ds_read_b32 v24, v29
    """)
    for u in range(4):
        a(f"ds_read_b64 v[{16+2*u}:{17+2*u}], v13 offset:{1024*u}")
    a("""
    s_waitcnt lgkmcnt(2)
    v_cmp_ne_u32 vcc, s58, v24
    v_add_f32 v16, v16, v18
    v_add_f32 v17, v17, v19
    s_waitcnt lgkmcnt(0)
    """)
    retry(a, rl, done)
    a("""
    v_add_f32 v20, v20, v22
    v_add_f32 v21, v21, v23
    v_add_f32 v16, v16, v20
    v_add_f32 v17, v17, v21
    """)
    pack_cols(a, 16)
    a(f"""
    buffer_store_dword v18, v4, s[12:15], s62 offen {st}
    ds_write_b32 v5, v18
    {k1}:
    s_cmp_eq_u32 s60, 63
    s_cbranch_scc1 {last}
    """)
    stamp(a, 1)
    for h in range(4):
        a(f"ds_read_b128 v[{80+4*h}:{83+4*h}], v27 offset:{L_VWX + 4096*h}")
    for i in range(16):
        a(f"v_mov_b32 v{96+i}, 0")
    if SL_V:
        sv = a.lab("v_sv")
        a(f"""
        s_bitcmp1_b32 s44, 0
        s_cbranch_scc0 {sv}
        s_sleep {E("SL_V1", 3)}
        {sv}:
        s_sleep {SL_V}
        """)
    vp = a.lab("v_vp")
    a("s_mov_b32 s70, 1")
    a(f"{vp}:")
    for s_ in range(2):
        a(f"buffer_load_dwordx4 v[{64+4*s_}:{67+4*s_}], v11, s[12:15], s62 offen offset:{1024*s_} sc1")
    a("s_waitcnt vmcnt(0)")
    check_sentinel(a, range(64, 72), 20)
    retry(a, vp, done)
    tries(a, 1)
    stamp(a, 2)
    for ct in range(4):
        for s_ in range(2):
            w = 64 + ct * 16 + 8 * s_
            a(f"v_smfmac_f32_16x16x64_bf16 v[{96+4*ct}:{99+4*ct}], v[{64+4*s_}:{67+4*s_}], a[{w}:{w+7}], v3")
    a("s_nop 1")
    if VXPOS == 0:
        vx_load(a)
    for ct in range(4):
        d = 96 + 4 * ct
        a(f"v_cvt_pk_bf16_f32 v{d}, v{d}, v{d+1}")
        a(f"v_cvt_pk_bf16_f32 v{d+1}, v{d+2}, v{d+3}")
        a(f"ds_write_b64 v12, v[{d}:{d+1}] offset:{2048*ct}")
    if VXPOS == 3:
        vx_load(a)
    a("s_waitcnt lgkmcnt(0)")
    stamp(a, 3)
    a("s_barrier")
    for h in range(4):
        a(f"ds_read_b128 v[{96+4*h}:{99+4*h}], v2 offset:{L_PX + 1024*h}")
    for m in range(2):
        a(f"ds_read_b128 v[{112+8*m}:{115+8*m}], v31 offset:{512*m}")
        a(f"ds_read_b128 v[{116+8*m}:{119+8*m}], v25 offset:{1024*m}")
    for h in range(4):
        a(f"s_waitcnt lgkmcnt({7-h})")
        cc = "0" if h == 0 else "v[16:19]"
        a(f"v_mfma_f32_16x16x32_bf16 v[16:19], v[{80+4*h}:{83+4*h}], v[{96+4*h}:{99+4*h}], {cc}")
    for m in range(2):
        a(f"s_waitcnt lgkmcnt({2-2*m})")
        a(f"v_mfma_f32_16x16x32_bf16 v[16:19], v[{116+8*m}:{119+8*m}], v[{112+8*m}:{115+8*m}], v[16:19]")
    a("""
    s_mov_b32 exec_lo, 0x00ff00ff
    s_mov_b32 exec_hi, 0x00ff00ff
    s_nop 5
    """)
    a("""
    v_cvt_pk_bf16_f32 v16, v16, v17
    v_cvt_pk_bf16_f32 v17, v18, v19
    v_min_u32 v16, -2, v16
    v_min_u32 v17, -2, v17
    buffer_store_dwordx2 v[16:17], v6, s[12:15], s63 offen sc1
    s_mov_b64 exec, -1
    """)
    stamp(a, 4)
    def gload(b):
        for i in range(8):
            a(f"buffer_load_dword v{b+i}, v7, s[12:15], s63 offen offset:{256*i} sc1")

    def gsum(b, younger):
        for i in range(8):
            a(f"s_waitcnt vmcnt({younger+7-i})")
            if i == 0:
                a(f"v_lshlrev_b32 v20, 16, v{b}")
                a(f"v_and_b32 v21, 0xffff0000, v{b}")
            else:
                a(f"v_lshlrev_b32 v22, 16, v{b+i}")
                a(f"v_and_b32 v23, 0xffff0000, v{b+i}")
                a("v_add_f32 v20, v20, v22")
                a("v_add_f32 v21, v21, v23")
        a("""
        v_cmp_u_f32 vcc, v20, v21
        v_cvt_pk_bf16_f32 v20, v20, v21
        """)
    a("""
    s_add_u32 s61, s61, 0x4000
    s_and_b32 s61, s61, 0xffff
    s_mov_b32 s70, 1
    """)
    gp = a.lab("v_gp")
    gok = a.lab("v_gok")

    def ga_hook():
        if SL_G:
            a(f"s_sleep {SL_G}")
        gload(96)
    hooks = {GA: ga_hook}
    if GB >= 0:
        hooks[GB] = lambda: gload(112)
    if KXPOS == 5:
        kx_dma(a)
    if E("NOF", 0):
        ga_hook()
    else:
        phase_f(a, 9 if KXPOS == 5 else 1, hooks, 0, FS)
    stamp(a, 5)
    gf = a.lab("v_gf")
    a(f"{gp}:")
    gsum(96, 0)
    a(f"s_cbranch_vccnz {gf}")
    a(f"{gok}:")

    def gcold():
        a(f"{gf}:")
        check_sentinel(a, range(96, 104), 24)
        a("v_min_u32 v20, -2, v20")
        a("s_add_u32 s70, s70, 1")
        a(f"s_cbranch_vccz {gok}")
        gload(96)
        a(f"""
        s_cmp_lt_u32 s70, {TMO}
        s_cbranch_scc1 {gp}
        s_branch {done}
        """)
    COLD.append(gcold)
    a(f"buffer_store_dword v20, v8, s[12:15], s61 offen {st}")
    tries(a, 2)
    nr = a.lab("v_nr")
    a(f"""
    s_xor_b32 s45, s61, 0x8000
    buffer_store_dword v26, v8, s[12:15], s45 offen {st}
    s_bitcmp1_b32 s44, 0
    s_cbranch_scc1 {nr}
    s_xor_b32 s45, s62, 0x4000
    buffer_store_dword v26, v4, s[12:15], s45 offen {st}
    {nr}:
    """)
    if STAMP == 1:
        a("s_lshl_b32 s79, s70, 16")
        a("s_or_b32 s79, s79, s83")
    stamp(a, 6)
    stamp_dump(a)
    a(f"""
    s_add_u32 s60, s60, 1
    s_add_u32 s62, s62, 0x2000
    s_and_b32 s62, s62, 0x7fff
    s_and_b32 s45, s60, 0x38
    s_bitcmp1_b64 s[66:67], s45
    s_cselect_b32 s45, 8192, 0
    s_lshl_b32 s63, s60, 18
    s_add_u32 s63, s63, s45
    """)
    if FS < 4:
        phase_f(a, None, {}, FS, 4)
    if SL_L1:
        a(f"s_sleep {SL_L1}")
    a(f"""
    s_branch {loop}
    {last}:
    s_waitcnt lgkmcnt(0)
    s_barrier
    s_branch {wk.REPL}
    """)
    flush_cold(a)


def gen_chain(a):
    name = "k3_chain_kernel"
    kernel_header(a, name)
    done = a.lab("c_done")
    a(f"""
    s_cmp_ge_u32 s2, 256
    s_cbranch_scc1 {done}
    s_load_dwordx4 s[20:23], s[0:1], {KA['dbg']}
    v_and_b32 v1, 63, v0
    v_lshrrev_b32 v2, 6, v0
    s_nop 0
    v_readfirstlane_b32 s44, v2
    s_waitcnt lgkmcnt(0)
    """)
    srd(a, 12, 22, 23, WS_SIZE)
    srd(a, 16, 20, 21, 256)
    if E("CTOUCH", 0):
        here = a.lab("c_here")
        ce = a.lab("c_ct")
        a(f"""
        s_getpc_b64 s[24:25]
        {here}:
        v_lshlrev_b32 v3, 7, v0
        v_mov_b32 v5, s25
        v_add_co_u32 v4, vcc, s24, v3
        s_nop 1
        v_addc_co_u32 v5, vcc, 0, v5, vcc
        v_cmp_gt_u32 vcc, {done} - {here}, v3
        s_and_saveexec_b64 s[26:27], vcc
        s_cbranch_execz {ce}
        global_load_dword v109, v[4:5], off
        {ce}:
        s_mov_b64 exec, s[26:27]
        """)
    gstamp(a, 0)
    if E("HD", 0):
        a("s_memrealtime s[92:93]")
        a("s_waitcnt lgkmcnt(0)")
        a("s_not_b32 s93, s92")
    if STAMP == 3:
        a("s_memrealtime s[90:91]")
    if NEAR:
        a(f"""
        s_and_b32 s59, s2, 7
        s_lshl_b32 s59, s59, 21
        s_lshr_b32 s46, s2, 3
        s_lshl_b32 s46, s46, 16
        s_add_u32 s59, s59, s46
        s_lshl_b32 s46, s44, 8
        s_add_u32 s59, s59, s46
        s_add_u32 s59, s59, {WS_G + 0x4000:#x}
        s_load_dword s47, s[22:23], s59
        """)
    wk.mod1_issue(a)
    roles(a, done)
    if STAMP == 3:
        a(f"""
        s_lshl_b32 s82, s40, 5
        s_add_u32 s82, s82, s41
        s_lshl_b32 s82, s82, 2
        s_add_u32 s82, s82, {WS_STAMP + 0x80000:#x}
        v_mov_b32 v3, s90
        v_mov_b32 v4, 0
        buffer_store_dword v3, v4, s[12:15], s82 offen
        """)
    chain = a.lab("c_chain")
    a(f"""
    s_cmp_lt_u32 s41, 16
    s_cbranch_scc1 {chain}
    """)
    wk.workers(a, done)
    a(f"{chain}:")
    for r in range(4, 16):
        a(f"v_mov_b32 v{r}, 0")
    wk.tstamp(a, 0)
    assert WS_QKRING == WS_MRING + 0x80000
    a(f"""
    v_mov_b32 v32, -1
    v_mov_b32 v33, -1
    v_mov_b32 v34, -1
    v_mov_b32 v35, -1
    v_lshlrev_b32 v2, 4, v1
    s_lshl_b32 s45, s40, 16
    s_lshl_b32 s46, s41, 12
    s_add_u32 s45, s45, s46
    s_and_b32 s46, s44, 3
    s_lshl_b32 s46, s46, 10
    s_add_u32 s45, s45, s46
    s_lshr_b32 s46, s44, 2
    s_lshl_b32 s46, s46, 19
    s_add_u32 s45, s45, s46
    s_add_u32 s45, s45, {WS_MRING:#x}
    buffer_store_dwordx4 v[32:35], v2, s[12:15], s45 offen sc1
    s_lshl_b32 s45, s40, 15
    s_lshl_b32 s46, s41, 11
    s_add_u32 s45, s45, s46
    s_lshl_b32 s46, s44, 8
    s_add_u32 s45, s45, s46
    s_add_u32 s45, s45, {WS_VRING:#x}
    s_mov_b64 exec, 0xffff
    buffer_store_dwordx4 v[32:35], v2, s[12:15], s45 offen sc1
    s_lshl_b32 s45, s40, 16
    s_lshl_b32 s46, s41, 8
    s_add_u32 s45, s45, s46
    s_and_b32 s46, s44, 3
    s_lshl_b32 s46, s46, 14
    s_add_u32 s45, s45, s46
    s_add_u32 s45, s45, {WS_SMRING:#x}
    buffer_store_dwordx4 v[32:35], v2, s[12:15], s45 offen sc1
    s_mov_b64 exec, -1
    """)
    if E("TOUCH", 0) == 2:
        a(f"""
        s_load_dwordx4 s[4:7], s[0:1], {KA['Wq']}
        s_load_dwordx2 s[8:9], s[0:1], {KA['Wv']}
        v_lshrrev_b32 v2, 3, v0
        v_lshlrev_b32 v2, 13, v2
        v_and_b32 v3, 7, v0
        v_lshl_add_u32 v2, v3, 7, v2
        s_lshl_b32 s45, s41, 19
        s_lshl_b32 s46, s40, 10
        s_add_u32 s45, s45, s46
        s_waitcnt lgkmcnt(0)
        """)
        for i, (lo, hi) in enumerate(((6, 7), (8, 9), (4, 5))):
            srd(a, 24, lo, hi, 1024 * 8192)
            a(f"buffer_load_dword v{109+i}, v2, s[24:27], s45 offen")
    if E("TOUCH", 0) == 1:
        a(f"""
        s_lshr_b32 s46, s44, 2
        s_lshl_b32 s46, s46, 3
        s_add_u32 s46, s46, {KA['Wk']}
        s_load_dwordx2 s[4:5], s[0:1], s46
        v_bfe_u32 v2, v0, 3, 5
        v_lshlrev_b32 v2, 13, v2
        v_and_b32 v3, 7, v0
        v_lshl_add_u32 v2, v3, 7, v2
        s_and_b32 s45, s41, 7
        s_lshl_b32 s45, s45, 18
        s_lshr_b32 s46, s41, 3
        s_lshl_b32 s46, s46, 22
        s_add_u32 s45, s45, s46
        s_add_u32 s45, s45, {256*8192}
        s_lshl_b32 s46, s40, 10
        s_add_u32 s45, s45, s46
        s_waitcnt lgkmcnt(0)
        """)
        srd(a, 24, 4, 5, 1024 * 8192)
        a(f"buffer_load_dword v110, v2, s[24:27], s45 offen")
    a(f"""
    v_lshlrev_b32 v2, 4, v1
    v_and_b32 v3, 8, v1
    v_cmp_eq_u32 vcc, 0, v3
    v_mov_b32 v3, 0xeeeeeeee
    v_mov_b32 v4, 0x44444444
    v_cndmask_b32 v3, v3, v4, vcc
    v_and_b32 v100, 15, v1
    v_lshrrev_b32 v101, 4, v1
    v_and_b32 v102, 1, v101
    v_lshrrev_b32 v103, 1, v101
    v_lshlrev_b32 v104, 2, v102
    v_lshl_add_u32 v104, v103, 1, v104
    v_and_b32 v105, 1, v1
    v_add_u32 v104, v104, v105
    v_and_b32 v106, 7, v1
    v_bfe_u32 v107, v1, 3, 1
    s_lshr_b32 s42, s41, 2
    s_and_b32 s43, s41, 3
    s_lshl_b32 s49, s40, 2
    s_add_u32 s49, s49, s42
    s_lshl_b32 s45, s44, 14
    """)
    a("""
    v_lshlrev_b32 v22, 3, v101
    v_bfe_u32 v23, v1, 2, 2
    v_add_u32 v22, v22, v23
    v_and_b32 v23, 3, v1
    v_lshlrev_b32 v24, 3, v23
    v_lshl_add_u32 v20, v22, 6, v24
    v_lshl_add_u32 v21, v22, 7, v24
    v_lshrrev_b32 v22, 2, v1
    v_lshlrev_b32 v23, 4, v23
    v_lshl_add_u32 v24, v22, 13, v23
    v_lshrrev_b32 v22, 3, v1
    v_lshlrev_b32 v23, 4, v106
    v_lshl_add_u32 v25, v22, 11, v23
    """)
    vinit = a.lab("v_init")
    join = a.lab("c_join")
    a(f"""
    s_cmp_ge_u32 s44, 4
    s_cbranch_scc1 {vinit}
    """)
    a(f"""
    s_lshr_b32 s50, s44, 1
    s_and_b32 s51, s44, 1
    s_load_dwordx4 s[4:7], s[0:1], {KA['Wq']}
    s_lshl_b32 s46, s49, 8
    s_lshl_b32 s48, s43, 6
    s_add_u32 s46, s46, s48
    s_lshl_b32 s48, s44, 21
    s_add_u32 s46, s46, s48
    s_lshl_b32 s52, s51, 5
    s_xor_b32 s53, s50, 1
    s_lshl_b32 s53, s53, 16
    s_add_u32 s52, s52, s53
    v_add_u32 v20, s52, v20
    s_waitcnt lgkmcnt(0)
    """)
    srd(a, 24, 6, 7, 1024 * 8192)
    srd(a, 28, 4, 5, 1024 * 8192)
    a(f"""
    s_lshl_b32 s52, s51, 9
    s_lshl_b32 s53, s50, 7
    s_add_u32 s52, s52, s53
    s_add_u32 s52, s52, {L_XL}
    v_lshlrev_b32 v5, 1, v106
    v_lshl_add_u32 v5, v107, 8, v5
    v_lshl_add_u32 v5, v102, 6, v5
    v_lshl_add_u32 v5, v103, 5, v5
    v_add_u32 v5, s52, v5
    s_lshl_b32 s67, s49, 12
    s_lshl_b32 s53, s43, 10
    s_add_u32 s67, s67, s53
    s_add_u32 s67, s67, {WS_MKV:#x}
    s_lshl_b32 s52, s40, 16
    s_lshl_b32 s53, s44, 12
    s_add_u32 s53, s52, s53
    s_add_u32 s53, s53, {WS_QKRING:#x}
    v_add_u32 v7, s53, v2
    s_lshl_b32 s53, s44, 10
    s_add_u32 s53, s52, s53
    s_add_u32 s53, s53, {WS_SMRING:#x}
    v_lshlrev_b32 v28, 7, v103
    v_lshl_add_u32 v28, v106, 4, v28
    v_lshl_add_u32 v28, v102, 3, v28
    v_lshl_add_u32 v28, v107, 2, v28
    v_add_u32 v28, s53, v28
    s_lshl_b32 s52, s44, 10
    s_add_u32 s52, s52, {L_PX}
    v_lshlrev_b32 v8, 8, v101
    v_lshl_add_u32 v8, v106, 4, v8
    v_lshl_add_u32 v8, v107, 3, v8
    v_add_u32 v8, s52, v8
    s_lshl_b32 s52, s44, 8
    s_add_u32 s52, s52, {L_PM}
    v_lshlrev_b32 v9, 4, v106
    v_lshl_add_u32 v9, v101, 2, v9
    v_lshl_add_u32 v9, v107, 1, v9
    v_add_u32 v9, s52, v9
    s_mov_b32 s66, 0x3e0293ee
    """)
    if E("TWAIT", 0):
        a("s_waitcnt vmcnt(0)")
    wk.tstamp(a, 4)
    for r in range(2):
        stage_issue(a, 24 + 4 * r, 24, [16 * i * 8192 for i in range(16)])
        a("s_add_u32 s45, s45, 0x10000")
    a("s_waitcnt vmcnt(0)")
    wk.tstamp(a, 5)
    a("s_barrier")
    wk.tstamp(a, 6)
    wk.zwait(a, done, 16)
    nr = a.lab("c_nr")
    a(f"""
    s_cmp_lg_u32 s44, 0
    s_cbranch_scc1 {nr}
    s_or_b32 s47, s39, 0x100
    v_mov_b32 v16, s47
    s_lshl_b32 s52, s40, 6
    s_lshl_b32 s53, s41, 2
    s_add_u32 s52, s52, s53
    s_add_u32 s52, s52, {CTL_READY:#x}
    v_mov_b32 v17, 0
    s_mov_b64 exec, 1
    buffer_store_dword v16, v17, s[12:15], s52 offen sc1
    s_mov_b64 exec, -1
    {nr}:
    """)
    stage_read(a, 20, [(4 * f, 2048 * f) for f in range(32)], 256)
    a(f"""
    s_mov_b32 s63, 0
    """)
    wk.tstamp(a, 1)
    a("s_barrier")
    a(f"""
    s_lshl_b32 s52, s40, 2
    s_add_u32 s52, s52, s44
    s_mul_i32 s52, s52, 24576
    s_lshl_b32 s53, s41, 9
    s_add_u32 s52, s52, s53
    s_add_u32 s52, s52, {WS_QKV + 16384:#x}
    v_and_b32 v14, 3, v1
    v_lshlrev_b32 v14, 7, v14
    v_add_u32 v14, s52, v14
    s_lshl_b32 s52, s40, 16
    s_lshl_b32 s53, s41, 10
    s_add_u32 s53, s53, s52
    s_lshl_b32 s54, s44, 7
    s_add_u32 s53, s53, s54
    s_add_u32 s53, s53, {WS_QKRING:#x}
    v_lshlrev_b32 v4, 4, v106
    v_lshl_add_u32 v10, v102, 7, v4
    v_lshl_add_u32 v4, v101, 8, v4
    v_add_u32 v4, s53, v4
    s_lshl_b32 s53, s41, 8
    s_add_u32 s53, s53, s52
    s_add_u32 s53, s53, {WS_SMRING:#x}
    v_add_u32 v10, s53, v10
    s_cmp_ge_u32 s44, 2
    s_cselect_b64 vcc, -1, 0
    v_cndmask_b32 v4, v4, v10, vcc
    s_mul_i32 s52, s49, 24576
    s_lshl_b32 s53, s44, 12
    s_add_u32 s52, s52, s53
    s_lshl_b32 s53, s43, 10
    s_add_u32 s52, s52, s53
    s_add_u32 s52, s52, {WS_QKV + 8192:#x}
    v_add_u32 v6, s52, v2
    v_lshrrev_b32 v10, 3, v1
    v_lshlrev_b32 v10, 8, v10
    v_lshl_add_u32 v10, v106, 4, v10
    v_add_u32 v10, {L_XL + 128}, v10
    v_add_u32 v11, {L_KV}, v2
    v_cmp_gt_u32 s[52:53], 32, v1
    s_nop 1
    v_cndmask_b32 v10, v11, v10, s[52:53]
    v_cndmask_b32 v6, v6, v10, vcc
    v_mov_b32 v24, -1
    v_mov_b32 v25, -1
    v_mov_b32 v26, -1
    v_mov_b32 v27, -1
    v_mov_b32 v29, {L_TICK + 20}
    v_mov_b32 v30, 0
    ds_write_b32 v29, v30
    v_mov_b32 v30, 1
    s_lshl_b32 s58, s40, 11
    s_lshl_b32 s53, s44, 7
    s_add_u32 s58, s58, s53
    s_add_u32 s58, s58, {WS_FLG + FQ + 512:#x}
    s_mov_b32 s69, 0
    v_mov_b32 v0, 0
    s_cmp_ge_u32 s44, 2
    s_cselect_b32 s50, 0, 0x00ff00ff
    s_mov_b32 s51, 0x00ff00ff
    s_setprio 1
    s_branch {join}
    """)
    a(f"""
    {vinit}:
    s_sub_u32 s54, s44, 4
    s_lshr_b32 s51, s54, 1
    s_and_b32 s50, s54, 1
    s_load_dwordx4 s[4:7], s[0:1], {KA['Wv']}
    s_load_dwordx2 s[8:9], s[0:1], {KA['mem0']}
    s_waitcnt lgkmcnt(0)
    """)
    srd(a, 24, 4, 5, 1024 * 8192)
    srd(a, 28, 6, 7, 4096 * 2048)
    srd(a, 32, 8, 9, 16384)
    a(f"""
    s_lshl_b32 s45, s54, 12
    s_add_u32 s45, s45, 0x20000
    v_add_u32 v20, s45, v20
    v_add_u32 v21, s45, v21
    v_add_u32 v22, s45, v2
    s_lshl_b32 s46, s49, 8
    s_lshl_b32 s48, s43, 6
    s_add_u32 s46, s46, s48
    s_lshl_b32 s48, s54, 21
    s_add_u32 s46, s46, s48
    """)
    wo_reg = lambda i: 64 + 16 * (i & 3) + 4 * (i >> 2)
    wv_reg = lambda i: 32 * (i & 1) + 4 * (i >> 1)
    for i in range(16):
        a(f"s_add_u32 s48, s46, {16*i*8192:#x}")
        a(f"buffer_load_dwordx4 a[{wv_reg(i)}:{wv_reg(i)+3}], v24, s[24:27], s48 offen")
    a(f"""
    s_lshl_b32 s52, s40, 15
    s_lshl_b32 s53, s42, 11
    s_add_u32 s52, s52, s53
    s_lshl_b32 s53, s43, 9
    s_add_u32 s52, s52, s53
    s_lshl_b32 s53, s51, 8
    s_add_u32 s52, s52, s53
    s_add_u32 s52, s52, {WS_VRING:#x}
    v_bfe_u32 v4, v1, 1, 1
    v_lshlrev_b32 v4, 7, v4
    v_lshl_add_u32 v4, v104, 4, v4
    v_and_b32 v5, 12, v100
    v_add_u32 v4, v4, v5
    v_add_u32 v4, s52, v4
    v_mov_b32 v26, -1
    """)
    a(f"""
    s_lshl_b32 s52, s51, 5
    s_add_u32 s52, s52, {L_KV + 512}
    v_and_b32 v5, 14, v100
    v_lshlrev_b32 v5, 1, v5
    v_lshl_add_u32 v5, v104, 6, v5
    v_add_u32 v5, s52, v5
    """)
    a(f"""
    s_lshl_b32 s52, s41, 14
    s_lshl_b32 s53, s54, 11
    s_add_u32 s52, s52, s53
    s_add_u32 s52, s52, {WS_G:#x}
    v_lshlrev_b32 v6, {3 if E("GL", 1) else 6}, v101
    v_lshl_add_u32 v6, v106, {5 if E("GL", 1) else 3}, v6
    v_and_b32 v7, 3, v1
    v_lshlrev_b32 v7, {3 if E("GL", 1) else 6}, v7
    v_bfe_u32 v30, v1, 2, 3
    v_lshl_add_u32 v7, v30, {5 if E("GL", 1) else 3}, v7
    v_lshl_add_u32 v7, v103, 2, v7
    v_add_u32 v7, s52, v7
    s_lshl_b32 s53, s40, 8
    s_add_u32 s52, s52, s53
    v_add_u32 v6, s52, v6
    v_lshlrev_b32 v30, 4, v100
    v_lshl_add_u32 v30, v101, 18, v30
    v_add_u32 v30, s52, v30
    v_mov_b32 v32, -1
    v_mov_b32 v33, -1
    v_mov_b32 v34, -1
    v_mov_b32 v35, -1
    buffer_store_dwordx4 v[32:35], v30, s[12:15], 0 offen sc1
    s_mov_b32 s53, 8192
    buffer_store_dwordx4 v[32:35], v30, s[12:15], s53 offen sc1
    """)
    a(f"""
    s_lshl_b32 s55, s40, 16
    s_add_u32 s55, s55, {WS_MRING:#x}
    s_lshl_b32 s52, s41, 10
    s_lshl_b32 s53, s54, 8
    s_add_u32 s52, s52, s53
    s_add_u32 s52, s52, s55
    v_lshlrev_b32 v8, 2, v1
    v_add_u32 v8, s52, v8
    s_lshl_b32 s53, s54, 12
    v_add_u32 v10, s53, v2
    v_add_u32 v9, s55, v10
    s_lshl_b32 s52, s40, 15
    s_lshl_b32 s53, s54, 11
    s_add_u32 s52, s52, s53
    s_add_u32 s52, s52, {WS_VRING:#x}
    v_add_u32 v11, s52, v2
    s_lshl_b32 s52, s54, 9
    s_add_u32 s52, s52, {L_VWM}
    v_lshlrev_b32 v12, 4, v100
    v_lshl_add_u32 v12, v102, 3, v12
    v_lshl_add_u32 v12, v103, 8, v12
    v_add_u32 v12, s52, v12
    s_lshl_b32 s52, s51, 3
    s_add_u32 s52, s52, {L_VRED}
    v_add_u32 v13, s52, v2
    s_lshl_b32 s52, s54, 10
    s_add_u32 s52, s52, {L_VRED}
    v_add_u32 v14, s52, v2
    s_lshl_b32 s52, s40, 2
    s_add_u32 s52, s52, s54
    s_mul_i32 s52, s52, 24576
    s_add_u32 s52, s52, {WS_QKV + 16384:#x}
    v_add_u32 v15, s52, v2
    s_lshl_b32 s52, s54, 10
    v_add_u32 v27, s52, v2
    """)
    a(f"""
    v_lshlrev_b32 v30, 11, v106
    v_lshl_add_u32 v30, v101, 5, v30
    v_lshl_add_u32 v30, v107, 2, v30
    s_lshl_b32 s52, s54, 9
    """)
    for i in range(4):
        for p in range(4):
            a(f"buffer_load_dword v{112+4*i+p}, v30, s[32:35], s52 offen offset:{128*i + 8*p}")
    a(f"""
    s_lshl_b32 s46, s40, 2
    s_add_u32 s46, s46, s54
    s_lshl_b32 s46, s46, 18
    s_lshl_b32 s48, s41, 7
    s_add_u32 s46, s46, s48
    """)
    for i in range(16):
        a(f"s_add_u32 s48, s46, {8*i*2048:#x}")
        a(f"buffer_load_dwordx4 a[{wo_reg(i)}:{wo_reg(i)+3}], v25, s[28:31], s48 offen")
    a("s_waitcnt vmcnt(16)")
    for grp in range(8):
        if grp == 4:
            a("s_barrier")
            a("s_waitcnt vmcnt(0)")
        g4 = grp & 3
        reg = wv_reg if grp < 4 else wo_reg
        for j in range(4):
            r = reg(4 * g4 + j)
            a(f"ds_write_b128 v22, a[{r}:{r+3}] offset:{1024*j}")
        a("s_waitcnt lgkmcnt(0)")
        if grp >= 4:
            stage_read(a, 21, [(64 + 16 * ct + 4 * g4, 32 * ct) for ct in range(4)], 512)
        else:
            stage_read(a, 20, [(32 * e + 4 * (2 * g4 + h), 2048 * h + 32 * e) for h in range(2) for e in range(2)], 256)
    a("""
    s_mov_b32 s65, 0
    s_waitcnt vmcnt(0)
    s_barrier
    """)
    a(f"""
    s_lshl_b32 s57, s40, 11
    s_lshl_b32 s53, s54, 7
    s_add_u32 s57, s57, s53
    s_add_u32 s57, s57, {WS_FLG + FQ + 512:#x}
    s_mov_b32 s69, 0
    s_mov_b32 s68, 0
    """)
    kv_wait(a, done)
    a(f"""
    v_subrev_u32 v28, 8192, v15
    v_lshlrev_b32 v31, 4, v100
    v_lshl_add_u32 v31, v103, 8, v31
    v_add_u32 v31, {L_PM}, v31
    s_lshl_b32 s52, s54, 11
    s_add_u32 s52, s52, {L_VWM}
    v_add_u32 v25, s52, v2
    v_mov_b32 v29, {L_TICK + 16}
    v_mov_b32 v30, 0
    ds_write_b32 v29, v30
    v_mov_b32 v30, 1
    s_mov_b32 s58, 0
    s_mov_b32 s64, 0
    """)
    if KXPOS == 5:
        kx_dma(a)
    vx_load(a)
    a(f"""
    s_mov_b32 s45, {WS_VOTE:#x}
    buffer_load_dwordx4 v[96:99], v2, s[12:15], s45 offen sc1
    """)
    phase_f(a, 0)
    a(f"""
    v_add3_u32 v96, v96, v97, v98
    v_add_u32 v96, v96, v99
    s_nop 1
    v_add_u32_dpp v96, v96, v96 quad_perm:[1,0,3,2] row_mask:0xf bank_mask:0xf
    s_nop 1
    v_add_u32_dpp v96, v96, v96 quad_perm:[2,3,0,1] row_mask:0xf bank_mask:0xf
    s_nop 1
    v_add_u32_dpp v96, v96, v96 row_half_mirror row_mask:0xf bank_mask:0xf
    v_cmp_lt_u32 s[66:67], 64, v96
    s_nop 3
    {"" if NEAR == 1 else "s_mov_b64 s[66:67], 0" if NEAR == 0 else "s_not_b64 s[66:67], s[66:67]"}
    s_bitcmp1_b32 s66, 0
    s_cselect_b32 s63, 8192, 0
    """)
    a("s_mov_b32 s68, 1")
    kv_wait(a, done)
    a("s_waitcnt lgkmcnt(0)")
    for i in range(16):
        a(f"v_min_u32 v{64+i}, -2, v{112+i}")
    for i in range(8):
        a(f"v_mov_b32 v{16+i}, 0")
    a(f"{join}:")
    gstamp(a, 1)
    nh = a.lab("c_nh")
    rp = a.lab("c_rp")
    a(f"""
    s_mov_b32 s60, 0
    s_mov_b32 s61, 0
    s_mov_b32 s62, 0
    s_cmp_lg_u32 s44, 0
    s_cbranch_scc1 {nh}
    v_lshlrev_b32 v17, 3, v1
    s_lshl_b32 s46, s40, 3
    v_mov_b32 v21, s46
    s_mov_b32 s45, {CTL_READY:#x}
    s_mov_b32 s70, 0
    {rp}:
    buffer_load_dwordx2 v[18:19], v17, s[12:15], s45 offen sc1
    buffer_load_dwordx2 v[22:23], v21, s[12:15], s45 offen offset:512 sc1
    s_waitcnt vmcnt(0)
    v_min3_u32 v20, v18, v19, v22
    v_min_u32 v20, v20, v23
    v_cmp_eq_u32 vcc, 0, v20
    """)
    retry(a, rp, done)
    a(f"""
    v_cmp_eq_u32 s[52:53], v18, v16
    v_cmp_eq_u32 vcc, v19, v16
    v_cmp_eq_u32 s[54:55], v22, v16
    v_cmp_eq_u32 s[56:57], v23, v16
    s_lshl_b32 s46, s40, 3
    s_nop 3
    s_and_b64 s[52:53], s[52:53], vcc
    {"" if SPLIT else "s_and_b64 s[52:53], s[52:53], s[54:55]"}
    {"" if SPLIT else "s_and_b64 s[52:53], s[52:53], s[56:57]"}
    s_lshr_b64 s[52:53], s[52:53], s46
    s_and_b32 s52, s52, 0xff
    s_cmp_eq_u32 s52, 0xff
    s_cselect_b32 s52, {0 if FORCE_SLOW else 1}, 0
    v_mov_b32 v16, s52
    v_mov_b32 v17, {L_TICK}
    ds_write_b32 v17, v16
    {nh}:
    s_waitcnt lgkmcnt(0)
    s_barrier
    v_mov_b32 v17, {L_TICK}
    ds_read_b32 v16, v17
    s_waitcnt lgkmcnt(0)
    v_readfirstlane_b32 s52, v16
    """)
    gstamp(a, 2)
    if E("HD", 0):
        sk = a.lab("hd")
        a(f"s_cmp_lg_u32 s44, 4")
        a(f"s_cbranch_scc1 {sk}")
        hd(a, 5)
        hd(a, 1, val="s66")
        hd(a, 2, val="s67")
        a(f"{sk}:")
    lsf, lss, lvf, lvs = (a.lab(x) for x in ("sf", "ss", "vf", "vs"))
    a(f"""
    s_nop 3
    s_cmp_ge_u32 s44, 4
    s_cbranch_scc1 {lvf}
    s_mov_b32 s57, s58
    s_mov_b32 s58, 0
    s_cmp_ge_u32 s44, 2
    s_cbranch_scc1 {lsf}
    buffer_load_dwordx4 v[32:35], v6, s[12:15], 0 offen sc1
    {lsf}:
    s_cmp_eq_u32 s52, 0
    s_cbranch_scc1 {lss}
    """)
    s_loop(a, done, True)
    a(f"{lss}:")
    s_loop(a, done, False)
    a(f"""
    {lvf}:
    s_cmp_eq_u32 s52, 0
    s_cbranch_scc1 {lvs}
    """)
    v_loop(a, done, True)
    a(f"{lvs}:")
    v_loop(a, done, False)
    a(f"{done}:")
    if E("HD", 0):
        sk = a.lab("hd")
        a(f"s_cmp_ge_u32 s2, 256")
        a(f"s_cbranch_scc1 {sk}")
        a(f"s_cmp_lg_u32 s44, 0")
        a(f"s_cbranch_scc1 {sk}")
        hd(a, 7)
        hd(a, 3, val="s93")
        a(f"{sk}:")
    a("s_endpgm")
    return name, kd(name, 256, accum=128), f"grid=(256,1,1) block=(512,1,1) lds={LDS_BYTES}"
```

```python
import sys, os

NAME = "adaLN_cond__memory_aug_recurrent_mem_tr__dense_activation_gelu__prompt"

WS_MOD = 0x0000000
WS_VOTE = 0x0020000
WS_MODP = 0x0010000
WS_CTL = 0x0100000
WS_FLG = 0x0102000
FA, FC, FF1, FW, FF2, FL, FQ, FMD = 0, 52224, 17408, 21504, 25600, 29696, 33792, 50176
FREP = 0x10000
WS_P1 = 0x9000000
WS_P2 = 0xB000000
WS_STAMP = 0xF000000
WS_MRING = 0x7000000
WS_QKRING = 0x7080000
WS_SMRING = 0x7180000
WS_VRING = 0x7100000
WS_G = 0x7800000
WS_H1 = 0x0400000
WS_X1 = 0x0800000
WS_H2 = 0x0C00000
WS_MKV = 0x1000000
WS_QKV = 0x2000000
WS_OX = 0x5000000
WS_F = 0x6000000
WS_SIZE = 268435456

XS = int(os.environ.get('XS', '58'))
XT0 = 3
KA = dict(x=0, mem0=8, Wq=16, Wk=24, Wv=32, Wo=40, seg=48, Bx=56, w1=64, b1=72, w2=80, b2=88,
          c=96, wmod=104, out=112, dbg=120, ws=128)


class Asm:
    def __init__(self):
        self.l = []
        self.uid = 0

    def __call__(self, s):
        for line in s.strip().split("\n"):
            line = line.strip()
            if not line:
                continue
            if line.endswith(":"):
                self.l.append(line)
            else:
                self.l.append("    " + line)

    def align(self, pad=0):
        self.l.append(".p2align 6")
        for _ in range(pad):
            self.l.append("    s_nop 0")

    def lab(self, base):
        self.uid += 1
        return f"L_{base}_{self.uid}"

    def text(self):
        return "\n".join(self.l) + "\n"


def srd(a, d, base_lo, base_hi, size, off=0):
    if off:
        a(f"s_add_u32 s{d}, s{base_lo}, {off:#x}")
        a(f"s_addc_u32 s{d+1}, s{base_hi}, 0")
        a(f"s_and_b32 s{d+1}, s{d+1}, 0xffff")
    else:
        a(f"s_mov_b32 s{d}, s{base_lo}")
        a(f"s_and_b32 s{d+1}, s{base_hi}, 0xffff")
    a(f"s_mov_b32 s{d+2}, {size:#x}")
    a(f"s_mov_b32 s{d+3}, 0x00020000")


def kernel_header(a, name):
    a.l.append(f".globl {name}")
    a.l.append(".p2align 8")
    a.l.append(f".type {name},@function")
    a.l.append(f"{name}:")


def kd(name, vgpr, sgpr=102, accum=None):
    if accum is None:
        accum = (vgpr + 3) // 4 * 4
    return f""".p2align 6
.amdhsa_kernel {name}
  .amdhsa_next_free_vgpr {vgpr}
  .amdhsa_next_free_sgpr {sgpr}
  .amdhsa_accum_offset {accum}
  .amdhsa_group_segment_fixed_size 0
  .amdhsa_kernarg_size 136
  .amdhsa_user_sgpr_count 2
  .amdhsa_user_sgpr_kernarg_segment_ptr 1
  .amdhsa_system_sgpr_workgroup_id_x 1
.end_amdhsa_kernel
"""


def rnd_bf16(a, v, tmp=None):
    a(f"v_cvt_pk_bf16_f32 v{v}, 0, v{v}")


def wave_sum_to_sgpr(a, v, s):
    a("s_nop 1")
    for sh in (1, 2, 4, 8):
        a(f"v_add_f32_dpp v{v}, v{v}, v{v} row_shr:{sh} row_mask:0xf bank_mask:0xf bound_ctrl:0")
        a("s_nop 1")
    a(f"v_add_f32_dpp v{v}, v{v}, v{v} row_bcast:15 row_mask:0xa bank_mask:0xf")
    a("s_nop 1")
    a(f"v_add_f32_dpp v{v}, v{v}, v{v} row_bcast:31 row_mask:0xc bank_mask:0xf")
    a("s_nop 1")
    a(f"v_readlane_b32 s{s}, v{v}, 63")


def gen_mod(a):
    name = "k0_mod_kernel"
    kernel_header(a, name)
    done = a.lab("mod_done")
    a(f"""
    s_cmp_ge_u32 s2, 192
    s_cbranch_scc1 {done}
    s_load_dwordx2 s[4:5], s[0:1], {KA['c']}
    s_load_dwordx2 s[6:7], s[0:1], {KA['wmod']}
    s_load_dwordx2 s[20:21], s[0:1], {KA['ws']}
    s_load_dwordx2 s[22:23], s[0:1], {KA['mem0']}
    v_and_b32 v1, 3, v0
    v_lshrrev_b32 v2, 2, v0
    s_waitcnt lgkmcnt(0)
    """)
    srd(a, 8, 4, 5, 2048)
    srd(a, 12, 6, 7, 1024 * 6144 * 2)
    srd(a, 16, 20, 21, WS_SIZE)
    srd(a, 32, 22, 23, 16384)
    a("""
    v_lshlrev_b32 v3, 5, v2
    buffer_load_dwordx4 v[8:11], v3, s[8:11], 0 offen
    buffer_load_dwordx4 v[12:15], v3, s[8:11], 0 offen offset:16
    """)
    a("""
    s_mov_b32 s36, 196608
    v_mul_lo_u32 v4, v2, s36
    v_lshlrev_b32 v5, 4, v1
    v_add_u32 v4, v4, v5
    s_lshl_b32 s37, s2, 6
    """)
    for i in range(16):
        a(f"buffer_load_dwordx4 v[{32+4*i}:{35+4*i}], v4, s[12:15], s37 offen")
        if i < 15:
            a("v_add_u32 v4, 12288, v4")
    PF0 = int(os.environ.get("PF0", "2"))
    if PF0:
        a(f"""
        s_load_dwordx4 s[40:43], s[0:1], {KA['Wq']}
        s_load_dwordx2 s[44:45], s[0:1], {KA['Wv']}
        s_lshl_b32 s38, s2, 12
        v_lshlrev_b32 v7, 4, v0
        v_add_u32 v7, s38, v7
        s_waitcnt lgkmcnt(0)
        """)
        for m, (lo, hi) in enumerate(((40, 41), (42, 43), (44, 45))[:PF0]):
            srd(a, 48, lo, hi, 1024 * 8192)
            for i in range(11):
                a(f"s_mov_b32 s38, {i*786432}")
                a(f"buffer_load_dwordx4 v[{120+4*(i%2)}:{123+4*(i%2)}], v7, s[48:51], s38 offen")
    skipm = a.lab("mod_skipm")
    a(f"""
    s_cmp_ge_u32 s2, 16
    s_cbranch_scc1 {skipm}
    s_lshl_b32 s38, s2, 12
    v_lshlrev_b32 v7, 4, v0
    v_add_u32 v7, s38, v7
    v_mov_b32 v104, 0
    v_mov_b32 v105, 0
    v_mov_b32 v106, 0
    v_mov_b32 v107, 0
    s_mov_b32 s39, {WS_CTL:#x}
    buffer_store_dwordx4 v[104:107], v7, s[16:19], s39 offen
    {skipm}:
    s_waitcnt vmcnt(0)
    """)
    for i in range(8):
        a(f"v_lshlrev_b32 v{16+2*i}, 16, v{8+i}")
        a(f"v_and_b32 v{17+2*i}, 0xffff0000, v{8+i}")
    for i in range(16):
        r = 16 + i
        a(f"v_mul_f32 v110, 0xbfb8aa3b, v{r}")
        a("v_exp_f32 v110, v110")
        a("s_nop 0")
        a("v_add_f32 v110, 1.0, v110")
        a("v_rcp_f32 v110, v110")
        a("s_nop 0")
        a(f"v_mul_f32 v{r}, v{r}, v110")
        rnd_bf16(a, r)
    for e in range(8):
        a(f"v_mov_b32 v{112+e}, 0")
    for i in range(16):
        for p in range(4):
            w = 32 + 4 * i + p
            a(f"v_lshlrev_b32 v110, 16, v{w}")
            a(f"v_and_b32 v111, 0xffff0000, v{w}")
            a(f"v_fmac_f32 v{112+2*p}, v110, v{16+i}")
            a(f"v_fmac_f32 v{113+2*p}, v111, v{16+i}")
    a("""
    v_lshlrev_b32 v3, 5, v0
    ds_write_b128 v3, v[112:115]
    ds_write_b128 v3, v[116:119] offset:16
    s_waitcnt lgkmcnt(0)
    s_barrier
    v_cmp_gt_u32 vcc, 32, v0
    s_and_saveexec_b64 s[40:41], vcc
    """)
    fin = a.lab("mod_fin")
    a(f"s_cbranch_execz {fin}")
    a("v_lshlrev_b32 v3, 2, v0")
    a("v_mov_b32 v5, 0")
    for blk in range(4):
        for i in range(16):
            a(f"ds_read_b32 v{32+i}, v3 offset:{(blk*16+i)*128}")
        a("s_waitcnt lgkmcnt(0)")
        for i in range(16):
            a(f"v_add_f32 v5, v5, v{32+i}")
    rnd_bf16(a, 5)
    a(f"""
    s_lshl_b32 s38, s2, 7
    buffer_store_dword v5, v3, s[16:19], s38 offen
    {fin}:
    s_mov_b64 exec, s[40:41]
    {done}:
    s_endpgm
    """)
    return name, kd(name, 128), "grid=(192,1,1) block=(256,1,1) lds=8192"


def gen_ln(a, idx):
    name = f"k{1 if idx == 0 else 6}_ln_kernel"
    kernel_header(a, name)
    done = a.lab("ln_done")
    a(f"""
    s_cmp_ge_u32 s2, 512
    s_cbranch_scc1 {done}
    s_load_dwordx2 s[4:5], s[0:1], {KA['x']}
    s_load_dwordx2 s[20:21], s[0:1], {KA['ws']}
    v_lshrrev_b32 v1, 6, v0
    v_and_b32 v2, 63, v0
    s_waitcnt lgkmcnt(0)
    """)
    if idx == 0:
        srd(a, 8, 4, 5, 2048 * 2048)
    else:
        srd(a, 8, 20, 21, 2048 * 2048, WS_X1)
    srd(a, 12, 20, 21, 2048 * 2048, WS_H1 if idx == 0 else WS_H2)
    srd(a, 16, 20, 21, 6144 * 4, WS_MOD)
    if idx == 0:
        a("""
        s_lshl_b32 s25, s2, 12
        v_lshlrev_b32 v68, 4, v0
        v_add_u32 v68, s25, v68
        """)
    if idx == 0 and not os.environ.get("NOPF"):
        a(f"""
        s_load_dwordx4 s[40:43], s[0:1], {KA['Wq']}
        s_load_dwordx2 s[44:45], s[0:1], {KA['Wv']}
        s_waitcnt lgkmcnt(0)
        """)
        for m, (lo, hi) in enumerate(((40, 41), (42, 43), (44, 45))[int(os.environ.get("PF0", "2")):]):
            srd(a, 48, lo, hi, 1024 * 8192)
            for i in range(4):
                a(f"s_mov_b32 s25, {i*2097152}")
                a(f"buffer_load_dwordx4 v[{72+4*((m*4+i)%4)}:{75+4*((m*4+i)%4)}], v68, s[48:51], s25 offen")
    sh_off = (0 if idx == 0 else 3) * 4096
    sc_off = sh_off + 4096
    a(f"""
    s_lshl_b32 s22, s2, 13
    v_lshlrev_b32 v3, 11, v1
    v_lshlrev_b32 v4, 4, v2
    v_add_u32 v3, v3, v4
    buffer_load_dwordx4 v[8:11], v3, s[8:11], s22 offen
    buffer_load_dwordx4 v[12:15], v3, s[8:11], s22 offen offset:1024
    v_lshlrev_b32 v5, 5, v2
    """)
    a(f"s_mov_b32 s23, {sh_off}")
    a(f"s_mov_b32 s24, {sc_off}")
    for half in range(2):
        for q in range(2):
            o = half * 2048 + q * 16
            a(f"buffer_load_dwordx4 v[{32+half*8+q*4}:{35+half*8+q*4}], v5, s[16:19], s23 offen offset:{o}")
            a(f"buffer_load_dwordx4 v[{48+half*8+q*4}:{51+half*8+q*4}], v5, s[16:19], s24 offen offset:{o}")
    a("s_waitcnt vmcnt(8)")
    for i in range(8):
        a(f"v_lshlrev_b32 v{16+2*i}, 16, v{8+i}")
        a(f"v_and_b32 v{17+2*i}, 0xffff0000, v{8+i}")
    a("v_add_f32 v6, v16, v17")
    for i in range(2, 16):
        a(f"v_add_f32 v6, v6, v{16+i}")
    wave_sum_to_sgpr(a, 6, 26)
    a("""
    v_mov_b32 v7, s26
    v_mul_f32 v7, 0x3a800000, v7
    """)
    a("v_mov_b32 v6, 0")
    for i in range(16):
        a(f"v_sub_f32 v64, v{16+i}, v7")
        a("v_fmac_f32 v6, v64, v64")
    wave_sum_to_sgpr(a, 6, 27)
    a("""
    v_mov_b32 v6, s27
    v_mul_f32 v6, 0x3a800000, v6
    """)
    rnd_bf16(a, 6)
    rnd_bf16(a, 7)
    a("v_add_f32 v6, 0x3727c5ac, v6")
    rnd_bf16(a, 6)
    a("v_sqrt_f32 v6, v6")
    a("s_nop 0")
    rnd_bf16(a, 6)
    a("v_rcp_f32 v6, v6")
    a("s_waitcnt vmcnt(0)")
    for i in range(16):
        r = 16 + i
        a(f"v_sub_f32 v{r}, v{r}, v7")
        rnd_bf16(a, r)
        a(f"v_mul_f32 v{r}, v{r}, v6")
        rnd_bf16(a, r)
        a(f"v_add_f32 v64, 1.0, v{48+i}")
        rnd_bf16(a, 64)
        a(f"v_mul_f32 v{r}, v{r}, v64")
        rnd_bf16(a, r)
        a(f"v_add_f32 v{r}, v{r}, v{32+i}")
    for i in range(8):
        a(f"v_cvt_pk_bf16_f32 v{8+i}, v{16+2*i}, v{17+2*i}")
    a(f"""
    buffer_store_dwordx4 v[8:11], v3, s[12:15], s22 offen
    buffer_store_dwordx4 v[12:15], v3, s[12:15], s22 offen offset:1024
    {done}:
    s_endpgm
    """)
    return name, kd(name, 88), "grid=(512,1,1) block=(256,1,1) lds=0"


def gen_gemm(a, kind):
    cfg = {
        'qkv': dict(K=1024, N=12288, BN=128, lda=2048, ldb=8192, ldc=24576, idx=2),
        'wo': dict(K=4096, N=1024, BN=64, lda=8192, ldb=2048, ldc=2048, idx=5),
        'ffn1': dict(K=1024, N=3584, BN=128, lda=2048, ldb=7168, ldc=7168, idx=7),
        'ffn2': dict(K=3584, N=1024, BN=64, lda=7168, ldb=2048, ldc=2048, idx=8),
    }[kind]
    K, N, BN, lda, ldb, ldc = (cfg[k] for k in ('K', 'N', 'BN', 'lda', 'ldb', 'ldc'))
    name = f"k{cfg['idx']}_{kind}_kernel"
    NS = 4
    BK = 32
    NT = N // BN
    nwg = 16 * NT
    KT = K // BK
    TN = BN // 64
    BROW = BN * 2
    AST = 128 * BK * 2
    BST = BK * BROW
    STAGE = AST + BST
    nA = 2
    nB = BST // 4096
    NL = nA + nB
    rows_per_instr = 1024 // BROW
    kernel_header(a, name)
    done = a.lab("g_done")
    a(f"""
    s_cmp_ge_u32 s2, {nwg}
    s_cbranch_scc1 {done}
    s_load_dwordx2 s[20:21], s[0:1], {KA['ws']}
    s_and_b32 s42, s2, 7
    s_lshr_b32 s43, s2, 3
    """)
    if kind == 'qkv':
        a("""
        s_and_b32 s40, s43, 15
        s_lshr_b32 s41, s43, 4
        s_lshl_b32 s41, s41, 3
        s_add_u32 s41, s41, s42
        """)
    else:
        a("""
        s_and_b32 s40, s43, 1
        s_lshl_b32 s42, s42, 1
        s_add_u32 s40, s40, s42
        s_lshr_b32 s41, s43, 1
        """)
    if kind == 'qkv':
        a(f"""
        s_lshr_b32 s42, s41, 5
        s_lshl_b32 s42, s42, 3
        s_add_u32 s42, s42, {KA['Wq']}
        s_load_dwordx2 s[6:7], s[0:1], s42
        s_and_b32 s43, s41, 31
        """)
    else:
        bw = {'wo': 'Wo', 'ffn1': 'w1', 'ffn2': 'w2'}[kind]
        a(f"s_load_dwordx2 s[6:7], s[0:1], {KA[bw]}")
        a("s_mov_b32 s43, s41")
    if kind == 'wo':
        a(f"s_load_dwordx2 s[4:5], s[0:1], {KA['x']}")
    if kind == 'ffn1':
        a(f"s_load_dwordx2 s[4:5], s[0:1], {KA['b1']}")
    if kind == 'ffn2':
        a(f"s_load_dwordx2 s[4:5], s[0:1], {KA['b2']}")
        a(f"s_load_dwordx2 s[22:23], s[0:1], {KA['out']}")
    a("""
    v_and_b32 v1, 63, v0
    v_lshrrev_b32 v2, 6, v0
    s_nop 0
    v_readfirstlane_b32 s44, v2
    s_waitcnt lgkmcnt(0)
    """)
    a_off = {'qkv': WS_H1, 'wo': WS_OX, 'ffn1': WS_H2, 'ffn2': WS_F}[kind]
    srd(a, 8, 20, 21, 2048 * lda, a_off)
    bsize = {'qkv': 1024 * 8192, 'wo': 4096 * 2048, 'ffn1': 1024 * 7168, 'ffn2': 3584 * 2048}[kind]
    srd(a, 12, 6, 7, bsize)
    if kind == 'qkv':
        srd(a, 16, 20, 21, 2048 * ldc, WS_QKV)
    elif kind == 'wo':
        srd(a, 16, 20, 21, 2048 * ldc, WS_X1)
    elif kind == 'ffn1':
        srd(a, 16, 20, 21, 2048 * ldc, WS_F)
    else:
        srd(a, 16, 22, 23, 2048 * ldc)
    a(f"""
    v_lshrrev_b32 v3, 2, v1
    s_lshl_b32 s45, s44, 5
    v_add_u32 v3, s45, v3
    v_and_b32 v4, 3, v1
    s_lshl_b32 s46, s40, 7
    s_mov_b32 s47, {lda}
    """)
    for i in range(nA):
        a(f"""
        v_add_u32 v5, {16*i}, v3
        v_lshrrev_b32 v6, 2, v5
        v_and_b32 v6, 3, v6
        v_xor_b32 v6, v6, v4
        v_lshlrev_b32 v6, 4, v6
        v_add_u32 v5, s46, v5
        v_mul_lo_u32 v5, v5, s47
        v_add_u32 v{10+i}, v5, v6
        """)
    lpr = BROW // 16
    sh = {16: 4, 8: 3}[lpr]
    a(f"""
    v_lshrrev_b32 v3, {sh}, v1
    s_mul_i32 s45, s44, {rows_per_instr*nB}
    v_add_u32 v3, s45, v3
    v_and_b32 v4, {lpr-1}, v1
    s_lshl_b32 s46, s43, {BROW.bit_length()-1}
    s_mov_b32 s47, {ldb}
    """)
    for i in range(nB):
        a(f"v_add_u32 v5, {rows_per_instr*i}, v3")
        if BN == 128:
            a("v_and_b32 v6, 3, v5")
            a("v_lshlrev_b32 v6, 2, v6")
        else:
            a("v_and_b32 v6, 2, v5")
            a("v_lshlrev_b32 v6, 1, v6")
        a(f"""
        v_xor_b32 v6, v6, v4
        v_lshlrev_b32 v6, 4, v6
        v_mul_lo_u32 v5, v5, s47
        v_add_u32 v5, s46, v5
        v_add_u32 v{14+i}, v5, v6
        """)
    a("""
    s_lshr_b32 s48, s44, 1
    s_and_b32 s49, s44, 1
    v_and_b32 v3, 31, v1
    s_lshl_b32 s45, s48, 6
    v_add_u32 v3, s45, v3
    v_lshrrev_b32 v4, 2, v3
    v_and_b32 v4, 3, v4
    v_lshrrev_b32 v5, 5, v1
    v_lshlrev_b32 v3, 6, v3
    """)
    for ks in range(2):
        a(f"""
        v_add_u32 v6, {2*ks}, v5
        v_xor_b32 v6, v6, v4
        v_lshlrev_b32 v6, 4, v6
        v_add_u32 v{18+ks}, v3, v6
        """)
    a(f"""
    v_lshrrev_b32 v3, 5, v1
    v_lshlrev_b32 v3, 3, v3
    v_bfe_u32 v4, v1, 2, 2
    v_add_u32 v3, v3, v4
    v_bfe_u32 v5, v1, 4, 1
    v_lshlrev_b32 v5, 4, v5
    v_and_b32 v6, 3, v1
    v_lshlrev_b32 v6, 2, v6
    v_add_u32 v5, v5, v6
    s_mul_i32 s45, s49, {BN//2}
    v_add_u32 v5, s45, v5
    """)
    if BN == 128:
        a("v_lshlrev_b32 v7, 2, v4")
    else:
        a("v_and_b32 v7, 2, v4")
        a("v_lshlrev_b32 v7, 1, v7")
    a(f"v_mul_u32_u24 v3, {BROW}, v3")
    for tn in range(TN):
        a(f"""
        v_add_u32 v6, {32*tn}, v5
        v_lshrrev_b32 v8, 3, v6
        v_xor_b32 v8, v8, v7
        v_lshlrev_b32 v8, 4, v8
        v_and_b32 v6, 4, v6
        v_lshlrev_b32 v6, 1, v6
        v_add_u32 v8, v8, v6
        v_add_u32 v{22+tn}, v3, v8
        """)
    ACC = 64
    nacc = 2 * TN * 16
    for r in range(nacc):
        a(f"v_mov_b32 v{ACC+r}, 0")
    FR = 26
    fsz = 8 + 4 * TN

    def fa(s, tm):
        return FR + s * fsz + tm * 4

    def fb(s, tn):
        return FR + s * fsz + 8 + tn * 4

    a(f"""
    s_mov_b32 s50, 0
    s_mov_b32 s51, 0
    s_lshl_b32 s52, s44, 11
    s_mul_i32 s53, s44, {nB*1024}
    s_add_u32 s53, s53, {AST}
    """)

    def dma(stage):
        for i in range(nA):
            a(f"s_add_u32 m0, s52, {stage*STAGE + 1024*i}")
            a("s_nop 0")
            a(f"buffer_load_dwordx4 v{10+i}, s[8:11], s50 offen lds")
        for i in range(nB):
            a(f"s_add_u32 m0, s53, {stage*STAGE + 1024*i}")
            a("s_nop 0")
            a(f"buffer_load_dwordx4 v{14+i}, s[12:15], s51 offen lds")
        a(f"s_add_u32 s50, s50, {BK*2}")
        a(f"s_add_u32 s51, s51, {BK*ldb}")

    def reads(stage, ks, s):
        for tm in range(2):
            a(f"ds_read_b128 v[{fa(s,tm)}:{fa(s,tm)+3}], v{18+ks} offset:{stage*STAGE + tm*2048}")
        for tn in range(TN):
            o = stage * STAGE + AST + ks * 16 * BROW
            a(f"ds_read_b64_tr_b16 v[{fb(s,tn)}:{fb(s,tn)+1}], v{22+tn} offset:{o}")
            a(f"ds_read_b64_tr_b16 v[{fb(s,tn)+2}:{fb(s,tn)+3}], v{22+tn} offset:{o + 4*BROW}")

    def mfmas(s):
        for tm in range(2):
            for tn in range(TN):
                c = ACC + (tm * TN + tn) * 16
                a(f"v_mfma_f32_32x32x16_bf16 v[{c}:{c+15}], v[{fb(s,tn)}:{fb(s,tn)+3}], v[{fa(s,tm)}:{fa(s,tm)+3}], v[{c}:{c+15}]")

    nrd = 2 + 2 * TN
    for st in range(NS - 1):
        dma(st)
    loop = a.lab("g_loop")
    a("s_mov_b32 s54, 0")
    a(f"{loop}:")
    for st in range(NS):
        a(f"s_waitcnt vmcnt({(NS-2)*NL})")
        a("s_barrier")
        if not (os.environ.get("GX") == "nord" and kind == 'qkv'):
            reads(st, 0, 0)
            reads(st, 1, 1)
        if not (os.environ.get("GX") == "nodma" and kind == 'qkv'):
            dma((st + NS - 1) % NS)
        a(f"s_waitcnt lgkmcnt({nrd})")
        mfmas(0)
        a("s_waitcnt lgkmcnt(0)")
        mfmas(1)
    a(f"""
    s_add_u32 s54, s54, {NS}
    s_cmp_lt_u32 s54, {KT}
    s_cbranch_scc1 {loop}
    s_nop 15
    s_waitcnt vmcnt(0)
    """)
    a(f"""
    v_and_b32 v3, 31, v1
    s_lshl_b32 s45, s40, 7
    s_lshl_b32 s46, s48, 6
    s_add_u32 s45, s45, s46
    v_add_u32 v3, s45, v3
    v_lshrrev_b32 v4, 5, v1
    v_lshlrev_b32 v4, 2, v4
    s_mul_i32 s45, s41, {BN}
    s_mul_i32 s46, s49, {BN//2}
    s_add_u32 s45, s45, s46
    v_add_u32 v4, s45, v4
    s_mov_b32 s47, {ldc}
    v_mul_lo_u32 v5, v3, s47
    v_lshlrev_b32 v6, 1, v4
    v_add_u32 v5, v5, v6
    v_lshrrev_b32 v61, 5, v1
    v_lshlrev_b32 v61, 3, v61
    v_add_u32 v61, v61, v5
    """)
    if kind == 'qkv':
        a(f"""
        s_lshl_b32 s45, s40, 2
        s_lshl_b32 s46, s48, 1
        s_add_u32 s45, s45, s46
        s_mul_i32 s45, s45, 786432
        s_mul_i32 s46, s43, 24576
        s_add_u32 s45, s45, s46
        s_lshr_b32 s46, s41, 5
        s_lshl_b32 s46, s46, 13
        s_add_u32 s45, s45, s46
        s_lshl_b32 s46, s49, 11
        s_add_u32 s45, s45, s46
        v_and_b32 v62, 15, v1
        v_lshlrev_b32 v62, 4, v62
        v_bfe_u32 v63, v1, 4, 1
        v_lshl_add_u32 v62, v63, 12, v62
        v_lshrrev_b32 v63, 5, v1
        v_lshl_add_u32 v62, v63, 8, v62
        v_add_u32 v62, s45, v62
        """)
    if kind in ('wo', 'ffn2'):
        srd(a, 24, 20, 21, 6144 * 4, WS_MOD)
        gate_off = (2 if kind == 'wo' else 5) * 4096
        a(f"s_mov_b32 s55, {gate_off}")
        a("v_lshlrev_b32 v7, 2, v4")
        if kind == 'wo':
            srd(a, 28, 4, 5, 2048 * 2048)
        else:
            srd(a, 28, 20, 21, 2048 * 2048, WS_X1)
            srd(a, 32, 4, 5, 2048)
    if kind == 'ffn1':
        srd(a, 32, 4, 5, 7168)
    T = 26
    for tn in range(TN):
        if kind in ('wo', 'ffn2'):
            for rr in range(4):
                a(f"buffer_load_dwordx4 v[{T+4*rr}:{T+4*rr+3}], v7, s[24:27], s55 offen offset:{(tn*32+8*rr)*4}")
        if kind in ('ffn1', 'ffn2'):
            a("v_lshlrev_b32 v8, 1, v4")
            for rr in range(4):
                a(f"buffer_load_dwordx2 v[{T+16+2*rr}:{T+17+2*rr}], v8, s[32:35], 0 offen offset:{(tn*32+8*rr)*2}")
        for tm in range(2):
            c = ACC + (tm * TN + tn) * 16
            if kind in ('wo', 'ffn2'):
                a(f"v_add_u32 v9, {tm*32*ldc}, v5")
                for rr in range(4):
                    a(f"buffer_load_dwordx2 v[{T+24+2*rr}:{T+25+2*rr}], v9, s[28:31], 0 offen offset:{(tn*32+8*rr)*2}")
            a("s_waitcnt vmcnt(0)")
            for rr in range(4):
                for j in range(4):
                    r = c + 4 * rr + j
                    if kind == 'qkv':
                        continue
                    rnd_bf16(a, r)
                    if kind in ('ffn1', 'ffn2'):
                        b = T + 16 + 2 * rr + (j >> 1)
                        if j & 1:
                            a(f"v_and_b32 v60, 0xffff0000, v{b}")
                        else:
                            a(f"v_lshlrev_b32 v60, 16, v{b}")
                        a(f"v_add_f32 v{r}, v{r}, v60")
                        rnd_bf16(a, r)
                    if kind == 'ffn1':
                        a(f"v_mul_f32 v60, v{r}, v{r}")
                        a(f"v_mul_f32 v60, 0x3d372713, v60")
                        a("v_add_f32 v60, 1.0, v60")
                        a(f"v_mul_f32 v60, v60, v{r}")
                        a("v_mul_f32 v60, 0xc0135761, v60")
                        a("v_exp_f32 v60, v60")
                        a("s_nop 0")
                        a("v_add_f32 v60, 1.0, v60")
                        a("v_rcp_f32 v60, v60")
                        a("s_nop 0")
                        a(f"v_mul_f32 v{r}, v{r}, v60")
                    if kind in ('wo', 'ffn2'):
                        a(f"v_mul_f32 v{r}, v{r}, v{T+4*rr+j}")
                        rnd_bf16(a, r)
                        xr = T + 24 + 2 * rr + (j >> 1)
                        if j & 1:
                            a(f"v_and_b32 v60, 0xffff0000, v{xr}")
                        else:
                            a(f"v_lshlrev_b32 v60, 16, v{xr}")
                        a(f"v_add_f32 v{r}, v{r}, v60")
                dst = c + 4 * (rr & ~1) + 2 * (rr & 1)
                a(f"v_cvt_pk_bf16_f32 v{dst}, v{c+4*rr}, v{c+4*rr+1}")
                a(f"v_cvt_pk_bf16_f32 v{dst+1}, v{c+4*rr+2}, v{c+4*rr+3}")
            if kind == 'qkv':
                a(f"v_add_u32 v9, {tm*786432}, v62")
            elif tm == 1:
                a(f"v_add_u32 v9, {32*ldc}, v61")
            else:
                a("v_mov_b32 v9, v61")
            a("s_nop 0")
            for pr in range(2):
                b = c + 8 * pr
                a(f"v_permlane32_swap_b32 v{b}, v{b+2}")
                a(f"v_permlane32_swap_b32 v{b+1}, v{b+3}")
            for pr in range(2):
                b = c + 8 * pr
                off = tn * 1024 + pr * 512 if kind == 'qkv' else (tn * 32 + 16 * pr) * 2
                a(f"buffer_store_dwordx4 v[{b}:{b+3}], v9, s[16:19], 0 offen offset:{off}")
    a(f"""
    {done}:
    s_endpgm
    """)
    nv = ACC + nacc
    return name, kd(name, nv), f"grid=({nwg},1,1) block=(256,1,1) lds={NS*STAGE}"


def gen_xattn(a):
    name = "k4_xattn_kernel"
    kernel_header(a, name)
    done = a.lab("x_done")
    LROW = 272
    WLDS = 48 * LROW
    a(f"""
    s_cmp_ge_u32 s2, 512
    s_cbranch_scc1 {done}
    s_load_dwordx2 s[20:21], s[0:1], {KA['ws']}
    v_and_b32 v1, 63, v0
    v_lshrrev_b32 v2, 6, v0
    s_nop 0
    v_readfirstlane_b32 s44, v2
    s_lshl_b32 s40, s2, 2
    s_add_u32 s40, s40, s44
    s_lshr_b32 s41, s40, 5
    s_and_b32 s42, s40, 31
    s_waitcnt lgkmcnt(0)
    """)
    srd(a, 8, 20, 21, 2048 * 24576, WS_QKV)
    srd(a, 12, 20, 21, 64 * 196608, WS_MKV)
    srd(a, 16, 20, 21, 2048 * 8192, WS_OX)
    a(f"""
    s_mul_i32 s45, s41, 786432
    s_mul_i32 s46, s42, 24576
    s_add_u32 s45, s45, s46
    s_mul_i32 s47, s41, 196608
    s_mul_i32 s46, s42, 6144
    s_add_u32 s47, s47, s46
    s_add_u32 s47, s47, 2048
    """)
    a(f"""
    v_lshlrev_b32 v3, 4, v1
    v_add_u32 v5, 4096, v3
    v_lshrrev_b32 v4, 4, v1
    v_lshlrev_b32 v4, 4, v4
    v_and_b32 v6, 7, v1
    v_lshlrev_b32 v6, 8, v6
    v_add_u32 v6, v6, v4
    s_add_u32 s48, s45, 8192
    s_add_u32 s49, s45, 16384
    """)
    Q = 16
    Kf = 48
    for qt, vv in enumerate((3, 5)):
        for ks in range(4):
            r = Q + (qt * 4 + ks) * 4
            a(f"buffer_load_dwordx4 v[{r}:{r+3}], v{vv}, s[8:11], s45 offen offset:{1024*ks}")
    for kt, vv in enumerate((3, 5)):
        for ks in range(4):
            r = Kf + (kt * 4 + ks) * 4
            a(f"buffer_load_dwordx4 v[{r}:{r+3}], v{vv}, s[8:11], s48 offen offset:{1024*ks}")
    for ks in range(4):
        r = Kf + (8 + ks) * 4
        a(f"buffer_load_dwordx4 v[{r}:{r+3}], v6, s[12:15], s47 offen offset:{64*ks}")
    a(f"""
    v_lshrrev_b32 v7, 4, v1
    v_and_b32 v9, 15, v1
    v_mul_u32_u24 v8, {LROW}, v9
    v_add_u32 v8, v8, v4
    v_lshlrev_b32 v9, 4, v9
    v_mul_u32_u24 v10, {LROW}, v7
    v_add_u32 v10, v10, v9
    s_mul_i32 s50, s44, {WLDS}
    v_add_u32 v10, s50, v10
    v_add_u32 v8, s50, v8
    v_lshlrev_b32 v11, 8, v7
    v_add_u32 v11, v11, v9
    s_add_u32 s51, s47, 2048
    """)
    VS = 96
    for i in range(8):
        a(f"buffer_load_dwordx4 v[{VS+4*i}:{VS+4*i+3}], v{3 if i < 4 else 5}, s[8:11], s49 offen offset:{1024*(i&3)}")
    for i in range(2):
        a(f"buffer_load_dwordx4 v[{VS+32+4*i}:{VS+35+4*i}], v11, s[12:15], s51 offen offset:{1024*i}")
    for r in range(4):
        a(f"v_mov_b32 v{136+r}, 0")
    a(f"ds_write_b128 v10, v[136:139] offset:{40*LROW}")
    a(f"ds_write_b128 v10, v[136:139] offset:{44*LROW}")
    a("s_waitcnt vmcnt(0)")
    for i in range(8):
        a(f"ds_write_b128 v8, v[{VS+4*i}:{VS+4*i+3}] offset:{(i>>2)*16*LROW + (i&3)*64}")
    for i in range(8, 10):
        a(f"ds_write_b128 v10, v[{VS+4*i}:{VS+4*i+3}] offset:{4*i*LROW}")
    S = 96
    for r in range(24):
        a(f"v_mov_b32 v{S+r}, 0")
    a("s_nop 1")
    pairs = [(0, 0), (0, 1), (1, 1), (2, 0), (2, 1)]
    for ks in range(4):
        for kt, qt in pairs:
            c = S + (kt * 2 + qt) * 4
            ka = Kf + (kt * 4 + ks) * 4
            qa = Q + (qt * 4 + ks) * 4
            a(f"v_mfma_f32_16x16x32_bf16 v[{c}:{c+3}], v[{ka}:{ka+3}], v[{qa}:{qa+3}], v[{c}:{c+3}]")
    a(f"""
    s_waitcnt lgkmcnt(0)
    v_lshrrev_b32 v12, 4, v1
    v_lshlrev_b32 v12, 2, v12
    v_and_b32 v13, 15, v1
    v_mov_b32 v14, 0xff800000
    v_cmp_le_u32 s[52:53], 32, v1
    v_xor_b32 v15, 16, v1
    v_lshlrev_b32 v15, 2, v15
    v_xor_b32 v2, 32, v1
    v_lshlrev_b32 v2, 2, v2
    s_nop 4
    """)
    for r in range(4):
        a(f"v_add_u32 v120, {r}, v12")
        a("v_cmp_gt_u32 vcc, v120, v13")
        a("s_nop 1")
        for t in (0, 3):
            c = S + t * 4 + r
            a(f"v_cndmask_b32 v{c}, v{c}, v14, vcc")
    for qt in range(2):
        for r in range(4):
            c = S + (4 + qt) * 4 + r
            a(f"v_cndmask_b32 v{c}, v{c}, v14, s[52:53]")
    a(f"""
    v_lshrrev_b32 v12, 4, v1
    v_lshlrev_b32 v12, 2, v12
    v_bfe_u32 v13, v1, 2, 2
    v_add_u32 v12, v12, v13
    v_mul_u32_u24 v12, {LROW}, v12
    v_and_b32 v13, 3, v1
    v_lshlrev_b32 v13, 3, v13
    v_add_u32 v12, v12, v13
    v_add_u32 v12, s50, v12
    """)
    for dt in range(8):
        for kt in range(3):
            r = 16 + (dt * 3 + kt) * 2
            a(f"ds_read_b64_tr_b16 v[{r}:{r+1}], v12 offset:{kt*16*LROW + 32*dt}")
    a("s_mov_b32 s54, 0x3e0293ee")
    P = 64
    for qt in range(2):
        tiles = [(0, 0), (2, 0)] if qt == 0 else [(0, 1), (1, 1), (2, 1)]
        regs = [S + (kt * 2 + q) * 4 + r for kt, q in tiles for r in range(4)]
        a(f"v_max_f32 v120, v{regs[0]}, v{regs[1]}")
        for i in range(2, len(regs), 2):
            a(f"v_max3_f32 v120, v120, v{regs[i]}, v{regs[i+1]}")
        a("""
        ds_bpermute_b32 v121, v15, v120
        s_waitcnt lgkmcnt(0)
        v_max_f32 v120, v120, v121
        ds_bpermute_b32 v121, v2, v120
        s_waitcnt lgkmcnt(0)
        v_max_f32 v120, v120, v121
        v_mul_f32 v120, s54, v120
        """)
        for r in regs:
            a(f"v_fma_f32 v{r}, v{r}, s54, -v120")
            a(f"v_exp_f32 v{r}, v{r}")
        a("s_nop 0")
        a(f"v_add_f32 v121, v{regs[0]}, v{regs[1]}")
        for r in regs[2:]:
            a(f"v_add_f32 v121, v121, v{r}")
        a("""
        ds_bpermute_b32 v122, v15, v121
        s_waitcnt lgkmcnt(0)
        v_add_f32 v121, v121, v122
        ds_bpermute_b32 v122, v2, v121
        s_waitcnt lgkmcnt(0)
        v_add_f32 v121, v121, v122
        v_rcp_f32 v121, v121
        s_nop 0
        """)
        for r in regs:
            a(f"v_mul_f32 v{r}, v{r}, v121")
        for kt, q in tiles:
            c = S + (kt * 2 + q) * 4
            p = P + (q * 3 + kt) * 2
            a(f"v_cvt_pk_bf16_f32 v{p}, v{c}, v{c+1}")
            a(f"v_cvt_pk_bf16_f32 v{p+1}, v{c+2}, v{c+3}")
    O = 96
    for r in range(64):
        a(f"v_mov_b32 v{O+r}, 0")
    a("s_nop 1")
    for qt in range(2):
        kts = (0, 2) if qt == 0 else (0, 1, 2)
        for kt in kts:
            for dt in range(8):
                c = O + (qt * 8 + dt) * 4
                v = 16 + (dt * 3 + kt) * 2
                p = P + (qt * 3 + kt) * 2
                a(f"v_mfma_f32_16x16x16_bf16 v[{c}:{c+3}], v[{v}:{v+1}], v[{p}:{p+1}], v[{c}:{c+3}]")
    a(f"""
    v_and_b32 v3, 15, v1
    v_lshlrev_b32 v3, 13, v3
    v_lshrrev_b32 v4, 4, v1
    v_lshlrev_b32 v4, 3, v4
    v_add_u32 v3, v3, v4
    s_lshl_b32 s45, s41, 18
    s_lshl_b32 s46, s42, 8
    s_add_u32 s45, s45, s46
    s_add_u32 s46, s45, {16*8192}
    s_nop 7
    """)
    for qt in range(2):
        for dt in range(8):
            c = O + (qt * 8 + dt) * 4
            a(f"v_cvt_pk_bf16_f32 v{c}, v{c}, v{c+1}")
            a(f"v_cvt_pk_bf16_f32 v{c+1}, v{c+2}, v{c+3}")
            a(f"buffer_store_dwordx2 v[{c}:{c+1}], v3, s[16:19], s{45+qt} offen offset:{32*dt}")
    a(f"""
    {done}:
    s_endpgm
    """)
    return name, kd(name, 160), f"grid=(512,1,1) block=(256,1,1) lds={4*WLDS}"
```

```python
import os
from lib1 import *

E = lambda k, d: int(os.environ.get(k, str(d)))
TMO = 0x80000
SPIN = E("SPIN", 3)
SPA = E("SPA", 4)
M16G = E("M16", 1)
F1M32 = E("F1M32", 1)
R1 = E("R1", 60)
R2 = E("R2", 62)
Q1 = E("Q1", R1)
Q2 = E("Q2", R2)
REPL = "L_replica"
HK = E("KH", 50)
HV = E("VH", 53)
SOFT = E("SOFT", 0)
CB = E("CB", 1)
LOOKAT = E("LOOKAT", 12)
MIDB = E("MIDB", 6)
L_BC = 147456
L_EX = 131072
LDS_BYTES = 147456 + 256


def spin(a, vaddr, soff, sseg, vtmp, done, sleep=None):
    lp = a.lab("spin")
    ok = a.lab("spok")
    a(f"""
    s_mov_b32 s70, 0
    {lp}:
    buffer_load_dword v{vtmp}, v{vaddr}, s[12:15], {soff} offen sc1
    s_waitcnt vmcnt(0)
    v_cmp_ge_u32 vcc, s{sseg}, v{vtmp}
    s_add_u32 s70, s70, 1
    s_cbranch_vccz {ok}
    s_sleep {SPIN if sleep is None else sleep}
    s_cmp_lt_u32 s70, {TMO}
    s_cbranch_scc1 {lp}
    s_branch {done}
    {ok}:
    """)


def zwait(a, done, vt):
    lp = a.lab("zw")
    ok = a.lab("zwok")
    a(f"""
    s_cmp_lg_u32 s44, 0
    s_cbranch_scc1 {ok}
    v_and_b32 v{vt}, 7, v1
    v_lshlrev_b32 v{vt}, 5, v{vt}
    s_mov_b32 s70, 0
    {lp}:
    buffer_load_dword v{vt+1}, v{vt}, s[16:19], 0 offen sc1
    s_waitcnt vmcnt(0)
    v_add_u32_dpp v{vt+1}, v{vt+1}, v{vt+1} row_ror:1 row_mask:0xf bank_mask:0xf
    s_nop 1
    v_add_u32_dpp v{vt+1}, v{vt+1}, v{vt+1} row_ror:2 row_mask:0xf bank_mask:0xf
    s_nop 1
    v_add_u32_dpp v{vt+1}, v{vt+1}, v{vt+1} row_ror:4 row_mask:0xf bank_mask:0xf
    v_cmp_ne_u32 vcc, 0x100, v{vt+1}
    s_add_u32 s70, s70, 1
    s_cbranch_vccz {ok}
    s_sleep 4
    s_cmp_lt_u32 s70, {TMO}
    s_cbranch_scc1 {lp}
    s_branch {done}
    {ok}:
    """)


def set_flag(a, soff, sseg, vt, wave=0):
    sk = a.lab("sf")
    if wave is not None:
        a(f"s_cmp_lg_u32 s44, {wave}")
        a(f"s_cbranch_scc1 {sk}")
    a(f"""
    v_mov_b32 v{vt}, s{sseg}
    v_add_u32 v{vt}, 1, v{vt}
    v_mov_b32 v{vt+1}, 0
    s_mov_b64 exec, 1
    buffer_store_dword v{vt}, v{vt+1}, s[12:15], s{soff} offen sc1
    s_mov_b64 exec, -1
    {sk}:
    """)


def wstamp(a, vt, slot=0, kind=None, sseg=60):
    if E("STAMP", 0) != 3:
        return
    a(f"""
    s_memrealtime s[80:81]
    s_lshl_b32 s82, s40, 5
    s_add_u32 s82, s82, {"31" if kind == "f" else "s41"}
    s_lshl_b32 s82, s82, 3
    s_add_u32 s82, s82, s44
    s_lshl_b32 s82, s82, 6
    s_add_u32 s82, s82, s{sseg}
    s_lshl_b32 s82, s82, 4
    s_add_u32 s82, s82, {WS_STAMP + (0x400000 if kind == 'qkv' else 0x100000) + 4*slot:#x}
    v_mov_b32 v{vt+1}, 0
    s_waitcnt lgkmcnt(0)
    v_mov_b32 v{vt}, s80
    s_mov_b64 exec, 1
    buffer_store_dword v{vt}, v{vt+1}, s[12:15], s82 offen
    s_mov_b64 exec, -1
    """)


def tstamp(a, idx):
    if E("STAMP", 0) != 3:
        return
    sk = a.lab("ts")
    a(f"""
    s_cmp_lg_u32 s44, 0
    s_cbranch_scc1 {sk}
    s_memrealtime s[80:81]
    s_lshl_b32 s82, s40, 5
    s_add_u32 s82, s82, s41
    s_lshl_b32 s82, s82, 6
    s_add_u32 s82, s82, {WS_STAMP + 0x700000 + 4*idx:#x}
    v_mov_b32 v127, 0
    s_waitcnt lgkmcnt(0)
    v_mov_b32 v126, s80
    s_mov_b64 exec, 1
    buffer_store_dword v126, v127, s[12:15], s82 offen
    s_mov_b64 exec, -1
    {sk}:
    """)


def cstamp(a, i, kind, cond=None):
    if E("STAMP", 0) != 4 or kind != os.environ.get("CKIND", "qkv"):
        return
    if cond and E("CTOT", 0):
        return
    sk = a.lab("cs")
    if cond:
        a(f"s_cmp_lg_u32 s60, {E('CSEG', 30)}")
        a(f"s_cbranch_scc1 {sk}")
    a("s_memtime s[80:81]")
    if i in (0, 7):
        a("s_memrealtime s[82:83]")
    a("s_waitcnt lgkmcnt(0)")
    a(f"s_mov_b32 s{84+i}, s80")
    if i in (0, 7):
        a(f"s_mov_b32 s{92 + (i == 7)}, s82")
    if i == 7:
        a(f"""
        s_lshl_b32 s82, s40, 5
        s_add_u32 s82, s82, s41
        s_lshl_b32 s82, s82, 3
        s_add_u32 s82, s82, s44
        s_lshl_b32 s82, s82, 6
        s_add_u32 s82, s82, {WS_STAMP:#x}
        v_mov_b32 v11, 0
        """)
        for j in range(10):
            a(f"v_mov_b32 v10, s{84+j}")
            a(f"buffer_store_dword v10, v11, s[12:15], s82 offen offset:{4*j}")
    a(f"{sk}:")


def gelu(a, r, t):
    a(f"v_mul_f32 v{t}, v{r}, v{r}")
    a(f"v_mul_f32 v{t}, 0x3d372713, v{t}")
    a(f"v_add_f32 v{t}, 1.0, v{t}")
    a(f"v_mul_f32 v{t}, v{t}, v{r}")
    a(f"v_mul_f32 v{t}, 0xc0135761, v{t}")
    a(f"v_exp_f32 v{t}, v{t}")
    a("s_nop 0")
    a(f"v_add_f32 v{t}, 1.0, v{t}")
    a(f"v_rcp_f32 v{t}, v{t}")
    a("s_nop 0")
    a(f"v_mul_f32 v{r}, v{r}, v{t}")


NPC = 2


def phase_off(a, dst, src, kind):
    if kind == 'wo':
        a(f"s_and_b32 s{dst}, s{src}, 3")
        a(f"s_lshl_b32 s{dst}, s{dst}, 7")
    elif kind == 'qkv':
        a(f"s_and_b32 s{dst}, s{src}, 7")
        a(f"s_lshl_b32 s{dst}, s{dst}, 9")
    elif kind == 'f1':
        a(f"s_mul_i32 s{dst}, s{src}, 171")
        a(f"s_lshr_b32 s{dst}, s{dst}, 9")
        a(f"s_mul_i32 s{dst}, s{dst}, 3")
        a(f"s_sub_u32 s{dst}, s{src}, s{dst}")
        a(f"s_lshl_b32 s{dst}, s{dst}, 9")
    else:
        a(f"s_cmp_ge_u32 s{src}, {R1}")
        a(f"s_cselect_b32 s{dst}, {FREP}, 0")
        a(f"s_cmp_ge_u32 s{src}, {R2}")
        a(f"s_cselect_b32 s{dst}, {2*FREP}, s{dst}")


def gemm_role(a, kind, done, fin):
    M16 = M16G and not (F1M32 and kind == 'f1')
    f32in = kind == 'f2' and (F1M32 or not M16G)
    NK = 28 if kind == 'f2' else 32
    KH = 16 * NK
    ld = {'wo': 2048, 'f1': 7168, 'f2': 2048, 'qkv': 8192}[kind]
    wsz = {'wo': 4096 * 2048, 'f1': 1024 * 7168, 'f2': 3584 * 2048, 'qkv': 1024 * 8192}[kind]
    wrow = kind in ('f1', 'qkv')
    if kind == 'qkv':
        a(f"""
        s_lshl_b32 s46, s53, 3
        s_add_u32 s46, s46, {KA['Wq']}
        s_load_dwordx2 s[4:5], s[0:1], s46
        s_lshl_b32 s49, s40, 2
        s_and_b32 s46, s48, 3
        s_add_u32 s49, s49, s46
        """)
    else:
        a(f"s_load_dwordx2 s[4:5], s[0:1], {KA[{'wo': 'Wo', 'f1': 'w1', 'f2': 'w2'}[kind]]}")
    a(f"""
    s_load_dwordx2 s[6:7], s[0:1], {KA['b1']}
    s_and_b32 s50, s44, 3
    s_lshr_b32 s51, s44, 2
    s_waitcnt lgkmcnt(0)
    """)
    srd(a, 24, 4, 5, wsz)
    if kind == 'f1':
        a("s_mul_i32 s49, s42, 7")
        a("s_add_u32 s49, s49, s43")
    if kind == 'qkv' and E("QDELAY", 2) == 1:
        nq = a.lab("g_nq")
        nq2 = a.lab("g_nq2")
        a(f"s_cmp_lg_u32 s53, 0")
        a(f"s_cbranch_scc1 {nq}")
        zwait(a, done, 10)
        a(f"""
        s_cmp_lg_u32 s44, 0
        s_cbranch_scc1 {nq2}
        v_mov_b32 v10, {WS_FLG + FL:#x}
        s_mov_b32 s47, 0
        """)
        spin(a, 10, "0", 47, 11, done)
        a(f"""
        {nq2}:
        s_barrier
        {nq}:
        """)
    if kind == 'qkv' and E("QDELAY", 2) == 2:
        nq = a.lab("g_nq")
        a(f"""
        s_cmp_lg_u32 s53, 0
        s_cbranch_scc1 {nq}
        s_load_dwordx4 s[8:11], s[0:1], {KA['Wk']}
        v_and_b32 v10, 255, v0
        v_lshlrev_b32 v10, 13, v10
        s_and_b32 s46, s48, 3
        s_lshl_b32 s46, s46, 21
        s_lshl_b32 s47, s40, 10
        s_add_u32 s46, s46, s47
        s_add_u32 s46, s46, 384
        s_waitcnt lgkmcnt(0)
        s_cmp_eq_u32 s51, 1
        s_cselect_b32 s8, s10, s8
        s_cselect_b32 s9, s11, s9
        """)
        srd(a, 28, 8, 9, wsz)
        a(f"""
        buffer_load_dword v11, v10, s[28:31], s46 offen
        s_cmp_eq_u32 s51, 1
        s_cbranch_scc1 {nq}
        buffer_load_dword v12, v10, s[24:27], s46 offen
        {nq}:
        """)
    rpw = KH // 8
    a(f"""
    v_lshrrev_b32 v3, 4, v1
    v_and_b32 v4, 15, v1
    v_lshlrev_b32 v5, 2, v3
    v_xor_b32 v4, v4, v5
    v_mul_u32_u24 v3, {ld}, v3
    v_lshl_add_u32 v3, v4, 4, v3
    s_mul_i32 s46, s51, {KH}
    s_mul_i32 s47, s50, {rpw}
    s_add_u32 s46, s46, s47
    """)
    if wrow:
        a(f"s_mul_i32 s46, s46, {ld}")
        a("s_lshl_b32 s47, s49, 8")
    else:
        a(f"s_mul_i32 s47, s42, {2*KH}")
        a("s_add_u32 s46, s46, s47")
        a(f"s_mul_i32 s46, s46, {ld}")
        a("s_lshl_b32 s47, s43, 8")
    hlrows = 8 if wrow else 4
    b_chunk, b_half = (0, 1) if kind == 'qkv' else (1, 0)
    a(f"""
    s_add_u32 s46, s46, s47
    s_lshl_b32 s45, s51, 16
    s_mul_i32 s47, s50, {rpw*256}
    s_add_u32 s45, s45, s47
    v_bfe_u32 v4, v1, 2, 2
    v_bfe_u32 v5, v1, 4, 1
    v_lshlrev_b32 v5, 1, v5
    v_bfe_u32 v6, v1, {b_chunk}, 1
    v_add_u32 v5, v5, v6
    s_lshl_b32 s47, s50, 2
    v_add_u32 v5, s47, v5
    v_lshlrev_b32 v6, 2, v4
    v_xor_b32 v5, v5, v6
    v_lshlrev_b32 v5, 4, v5
    v_lshl_add_u32 v5, v4, 8, v5
    v_bfe_u32 v6, v1, {b_half}, 1
    v_lshl_add_u32 v5, v6, 3, v5
    v_lshrrev_b32 v6, 5, v1
    v_mul_u32_u24 v6, {hlrows*256}, v6
    v_add_u32 v5, v5, v6
    s_lshl_b32 s47, s51, 16
    v_add_u32 v5, s47, v5
    """)

    if M16:
        a(f"""
        v_bfe_u32 v4, v1, 2, 2
        v_xor_b32 v5, s50, v4
        v_lshlrev_b32 v5, 6, v5
        v_lshl_add_u32 v5, v4, 8, v5
        v_and_b32 v6, 3, v1
        v_lshl_add_u32 v5, v6, {4 if kind == 'qkv' else 3}, v5
        v_lshrrev_b32 v6, 4, v1
        v_lshl_add_u32 v5, v6, {11 if wrow else 10}, v5
        v_lshrrev_b32 v6, 5, v1
        {"v_lshl_add_u32 v5, v6, 11, v5" if f32in else ""}
        s_lshl_b32 s47, s51, 16
        v_add_u32 v5, s47, v5
        """)

    def rowstart(F, e):
        if M16:
            return 32 * (F >> 1) + e * (4 if wrow else 8 if f32in else 16) + (F & 1) * (8 if kind == 'qkv' else 32) / 256
        if wrow:
            return 16 * F + 4 * e
        if kind == 'f2':
            return 16 * F + 8 * e
        return 32 * (F >> 1) + 16 * e + 8 * (F & 1)
    for r in range(2):
        for i in range(rpw // 4):
            a(f"s_add_u32 m0, s45, {1024*i}")
            a(f"s_add_u32 s47, s46, {(r*KH//2 + 4*i)*ld:#x}")
            a("buffer_load_dwordx4 v3, s[24:27], s47 offen lds")
        a("s_waitcnt vmcnt(0)")
        a("s_barrier")
        for F in range(NK // 2):
            reg = (r * NK // 2 + F) * 4
            for e in range(2):
                a(f"ds_read_b64_tr_b16 a[{reg+2*e}:{reg+2*e+1}], v5 offset:{int(rowstart(F, e)*256)}")
            if F % 4 == 3:
                a("s_waitcnt lgkmcnt(0)")
        a("s_waitcnt lgkmcnt(0)")
        a("s_barrier")
        tstamp(a, (1 if kind == 'qkv' else 4) + r)
    aseg = {'wo': 262144, 'f1': 65536, 'f2': 229376, 'qkv': 65536}[kind]
    abase = {'wo': WS_OX, 'f1': WS_H2, 'f2': WS_F, 'qkv': WS_H1}[kind]
    ND = NK // 4
    a(f"""
    v_lshlrev_b32 v2, 4, v1
    s_mul_i32 s64, s44, {ND*1024}
    s_add_u32 s46, s64, {abase:#x}
    """)
    if not wrow:
        a(f"s_mul_i32 s47, s42, {2*NK*1024}")
        a("s_add_u32 s46, s46, s47")
    a(f"""
    v_add_u32 v3, s46, v2
    s_mul_i32 s46, s51, {NK*1024}
    v_add_u32 v4, s46, v2
    v_and_b32 v6, 15, v1
    v_lshlrev_b32 v6, 4, v6
    v_lshrrev_b32 v7, 4, v1
    v_lshl_add_u32 v6, v7, 9, v6
    {"v_add_u32 v4, s46, v6" if M16 else ""}
    s_lshl_b32 s46, s50, 12
    s_add_u32 s46, s46, {L_EX}
    v_add_u32 v5, s46, v2
    """)
    if wrow:
        a(f"""
        v_and_b32 v7, 3, v1
        v_lshlrev_b32 v7, 7, v7
        v_add_u32 v7, {WS_FLG + (FC if kind == 'f1' else FL):#x}, v7
        """)
    if kind == 'qkv':
        a(f"""
        s_mul_i32 s46, s49, 24576
        s_lshl_b32 s47, s53, 13
        s_add_u32 s46, s46, s47
        s_lshl_b32 s47, s50, 10
        s_add_u32 s46, s46, s47
        s_add_u32 s46, s46, {WS_QKV:#x}
        v_and_b32 v8, 15, v1
        v_lshlrev_b32 v8, 4, v8
        v_bfe_u32 v9, v1, 4, 1
        v_lshl_add_u32 v8, v9, 12, v8
        v_lshrrev_b32 v9, 5, v1
        v_lshl_add_u32 v8, v9, 8, v8
        v_add_u32 v8, s46, v{2 if M16 else 8}
        v_add_u32 v9, {4096 if M16 else 512}, v8
        s_lshl_b32 s52, s40, 2
        s_add_u32 s52, s52, s53
        s_lshl_b32 s52, s52, 2
        s_and_b32 s47, s48, 3
        s_add_u32 s52, s52, s47
        s_lshl_b32 s52, s52, 7
        s_add_u32 s52, s52, {WS_FLG + FQ:#x}
        s_add_u32 s52, s52, s76
        v_mov_b32 v116, -1
        v_mov_b32 v117, -1
        v_mov_b32 v118, -1
        v_mov_b32 v119, -1
        s_lshl_b32 s46, s49, 12
        s_lshl_b32 s47, s50, 10
        s_add_u32 s46, s46, s47
        s_add_u32 s46, s46, {WS_MKV:#x}
        v_add_u32 v64, s46, v2
        s_and_b32 s46, s48, 3
        s_lshl_b32 s46, s46, 16
        s_lshl_b32 s47, s50, 14
        s_add_u32 s46, s46, s47
        s_lshl_b32 s47, s40, 8
        s_add_u32 s46, s46, s47
        s_add_u32 s46, s46, {WS_G:#x}
        v_and_b32 v65, 15, v1
        v_lshlrev_b32 v65, 4, v65
        v_lshrrev_b32 v66, 4, v1
        v_lshl_add_u32 v65, v66, 11, v65
        v_add_u32 v65, s46, v65
        s_cmp_eq_u32 s53, 2
        s_cselect_b64 vcc, -1, 0
        v_cndmask_b32 v64, v64, v65, vcc
        v_add_u32 v65, 8192, v64
        s_lshl_b32 s73, s53, 17
        s_mul_i32 s58, s74, s73
        s_lshl_b32 s46, s53, 3
        s_sub_u32 s46, {KA['w2']}, s46
        s_load_dwordx2 s[8:9], s[0:1], s46
        v_lshlrev_b32 v66, 7, v1
        s_mul_i32 s57, s49, 229376
        s_waitcnt lgkmcnt(0)
        """)
        srd(a, 32, 8, 9, 1024 * 7168)
        a(f"""
        """)
    elif kind == 'f1':
        a(f"""
        s_lshl_b32 s46, s49, 13
        s_lshl_b32 s47, s50, 11
        s_add_u32 s46, s46, s47
        s_add_u32 s46, s46, {WS_F:#x}
        v_add_u32 v8, s46, v{6 if M16 else 2}
        s_lshl_b32 s52, s49, 7
        s_add_u32 s52, s52, {WS_FLG + FF1:#x}
        s_add_u32 s52, s52, s76
        """)
        srd(a, 28, 6, 7, 7168)
        a(f"""
        s_lshl_b32 s46, s49, 8
        s_lshl_b32 s47, s50, 6
        s_add_u32 s46, s46, s47
        v_lshrrev_b32 v9, {4 if M16 else 5}, v1
        v_lshlrev_b32 v9, 3, v9
        """)
        for rr in range(4):
            a(f"buffer_load_dwordx2 v[{32+2*rr}:{33+2*rr}], v9, s[28:31], s46 offen offset:{32*(rr&1) if M16 else 16*rr}")
        a(f"v_add_u32 v9, {256 if M16 else 1024}, v8")
        a("""
        s_mov_b32 s56, 0xbdd2d3e8
        s_mov_b32 s57, 0xbdd2d3e8
        v_mov_b32 v112, 0xc0135761
        v_mov_b32 v113, 0xc0135761
        s_waitcnt vmcnt(0)
        """)
        for i in range(8):
            a(f"v_lshlrev_b32 v{64+2*i}, 16, v{32+i}")
            a(f"v_and_b32 v{65+2*i}, 0xffff0000, v{32+i}")
    else:
        if kind == 'wo':
            a(f"""
            v_and_b32 v7, 7, v1
            v_lshlrev_b32 v7, 9, v7
            s_lshl_b32 s46, s42, 12
            s_add_u32 s46, s46, {WS_FLG + FA:#x}
            v_add_u32 v7, s46, v7
            """)
        else:
            a(f"""
            v_min_u32 v7, 6, v1
            v_lshlrev_b32 v7, 7, v7
            s_mul_i32 s46, s42, {7*128}
            s_add_u32 s46, s46, {WS_FLG + FF1:#x}
            v_add_u32 v7, s46, v7
            """)
        a(f"""
        s_lshl_b32 s46, s42, 16
        s_lshl_b32 s47, s43, 11
        s_add_u32 s46, s46, s47
        s_lshl_b32 s47, s50, 9
        s_add_u32 s46, s46, s47
        s_add_u32 s46, s46, {WS_P1 if kind == 'wo' else WS_P2:#x}
        v_and_b32 v8, 31, v1
        v_lshlrev_b32 v8, 4, v8
        v_lshrrev_b32 v9, 5, v1
        v_lshl_add_u32 v8, v9, 14, v8
        v_add_u32 v8, s46, v8
        v_add_u32 v9, 0x8000, v8
        s_lshl_b32 s52, s43, 9
        s_lshl_b32 s47, s42, 7
        s_add_u32 s52, s52, s47
        s_add_u32 s52, s52, {WS_FLG + (FW if kind == 'wo' else FF2):#x}
        s_add_u32 s52, s52, s76
        """)
    oseg = {'f1': 229376, 'qkv': 786432}.get(kind, 262144)
    a(f"""
    s_mov_b32 s60, s74
    s_mul_i32 s61, s74, {aseg}
    s_mov_b32 s62, s74
    s_mul_i32 s63, s74, {oseg}
    s_mov_b32 s67, 0
    s_mov_b32 s68, 3
    s_mov_b32 s71, 0
    v_mov_b32 v15, {L_BC}
    v_mov_b32 v14, 0
    ds_write_b32 v15, v14 offset:4
    ds_write_b32 v15, v14 offset:12
    ds_write_b32 v15, v14 offset:16
    v_mov_b32 v114, 1
    s_mov_b32 s72, 0
    """)

    def dma_if(lim):
        sk = a.lab("g_nd")
        a(f"""
        s_mov_b32 s69, 0
        s_cmp_gt_u32 s62, s{lim}
        s_cbranch_scc1 {sk}
        s_cmp_ge_u32 s62, s66
        s_cbranch_scc1 {sk}
        s_add_u32 s47, s61, 4096
        """)
        for hf in range(2):
            a(f"s_add_u32 m0, s64, {4096*hf}")
            a("s_nop 0")
            for i in range(4):
                if i + 4 * hf < min(ND, E("XDMA", 8)):
                    a(f"buffer_load_dwordx4 v3, s[12:15], s{61 if hf == 0 else 47} offen offset:{1024*i} sc1 lds")
        a(f"""
        s_add_u32 s61, s61, {aseg}
        s_add_u32 s62, s62, 1
        s_xor_b32 s64, s64, 0x10000
        s_mov_b32 s69, 1
        {sk}:
        """)

    NL = 3

    def arrive(off):
        a("s_mov_b64 exec, 1")
        a(f"ds_add_u32 v15, v114 offset:{off}")
        a("s_mov_b64 exec, -1")

    def await_(off, n):
        lp = a.lab("g_aw")
        a(f"""
        s_add_u32 s72, s72, {n}
        s_mov_b32 s70, 0
        {lp}:
        ds_read_b32 v115, v15 offset:{off}
        s_add_u32 s70, s70, 1
        s_cmp_ge_u32 s70, {TMO * 16}
        s_cbranch_scc1 {done}
        s_waitcnt lgkmcnt(0)
        v_cmp_ne_u32 vcc, s72, v115
        s_nop 0
        s_cbranch_vccnz {lp}
        """)

    def look_issue(first):
        a(f"s_add_u32 s54, s60, {first}")
        for i in range(NL):
            a(f"s_add_u32 s55, s54, {i}")
            phase_off(a, 46, 55, kind)
            a(f"buffer_load_dword v{11+i}, v7, s[12:15], s46 offen sc1")

    def look_eval():
        dn = a.lab("g_le")
        a("s_mov_b32 s46, s54")
        for i in range(3):
            a(f"v_cmp_ge_u32 vcc, s46, v{11 + min(i, NL - 1)}")
            a("s_nop 0")
            a(f"s_cbranch_vccnz {dn}")
            a("s_add_u32 s46, s46, 1")
        a(f"{dn}:")
        a("s_min_u32 s46, s46, s75")
        a("v_mov_b32 v11, s46")
        a("ds_write_b32 v15, v11")

    def epi_reads():
        for i in range(4):
            a(f"ds_read_b128 v[{80+4*i}:{83+4*i}], v5 offset:{1024*i}")

    def epi_head(reads=True):
        if reads:
            epi_reads()
            a("s_nop 7")
        for q in range(4):
            a(f"s_waitcnt lgkmcnt({3-q})")
            for i in range(4):
                a(f"v_add_f32 v{80+4*q+i}, v{80+4*q+i}, v{16+4*q+i}")

    def epi_tail():
        e = []
        for h in range(2):
            R = 80 + 8 * h
            if kind == 'f1':
                T = 96

                def rnd():
                    for i in range(8):
                        e.append(f"v_cvt_pk_bf16_f32 v{R+i}, 0, v{R+i}")
                if not CB:
                    rnd()
                    for i in range(8):
                        e.append(f"v_add_f32 v{R+i}, v{R+i}, v{64+8*h+i}")
                    rnd()
                for op in ("v_mul_f32 v{t}, v{r}, v{r}", "v_fma_f32 v{t}, v{t}, s56, v112", "v_mul_f32 v{t}, v{t}, v{r}",
                           "v_exp_f32 v{t}, v{t}", "v_add_f32 v{t}, 1.0, v{t}", "v_rcp_f32 v{t}, v{t}", "v_mul_f32 v{r}, v{r}, v{t}"):
                    for i in range(8):
                        e.append(op.format(t=T + i, r=R + i))
            if wrow:
                for i in range(4):
                    e.append(f"v_cvt_pk_bf16_f32 v{104+4*h+i}, v{R+2*i}, v{R+2*i+1}")
                if not (E("XNOST", 0) and kind == 'qkv'):
                    e.append(f"buffer_store_dwordx4 v[{104+4*h}:{107+4*h}], v{8+h}, s[12:15], s63 offen {'' if E('XPL', 0) and kind == 'qkv' else 'sc1'}")
            else:
                o = 104 + 4 * h
                for i in range(4):
                    e.append(f"v_cvt_pk_bf16_f32 v{o+i}, v{R+2*i}, v{R+2*i+1}")
                e.append("s_nop 1")
                e.append(f"v_permlane{16 if M16 else 32}_swap_b32 v{o}, v{o+2}")
                e.append(f"v_permlane{16 if M16 else 32}_swap_b32 v{o+1}, v{o+3}")
                e.append(f"buffer_store_dwordx4 v[{o}:{o+3}], v{(8, 9)[h]}, s[12:15], s63 offen sc1")
        e.append(f"s_add_u32 s63, s63, {oseg}")
        if kind == 'qkv':
            sk = a.lab("g_pf")
            e.append("s_cmp_eq_u32 s53, 0")
            e.append(f"s_cbranch_scc1 {sk}")
            e.append("buffer_store_dwordx4 v[116:119], v64, s[12:15], s58 offen sc1")
            e.append("s_cmp_eq_u32 s53, 1")
            e.append(f"s_cbranch_scc1 {sk}")
            e.append("buffer_store_dwordx4 v[116:119], v65, s[12:15], s58 offen sc1")
            e.append(f"{sk}:")
            e.append("s_add_u32 s58, s58, s73")
        return e
    NPRE = E("NPRE", 36) if kind == 'f1' else 1000
    split = kind == 'f1'
    D = E("DD", 12) if M16 else 8
    FR = [32 + 4 * i for i in range(8)] + [72, 76, 120, 124]

    def aoff(n):
        return 2048 * (n >> 1) + 256 * (n & 1) if M16 else 1024 * n

    def areads():
        for i in range(D):
            a(f"ds_read_b128 v[{FR[i]}:{FR[i]+3}], v4 offset:{aoff(i)}")

    def areads_if_late():
        sk = a.lab("g_pr")
        a("s_cmp_eq_u32 s65, 0")
        a(f"s_cbranch_scc1 {sk}")
        areads()
        a(f"{sk}:")

    def mfmas(extra=(), vm=0, bias=False, prio=None):
        extra = list(extra)
        a(f"s_setprio {E('PM', 1) if prio is None else prio}")
        for ks in range(NK):
            WG_ = E("WGRP", 4) if M16 else 2
            if ks % WG_ == 0:
                a(f"s_waitcnt lgkmcnt({max(0, min(D - WG_, NK - WG_ - ks))})")
            f = FR[ks % D]
            cc = ("v[64:79]" if bias else "0") if ks == 0 else "v[16:31]"
            def fill(budget):
                cost = 0
                while extra and cost < budget:
                    x = extra.pop(0)
                    cost += 2 if ("v_exp" in x or "v_rcp" in x) else 1
                    a(x)
            if E("XNOMM", 0) and ks > 1:
                a("s_nop 7")
            elif M16:
                for cti in range(2):
                    ct = cti ^ (ks & 1) if E("SNAKE", 1) else cti
                    c = 16 + 8 * (ks & 1) + 4 * ct
                    w = 8 * (ks >> 1) + 4 * ct
                    cc = (f"v[{64+4*ct}:{67+4*ct}]" if bias else "0") if ks < 2 else f"v[{c}:{c+3}]"
                    if wrow:
                        a(f"v_mfma_f32_16x16x32_bf16 v[{c}:{c+3}], a[{w}:{w+3}], v[{f}:{f+3}], {cc}")
                    else:
                        a(f"v_mfma_f32_16x16x32_bf16 v[{c}:{c+3}], v[{f}:{f+3}], a[{w}:{w+3}], {cc}")
                    if cti == 0:
                        fill(E("GAPC", 4) // 2)
            elif wrow:
                a(f"v_mfma_f32_32x32x16_bf16 v[16:31], a[{4*ks}:{4*ks+3}], v[{f}:{f+3}], {cc}")
            else:
                a(f"v_mfma_f32_32x32x16_bf16 v[16:31], v[{f}:{f+3}], a[{4*ks}:{4*ks+3}], {cc}")
            if ks + D < NK:
                a(f"ds_read_b128 v[{f}:{f+3}], v4 offset:{aoff(ks+D)}")
            fill((E("GAPC", 4) + 1) // 2 if M16 else E("GAPC", 4))
        for x in extra:
            a(x)
        a("v_xor_b32 v4, 0x10000, v4")
        a(f"s_setprio {E('PO', 0)}")
        cstamp(a, 2, kind, 1)
        a(f"s_waitcnt vmcnt({vm})")
        cstamp(a, 3, kind, 1)
    restart, nsp, g1r, loop0, loop1, tail, g1f = (a.lab("g_" + x) for x in ("restart", "nsp", "g1r", "loop0", "loop1", "tail", "g1f"))
    sp = a.lab("g_sp")
    if kind == 'qkv':
        zwait(a, done, 10)
    cstamp(a, 0, kind)
    a(f"""
    {restart}:
    s_cmp_lg_u32 s44, 0
    s_cbranch_scc1 {nsp}
    s_mov_b32 s70, 0
    {sp}:
    """)
    look_issue(0)
    a(f"""
    s_waitcnt vmcnt(0)
    v_cmp_ge_u32 vcc, s60, v11
    s_add_u32 s70, s70, 1
    s_cbranch_vccz {sp}_ok
    s_sleep {SPIN}
    s_cmp_lt_u32 s70, {TMO}
    s_cbranch_scc1 {sp}
    s_branch {done}
    {sp}_ok:
    """)
    look_eval()
    a(f"""
    {nsp}:
    s_waitcnt lgkmcnt(0)
    s_barrier
    ds_read_b32 v14, v15
    s_waitcnt lgkmcnt(0)
    v_readfirstlane_b32 s66, v14
    s_nop 3
    """)
    a(f"{restart}_go:")
    wstamp(a, 10, 1, kind)
    dma_if(60)
    a(f"""
    s_cmp_eq_u32 s51, 1
    s_cbranch_scc1 {g1r}
    s_add_u32 s59, s60, 1
    """)
    dma_if(59)
    w0 = a.lab("g_w0")
    a(f"""
    s_cmp_eq_u32 s69, 1
    s_cbranch_scc1 {w0}
    s_waitcnt vmcnt(0)
    {w0}:
    s_waitcnt vmcnt({ND})
    """)
    a(f"""
    s_mov_b32 s65, 1
    """)
    a.align(E("PADG", 0))
    a(f"""
    {loop0}:
    s_barrier
    """)
    wstamp(a, 10, 2, kind)
    cstamp(a, 1, kind, 1)
    areads_if_late()
    a("ds_read_b32 v14, v15")
    sk = a.lab("g_nl")
    a(f"s_cmp_lg_u32 s44, 0")
    a(f"s_cbranch_scc1 {sk}")
    look_issue(1)
    a(f"{sk}:")
    mfmas(bias=(kind == 'f1' and CB), prio=E('PM0', 2))
    ne = a.lab("g_ne")
    nw = a.lab("g_nw")
    ex0 = a.lab("g_ex0")
    a("v_readfirstlane_b32 s66, v14")
    if SOFT:
        arrive(12)
        await_(12, 8)
    else:
        a("s_barrier")
        a("s_nop 6")
    cstamp(a, 4, kind, 1)
    def g0_w():
        for i in range(4):
            a(f"ds_write_b128 v5, v[{16+4*i}:{19+4*i}] offset:{1024*i}")
        a(f"""
        s_cmp_lg_u32 s44, 0
        s_cbranch_scc1 {ne}
        """)
        look_eval()
        a(f"{ne}:")
    if E("WFIRST", 1):
        g0_w()
    a("s_add_u32 s60, s60, 1")
    dma_if(60)
    a("s_mov_b32 s65, s69")
    a("s_add_u32 s59, s60, 1")
    dma_if(59)
    if not E("WFIRST", 1):
        g0_w()
    if kind == 'qkv' and E("GPF", 0):
        np_ = a.lab("g_np")
        a(f"""
        s_cmp_lg_u32 s44, 1
        s_cbranch_scc1 {np_}
        s_cmp_eq_u32 s53, 1
        s_cbranch_scc1 {np_}
        s_sub_u32 s46, s60, {E("GPF0", 12)}
        s_cmp_ge_u32 s46, 28
        s_cbranch_scc1 {np_}
        buffer_load_dword v67, v66, s[32:35], s57 offen
        s_add_u32 s57, s57, 8192
        {np_}:
        """)
    a(f"""
    s_cmp_le_u32 s66, s60
    s_cbranch_scc1 {ex0}
    s_cmp_eq_u32 s65, 0
    s_cbranch_scc1 {nw}
    s_waitcnt vmcnt(0) lgkmcnt(0)
    s_branch {loop0}
    {nw}:
    """)
    areads()
    a(f"s_waitcnt lgkmcnt({D})")
    if E("STAMP", 0) == 4:
        a("s_sub_u32 s60, s60, 1")
        cstamp(a, 5, kind, 1)
        a("s_add_u32 s60, s60, 1")
    a(f"""
    s_branch {loop0}
    {ex0}:
    s_cmp_lg_u32 s44, 0
    s_cbranch_scc1 {ex0}_n
    s_sleep {E("SLX", 6)}
    """)
    look_issue(0)
    a("s_waitcnt vmcnt(0)")
    look_eval()
    a(f"""
    {ex0}_n:
    s_waitcnt lgkmcnt(0)
    s_barrier
    ds_read_b32 v14, v15
    s_waitcnt lgkmcnt(0)
    v_readfirstlane_b32 s66, v14
    s_barrier
    s_cmp_gt_u32 s66, s60
    s_cbranch_scc1 {restart}_go
    s_branch {tail}
    """)
    def drain_flag():
        sk = a.lab("g_df")
        a(f"""
        v_mov_b32 v10, 1
        s_mov_b64 exec, 1
        s_waitcnt vmcnt(0)
        ds_add_rtn_u32 v10, v15, v10 offset:4
        s_waitcnt lgkmcnt(0)
        v_readfirstlane_b32 s46, v10
        s_mov_b64 exec, -1
        s_mov_b32 s71, 0
        s_sub_u32 s59, s60, 1
        s_cmp_lg_u32 s46, s68
        s_cbranch_scc1 {sk}
        """)
        set_flag(a, 52, 59, 10, wave=None)
        wstamp(a, 10, 0, kind, 59)
        a(f"{sk}:")
        a("s_add_u32 s68, s68, 4")
    nfl, nep, nw1, mm2, jn = (a.lab("g_" + x) for x in ("nfl", "nep", "nw1", "mm2", "jn"))
    FB = 2 if split and not E('F1E', 0) else 1
    a(f"""
    {g1r}:
    s_mov_b32 s65, 1
    s_branch {loop1}_e
    """)
    a.align(E("PADG", 0))
    a(f"""
    {loop1}:
    s_mov_b32 s65, 0
    {loop1}_e:
    s_barrier
    """)
    cstamp(a, 1, kind, 1)
    a("ds_read_b32 v14, v15")
    if SOFT:
        epi_reads()
        arrive(12)
    a(f"""
    s_bitcmp1_b32 s67, {FB}
    s_cbranch_scc0 {nfl}
    s_sub_u32 s59, s60, {FB+1}
    """)
    set_flag(a, 52, 59, 10, wave=4)
    wstamp(a, 10, 0, kind, 59)
    a(f"""
    {nfl}:
    s_cmp_eq_u32 s71, 0
    s_cbranch_scc1 {nfl}_d
    """)
    drain_flag()
    a("s_mov_b32 s65, 2")
    a(f"{nfl}_d:")

    def g1_dma():
        a("""
        s_waitcnt lgkmcnt(0)
        v_readfirstlane_b32 s66, v14
        s_nop 3
        """)
        dma_if(60)
        a("s_or_b32 s65, s65, s69")
        a("s_add_u32 s59, s60, 1")
        dma_if(59)
    if E("DFIRST", 1):
        g1_dma()
    a(f"""
    s_bitcmp1_b32 s67, 0
    s_cbranch_scc0 {nep}
    """)
    epi_head(not SOFT)
    tail_ops = epi_tail()
    if not split:
        for x in tail_ops:
            a(x)
    if kind == 'qkv' and E("EARLY", 1):
        a("s_cmp_gt_u32 s60, 2")
        a(f"s_cbranch_scc1 {nep}")
        drain_flag()
    a(f"{nep}:")
    if not E("DFIRST", 1):
        g1_dma()
    if split:
        for x in tail_ops[:NPRE]:
            a(x)
    a(f"""
    s_cmp_eq_u32 s65, 0
    s_cbranch_scc1 {nw1}
    s_cmp_eq_u32 s65, 2
    s_cbranch_scc1 {nw1}_w
    s_waitcnt vmcnt(0)
    {nw1}_w:
    """)
    if SOFT:
        arrive(16)
        await_(16, 4)
        a(f"{nw1}:")
        areads()
        cstamp(a, 5, kind, 1)
    else:
        a("s_barrier")
        areads()
        a(f"""
        s_branch {jn}
        {nw1}:
        """)
        areads()
        cstamp(a, 5, kind, 1)
        a(f"""
        s_barrier
        {jn}:
        """)
    cstamp(a, 4, kind, 1)
    if split:
        a(f"""
        s_bitcmp1_b32 s67, 0
        s_cbranch_scc1 {mm2}
        """)
        mfmas()
        a(f"s_branch {mm2}_d")
        a(f"{mm2}:")
        mfmas(tail_ops[NPRE:], vm=0 if E('F1E', 0) else 2)
        a(f"{mm2}_d:")
    else:
        mfmas()
    a(f"""
    s_lshl_b32 s67, s67, 1
    s_or_b32 s67, s67, 1
    s_add_u32 s60, s60, 1
    s_cmp_gt_u32 s66, s60
    s_cbranch_scc1 {loop1}
    s_barrier
    ds_read_b32 v14, v15
    s_waitcnt lgkmcnt(0)
    v_readfirstlane_b32 s66, v14
    s_barrier
    """)
    dma_if(60)
    a("s_sub_u32 s59, s60, 1")
    wstamp(a, 10, 3, kind, 59)
    epi_head()
    for x in epi_tail():
        a(x)
    a(f"""
    s_mov_b32 s67, 0
    s_mov_b32 s71, 1
    s_cmp_gt_u32 s66, s60
    {"s_cbranch_scc1 " + g1r if E("DEFER", 1) else ""}
    """)
    drain_flag()
    a(f"""
    s_cmp_gt_u32 s66, s60
    s_cbranch_scc1 {g1r}
    {tail}:
    s_cmp_lt_u32 s60, s75
    s_cbranch_scc1 {restart}
    s_waitcnt vmcnt(0)
    s_barrier
    """)
    cstamp(a, 7, kind)
    a(f"s_branch {fin}")


LH = 32768


def rnd16(a, base):
    for i in range(16):
        a(f"v_cvt_pk_bf16_f32 v{base+i}, 0, v{base+i}")


def pk16(a, op, d, x, y, bcast=False, neg=False):
    for i in range(0, 16, 2):
        if bcast:
            yy = y & ~1
            sel = "op_sel:[0,1] op_sel_hi:[1,1]" if y & 1 else "op_sel_hi:[1,0]"
            a(f"{op} v[{d+i}:{d+i+1}], v[{x+i}:{x+i+1}], v[{yy}:{yy+1}] {sel}" + (" neg_lo:[0,1] neg_hi:[0,1]" if neg else ""))
        else:
            a(f"{op} v[{d+i}:{d+i+1}], v[{x+i}:{x+i+1}], v[{y+i}:{y+i+1}]")


def modload(a, base, idx):
    a(f"s_mov_b32 s46, {WS_MOD + idx*4096}")
    for half in range(2):
        for q in range(2):
            r = base + half * 8 + q * 4
            a(f"buffer_load_dwordx4 v[{r}:{r+3}], v3, s[12:15], s46 offen offset:{half*2048 + q*16} sc1")


def ln_consts(a, dst):
    a(f"""
    s_mul_i32 s46, s44, 2064
    s_add_u32 s46, s46, {LH}
    v_add_u32 v10, s46, v2
    v_and_b32 v11, 7, v1
    v_lshrrev_b32 v12, 3, v1
    v_mul_u32_u24 v13, 2064, v11
    v_lshl_add_u32 v13, v12, 4, v13
    s_lshl_b32 s46, s44, 8
    s_add_u32 s46, s46, {LH}
    v_add_u32 v13, s46, v13
    v_lshlrev_b32 v11, 4, v11
    v_lshl_add_u32 v11, v12, 9, v11
    s_lshl_b32 s46, s44, 13
    s_lshl_b32 s47, s42, 7
    s_add_u32 s46, s46, s47
    s_add_u32 s46, s46, {dst:#x}
    v_add_u32 v11, s46, v11
    v_add_u32 v12, 4096, v11
    """)


def ln_tail(a):
    for i in range(8):
        a(f"v_lshlrev_b32 v{64+2*i}, 16, v{96+i}")
        a(f"v_and_b32 v{65+2*i}, 0xffff0000, v{96+i}")
    for i in range(4):
        a(f"v_pk_add_f32 v[{80+2*i}:{81+2*i}], v[{64+2*i}:{65+2*i}], v[{72+2*i}:{73+2*i}]")
    a("v_pk_add_f32 v[80:81], v[80:81], v[84:85]")
    a("v_pk_add_f32 v[82:83], v[82:83], v[86:87]")
    a("v_pk_add_f32 v[80:81], v[80:81], v[82:83]")
    a("v_add_f32 v14, v80, v81")
    wave_sum_to_sgpr(a, 14, 46)
    a("""
    s_nop 1
    v_mov_b32 v15, s46
    v_mul_f32 v15, 0x3a800000, v15
    """)
    pk16(a, "v_pk_add_f32", 80, 64, 15, bcast=True, neg=True)
    a("v_pk_mul_f32 v[104:105], v[80:81], v[80:81]")
    a("v_pk_mul_f32 v[106:107], v[82:83], v[82:83]")
    for i in range(4, 16, 2):
        d = 104 + (i & 2)
        a(f"v_pk_fma_f32 v[{d}:{d+1}], v[{80+i}:{81+i}], v[{80+i}:{81+i}], v[{d}:{d+1}]")
    a("v_pk_add_f32 v[104:105], v[104:105], v[106:107]")
    a("v_add_f32 v14, v104, v105")
    rnd_bf16(a, 15)
    wave_sum_to_sgpr(a, 14, 47)
    pk16(a, "v_pk_add_f32", 64, 64, 15, bcast=True, neg=True)
    a("""
    v_mov_b32 v14, s47
    v_mul_f32 v14, 0x3a800000, v14
    """)
    rnd_bf16(a, 14)
    a("v_add_f32 v14, 0x3727c5ac, v14")
    rnd_bf16(a, 14)
    a("v_sqrt_f32 v14, v14")
    a("s_nop 0")
    rnd_bf16(a, 14)
    a("v_rcp_f32 v14, v14")
    rnd16(a, 64)
    pk16(a, "v_pk_mul_f32", 64, 64, 14, bcast=True)
    rnd16(a, 64)
    pk16(a, "v_pk_mul_f32", 64, 64, 32)
    rnd16(a, 64)
    pk16(a, "v_pk_add_f32", 64, 64, 48)
    for i in range(8):
        a(f"v_cvt_pk_bf16_f32 v{104+i}, v{64+2*i}, v{65+2*i}")
    a(f"""
    ds_write_b128 v10, v[104:107]
    ds_write_b128 v10, v[108:111] offset:1024
    s_waitcnt lgkmcnt(0)
    s_barrier
    ds_read_b128 v[104:107], v13
    ds_read_b128 v[108:111], v13 offset:128
    s_waitcnt lgkmcnt(1)
    buffer_store_dwordx4 v[104:107], v11, s[12:15], s63 offen sc1
    s_waitcnt lgkmcnt(0)
    buffer_store_dwordx4 v[108:111], v12, s[12:15], s63 offen sc1
    s_waitcnt vmcnt(0)
    s_barrier
    """)
    set_flag(a, 52, 60, 14)


def row_off(a, v):
    a(f"""
    s_lshl_b32 s46, s42, 3
    s_add_u32 s46, s46, s44
    s_lshl_b32 s46, s46, 11
    v_add_u32 v{v}, s46, v2
    """)


L_M1 = 140000 // 256 * 256


def mod1_issue(a):
    a(f"""
    s_load_dwordx4 s[8:11], s[0:1], {KA['c']}
    v_lshrrev_b32 v5, 3, v0
    v_mul_u32_u24 v6, {2*12288}, v5
    v_and_b32 v7, 7, v0
    v_lshl_add_u32 v6, v7, 4, v6
    v_add_u32 v7, 12288, v6
    v_lshlrev_b32 v5, 2, v5
    s_lshr_b32 s50, s2, 5
    s_and_b32 s51, s2, 31
    s_mul_i32 s52, s50, {128*12288}
    s_lshl_b32 s53, s51, 7
    s_add_u32 s52, s52, s53
    s_lshl_b32 s53, s50, 8
    s_waitcnt lgkmcnt(0)
    """)
    srd(a, 28, 10, 11, 1024 * 12288)
    srd(a, 32, 8, 9, 2048)
    a("""
    buffer_load_dword v8, v5, s[32:35], s53 offen
    buffer_load_dwordx4 v[12:15], v6, s[28:31], s52 offen
    buffer_load_dwordx4 v[16:19], v7, s[28:31], s52 offen
    """)


def mod1_finish(a):
    a("""
    s_waitcnt vmcnt(0)
    v_lshlrev_b32 v9, 16, v8
    v_and_b32 v10, 0xffff0000, v8
    v_mul_f32 v20, 0xbfb8aa3b, v9
    v_mul_f32 v21, 0xbfb8aa3b, v10
    v_exp_f32 v20, v20
    v_exp_f32 v21, v21
    s_nop 0
    v_add_f32 v20, 1.0, v20
    v_add_f32 v21, 1.0, v21
    v_rcp_f32 v20, v20
    v_rcp_f32 v21, v21
    s_nop 0
    v_mul_f32 v9, v9, v20
    v_mul_f32 v10, v10, v21
    """)
    rnd_bf16(a, 9)
    rnd_bf16(a, 10)
    for p in range(4):
        a(f"v_lshlrev_b32 v28, 16, v{12+p}")
        a(f"v_and_b32 v29, 0xffff0000, v{12+p}")
        a(f"v_lshlrev_b32 v30, 16, v{16+p}")
        a(f"v_and_b32 v31, 0xffff0000, v{16+p}")
        a(f"v_mul_f32 v{20+2*p}, v28, v9")
        a(f"v_mul_f32 v{21+2*p}, v29, v9")
        a(f"v_fmac_f32 v{20+2*p}, v30, v10")
        a(f"v_fmac_f32 v{21+2*p}, v31, v10")
    a("s_nop 1")
    for i in range(8):
        a(f"v_add_f32_dpp v{20+i}, v{20+i}, v{20+i} row_ror:8 row_mask:0xf bank_mask:0xf")
    a("s_nop 1")
    for i in range(4):
        a(f"v_permlane16_swap_b32 v{20+i}, v{24+i}")
    for i in range(4):
        a(f"v_add_f32 v{20+i}, v{20+i}, v{24+i}")
    a("s_nop 1")
    for i in range(2):
        a(f"v_permlane32_swap_b32 v{20+i}, v{22+i}")
    for i in range(2):
        a(f"v_add_f32 v{20+i}, v{20+i}, v{22+i}")
    sk = a.lab("m1")
    a(f"""
    v_and_b32 v22, 7, v1
    v_lshlrev_b32 v22, 5, v22
    v_bfe_u32 v23, v1, 4, 1
    v_lshl_add_u32 v22, v23, 4, v22
    v_lshrrev_b32 v23, 5, v1
    v_lshl_add_u32 v22, v23, 3, v22
    s_lshl_b32 s52, s44, 8
    s_add_u32 s52, s52, {L_M1}
    v_add_u32 v22, s52, v22
    ds_write_b64 v22, v[20:21]
    s_waitcnt lgkmcnt(0)
    s_barrier
    s_cmp_lg_u32 s44, 1
    s_cbranch_scc1 {sk}
    v_lshlrev_b32 v22, 2, v1
    v_add_u32 v23, {L_M1}, v22
    """)
    for i in range(8):
        a(f"ds_read_b32 v{24+i}, v23 offset:{256*i}")
    a("s_waitcnt lgkmcnt(0)")
    for st in (4, 2, 1):
        for i in range(st):
            a(f"v_add_f32 v{24+i}, v{24+i}, v{24+st+i}")
    a(f"""
    s_lshl_b32 s52, s2, 8
    s_add_u32 s52, s52, {WS_MODP:#x}
    buffer_store_dword v24, v22, s[12:15], s52 offen sc1
    {sk}:
    """)


def mod_issue(a):
    for i in range(16):
        a(f"s_add_u32 s46, s53, {i*12288}")
        a(f"buffer_load_dwordx4 v[{32+4*i}:{35+4*i}], v4, s[28:31], s46 offen")


def mod_finish(a, younger):
    for i in range(16):
        a(f"s_waitcnt vmcnt({younger + 15 - i})")
        for p in range(4):
            w = 32 + 4 * i + p
            a(f"v_lshlrev_b32 v104, 16, v{w}")
            a(f"v_and_b32 v105, 0xffff0000, v{w}")
            if i == 0:
                a(f"v_mul_f32 v{96+2*p}, v104, v16")
                a(f"v_mul_f32 v{97+2*p}, v105, v16")
            else:
                a(f"v_fmac_f32 v{96+2*p}, v104, v{16+i}")
                a(f"v_fmac_f32 v{97+2*p}, v105, v{16+i}")
    sk = a.lab("m_sk")
    a("""
    v_lshlrev_b32 v104, 5, v0
    ds_write_b128 v104, v[96:99]
    ds_write_b128 v104, v[100:103] offset:16
    v_lshlrev_b32 v105, 2, v1
    s_lshl_b32 s46, s44, 11
    v_add_u32 v104, s46, v105
    s_waitcnt lgkmcnt(0)
    """)
    for i in range(8):
        a(f"ds_read_b32 v{96+i}, v104 offset:{256*i}")
    a("s_waitcnt lgkmcnt(0)")
    for st in (4, 2, 1):
        for i in range(st):
            a(f"v_add_f32 v{96+i}, v{96+i}, v{96+st+i}")
    a(f"""
    v_lshlrev_b32 v104, 2, v0
    ds_write_b32 v104, v96 offset:16384
    s_waitcnt lgkmcnt(0)
    s_barrier
    s_cmp_lg_u32 s44, 0
    s_cbranch_scc1 {sk}
    """)
    for i in range(8):
        a(f"ds_read_b32 v{96+i}, v105 offset:{16384 + 256*i}")
    a("s_waitcnt lgkmcnt(0)")
    for st in (4, 2, 1):
        for i in range(st):
            a(f"v_add_f32 v{96+i}, v{96+i}, v{96+st+i}")
    rnd_bf16(a, 96)
    a(f"""
    s_lshl_b32 s46, s53, 1
    buffer_store_dword v96, v105, s[12:15], s46 offen sc1
    {sk}:
    """)


def ln1_role(a, done):
    assert WS_MOD == 0
    a(f"""
    s_load_dwordx2 s[4:5], s[0:1], {KA['x']}
    v_lshlrev_b32 v2, 4, v1
    v_lshlrev_b32 v3, 5, v1
    s_lshl_b32 s55, s43, 2
    s_add_u32 s55, s55, s42
    s_waitcnt lgkmcnt(0)
    """)
    srd(a, 24, 4, 5, 2048 * 2048)
    row_off(a, 7)
    a("s_lshl_b32 s63, s43, 16")
    a("buffer_load_dwordx4 a[0:3], v7, s[24:27], s63 offen")
    a("buffer_load_dwordx4 a[4:7], v7, s[24:27], s63 offen offset:1024")
    tstamp(a, 1)
    zwait(a, done, 8)
    a("s_barrier")
    tstamp(a, 2)
    a("v_lshlrev_b32 v4, 4, v0")
    for k in range(8):
        a(f"s_mov_b32 s46, {WS_MODP + 8192*k:#x}")
        a(f"buffer_load_dwordx4 v[{32+4*k}:{35+4*k}], v4, s[12:15], s46 offen sc1")
    nx = a.lab("l_nx")
    a(f"""
    s_cmp_lg_u32 s44, 0
    s_cbranch_scc1 {nx}
    s_cmp_ge_u32 s42, 2
    s_cbranch_scc1 {nx}
    s_or_b32 s47, s39, 0x100
    v_mov_b32 v8, s47
    v_mov_b32 v9, 0
    s_lshl_b32 s46, s40, 3
    s_lshl_b32 s47, s42, 2
    s_add_u32 s46, s46, s47
    s_add_u32 s46, s46, {WS_CTL + 4096 + 512:#x}
    s_mov_b64 exec, 1
    buffer_store_dword v8, v9, s[12:15], s46 offen sc1
    s_mov_b64 exec, -1
    {nx}:
    """)
    ln_consts(a, WS_H1)
    a(f"""
    s_lshl_b32 s52, s43, 9
    s_lshl_b32 s47, s42, 7
    s_add_u32 s52, s52, s47
    s_add_u32 s52, s52, {WS_FLG + FL:#x}
    s_mov_b32 s60, s43
    s_waitcnt vmcnt(0)
    """)
    for st in (16, 8, 4):
        for i in range(st):
            a(f"v_add_f32 v{32+i}, v{32+i}, v{32+st+i}")
    for i in range(4):
        rnd_bf16(a, 32 + i)
    a("""
    ds_write_b128 v4, v[32:35]
    s_waitcnt lgkmcnt(0)
    s_barrier
    """)
    for base, off in ((48, 0), (32, 4096)):
        for half in range(2):
            for q in range(2):
                r = base + half * 8 + q * 4
                a(f"ds_read_b128 v[{r}:{r+3}], v3 offset:{off + half*2048 + q*16}")
    a("s_waitcnt lgkmcnt(0)")
    for i in range(16):
        a(f"v_add_f32 v{32+i}, 1.0, v{32+i}")
    rnd16(a, 32)
    tstamp(a, 5)
    lnsub = a.lab("l_sub")
    lnend = a.lab("l_end")
    a(f"{lnsub}:")
    a("s_lshl_b32 s63, s60, 16")
    for i in range(8):
        a(f"v_accvgpr_read_b32 v{96+i}, a{i}")
    ln_tail(a)
    a(f"""
    s_cmp_ge_u32 s60, 8
    s_cbranch_scc1 {lnend}
    """)
    for n in range(1, 8):
        a(f"s_add_u32 s63, s63, {8*65536}")
        a(f"buffer_load_dwordx4 a[{8*n}:{8*n+3}], v7, s[24:27], s63 offen")
        a(f"buffer_load_dwordx4 a[{8*n+4}:{8*n+7}], v7, s[24:27], s63 offen offset:1024")
    a("s_waitcnt vmcnt(0)")
    a(f"{lnend}:")
    for i in range(56):
        a(f"v_accvgpr_mov_b32 a{i}, a{i+8}")
    a(f"""
    s_add_u32 s60, s60, 8
    s_cmp_lt_u32 s60, 64
    s_cbranch_scc1 {lnsub}
    """)
    tstamp(a, 6)


def mod2(a):
    a(f"""
    s_load_dwordx4 s[8:11], s[0:1], {KA['c']}
    v_lshrrev_b32 v5, 3, v0
    s_mov_b32 s46, {16*12288}
    v_mul_lo_u32 v4, v5, s46
    v_and_b32 v6, 7, v0
    v_lshl_add_u32 v4, v6, 4, v4
    v_lshlrev_b32 v5, 5, v5
    s_waitcnt lgkmcnt(0)
    """)
    srd(a, 28, 10, 11, 1024 * 12288)
    srd(a, 32, 8, 9, 2048)
    a("buffer_load_dwordx4 v[8:11], v5, s[32:35], 0 offen")
    a("buffer_load_dwordx4 v[12:15], v5, s[32:35], 0 offen offset:16")
    a("s_waitcnt vmcnt(0)")
    for i in range(8):
        a(f"v_lshlrev_b32 v{16+2*i}, 16, v{8+i}")
        a(f"v_and_b32 v{17+2*i}, 0xffff0000, v{8+i}")
    for op in ("v_mul_f32 v{t}, 0xbfb8aa3b, v{r}", "v_exp_f32 v{t}, v{t}", "v_add_f32 v{t}, 1.0, v{t}", "v_rcp_f32 v{t}, v{t}",
               "v_mul_f32 v{r}, v{r}, v{t}"):
        for i in range(16):
            a(op.format(t=112 + i, r=16 + i))
    rnd16(a, 16)
    ml = a.lab("m_loop")
    a(f"""
    s_lshl_b32 s53, s55, 9
    s_add_u32 s53, s53, 4096
    {ml}:
    """)
    mod_issue(a)
    mod_finish(a, 0)
    a(f"""
    s_barrier
    s_add_u32 s53, s53, 128
    s_and_b32 s46, s53, 511
    s_cmp_lg_u32 s46, 0
    s_cbranch_scc1 {ml}
    s_lshl_b32 s54, s55, 7
    s_add_u32 s54, s54, {WS_FLG + FMD:#x}
    s_mov_b32 s60, 0
    s_waitcnt vmcnt(0)
    """)
    set_flag(a, 54, 60, 8)
    tstamp(a, 7)
    if E("WPF", 0):
        a(f"""
        s_load_dwordx2 s[4:5], s[0:1], {KA['w1']}
        s_load_dwordx2 s[6:7], s[0:1], {KA['w2']}
        v_lshlrev_b32 v4, 7, v0
        s_mul_i32 s46, s55, {7*65536}
        s_waitcnt lgkmcnt(0)
        """)
        srd(a, 28, 4, 5, 1024 * 7168)
        srd(a, 32, 6, 7, 1024 * 7168)
        for i in range(7):
            a(f"buffer_load_dword v{32+2*i}, v4, s[28:31], s46 offen")
            a(f"buffer_load_dword v{33+2*i}, v4, s[32:35], s46 offen")
            a("s_add_u32 s46, s46, 65536")
            a("s_waitcnt vmcnt(2)")
        a("s_waitcnt vmcnt(0)")


def mod_wait(a, done, level):
    nsp = a.lab("mw")
    a(f"""
    s_cmp_lg_u32 s44, 0
    s_cbranch_scc1 {nsp}
    v_and_b32 v8, 15, v1
    v_lshlrev_b32 v8, 7, v8
    s_mov_b32 s46, {WS_FLG + FMD:#x}
    s_mov_b32 s47, {level}
    """)
    spin(a, 8, "s46", 47, 9, done, sleep=2)
    a(f"{nsp}:")
    a("s_barrier")


def red_role(a, kind, done):
    a(f"""
    s_load_dwordx2 s[4:5], s[0:1], {KA['x' if kind == 'c' else 'out']}
    s_load_dwordx2 s[6:7], s[0:1], {KA['b2']}
    v_lshlrev_b32 v2, 4, v1
    v_lshlrev_b32 v3, 5, v1
    s_waitcnt lgkmcnt(0)
    """)
    srd(a, 24, 4, 5, 2048 * 2048)
    srd(a, 28, 6, 7, 2048)
    mod_wait(a, done, 0)
    if kind == 'c':
        modload(a, 16, 2)
        modload(a, 32, 4)
        modload(a, 48, 3)
        a("s_waitcnt vmcnt(0)")
        for i in range(16):
            a(f"v_add_f32 v{32+i}, 1.0, v{32+i}")
        rnd16(a, 32)
    else:
        modload(a, 16, 5)
        a("buffer_load_dwordx4 v[48:51], v2, s[28:31], 0 offen")
        a("buffer_load_dwordx4 v[52:55], v2, s[28:31], 0 offen offset:1024")
        a("s_waitcnt vmcnt(0)")
        for i in range(8):
            a(f"v_lshlrev_b32 v{32+2*i}, 16, v{48+i}")
            a(f"v_and_b32 v{33+2*i}, 0xffff0000, v{48+i}")
    P = WS_P1 if kind == 'c' else WS_P2
    a(f"""
    s_lshl_b32 s46, s42, 14
    s_lshl_b32 s47, s44, 11
    s_add_u32 s46, s46, s47
    s_add_u32 s46, s46, {P:#x}
    v_add_u32 v4, s46, v2
    v_and_b32 v5, 31, v1
    v_lshlrev_b32 v5, 7, v5
    v_add_u32 v5, {WS_FLG + (FW if kind == 'c' else FF2):#x}, v5
    v_lshlrev_b32 v6, 2, v1
    s_lshl_b32 s46, s44, 9
    v_add_u32 v6, s46, v6
    s_lshl_b32 s46, s44, 12
    v_add_u32 v7, s46, v3
    """)
    row_off(a, 8)
    a(f"v_add_u32 v9, {WS_X1:#x}, v8")
    if kind == 'c':
        ln_consts(a, WS_H2)
        a(f"""
        s_lshl_b32 s52, s43, 9
        s_lshl_b32 s47, s42, 7
        s_add_u32 s52, s52, s47
        s_add_u32 s52, s52, {WS_FLG + FC:#x}
        """)
    a("s_mov_b32 s60, s43")
    loop = a.lab("r_loop")
    a(f"""
    {loop}:
    s_lshl_b32 s61, s60, 18
    s_lshl_b32 s63, s60, 16
    """)
    if kind == 'c':
        a("buffer_load_dwordx4 a[0:3], v8, s[24:27], s63 offen")
        a("buffer_load_dwordx4 a[4:7], v8, s[24:27], s63 offen offset:1024")
    nsp = a.lab("r_nsp")
    a(f"s_cmp_lg_u32 s44, 0")
    a(f"s_cbranch_scc1 {nsp}")
    spin(a, 5, "s76" if kind == 'f' else "0", 60, 14, done)
    a(f"{nsp}:")
    a("s_barrier")
    wstamp(a, 14, 1, kind)
    for kq in range(4):
        if kq:
            a(f"s_add_u32 s61, s61, 65536")
        for c2 in range(2):
            r = 96 + (kq * 2 + c2) * 4
            a(f"buffer_load_dwordx4 v[{r}:{r+3}], v4, s[12:15], s61 offen offset:{1024*c2} sc1")
    if kind == 'f':
        a("buffer_load_dwordx4 a[0:3], v9, s[12:15], s63 offen sc1")
        a("buffer_load_dwordx4 a[4:7], v9, s[12:15], s63 offen offset:1024 sc1")
    ex = 2 if kind == 'f' else 0
    for kq in range(4):
        a(f"s_waitcnt vmcnt({6-2*kq+ex})")
        d = 64 if kq == 0 else 80
        for i in range(8):
            a(f"v_lshlrev_b32 v{d+2*i}, 16, v{96+8*kq+i}")
            a(f"v_and_b32 v{d+2*i+1}, 0xffff0000, v{96+8*kq+i}")
        if kq:
            for i in range(8):
                a(f"v_pk_add_f32 v[{64+2*i}:{65+2*i}], v[{64+2*i}:{65+2*i}], v[{80+2*i}:{81+2*i}]")
    for c2 in range(2):
        for j in range(8):
            a(f"ds_write_b32 v6, v{64+8*c2+j} offset:{4096*j + 256*c2}")
    a("""
    s_waitcnt lgkmcnt(0)
    s_barrier
    """)
    wstamp(a, 14, 2, kind)
    a("""
    ds_read_b128 v[64:67], v7
    ds_read_b128 v[68:71], v7 offset:16
    ds_read_b128 v[72:75], v7 offset:2048
    ds_read_b128 v[76:79], v7 offset:2064
    s_waitcnt vmcnt(0)
    """)
    for i in range(8):
        a(f"v_accvgpr_read_b32 v{96+i}, a{i}")
    for i in range(8):
        a(f"v_lshlrev_b32 v{80+2*i}, 16, v{96+i}")
        a(f"v_and_b32 v{81+2*i}, 0xffff0000, v{96+i}")
    a("s_waitcnt lgkmcnt(0)")
    rnd16(a, 64)
    if kind == 'f':
        pk16(a, "v_pk_add_f32", 64, 64, 32)
        rnd16(a, 64)
    pk16(a, "v_pk_mul_f32", 64, 64, 16)
    rnd16(a, 64)
    pk16(a, "v_pk_add_f32", 64, 64, 80)
    for i in range(8):
        a(f"v_cvt_pk_bf16_f32 v{96+i}, v{64+2*i}, v{65+2*i}")
    if kind == 'f':
        a("buffer_store_dwordx4 v[96:99], v8, s[24:27], s63 offen")
        a("buffer_store_dwordx4 v[100:103], v8, s[24:27], s63 offen offset:1024")
    else:
        a("buffer_store_dwordx4 v[96:99], v9, s[12:15], s63 offen sc1")
        a("buffer_store_dwordx4 v[100:103], v9, s[12:15], s63 offen offset:1024 sc1")
        ln_tail(a)
    wstamp(a, 14, 0, kind)
    a(f"""
    s_add_u32 s60, s60, {3 if kind == 'c' else "s78"}
    s_cmp_lt_u32 s60, {64 if kind == 'c' else "s75"}
    s_cbranch_scc1 {loop}
    s_branch {done}
    """)


def att_role(a, done, nphase=4):
    LROW = 272
    WLDS = 48 * LROW
    a(f"""
    s_mul_i32 s46, s42, 24576
    s_add_u32 s46, s46, {WS_QKV:#x}
    v_lshlrev_b32 v2, 4, v1
    v_add_u32 v3, s46, v2
    v_add_u32 v5, 4096, v3
    v_lshrrev_b32 v4, 4, v1
    v_and_b32 v9, 15, v1
    s_lshl_b32 s46, s42, 12
    s_add_u32 s46, s46, {WS_MKV:#x}
    v_and_b32 v6, 7, v1
    v_lshlrev_b32 v6, 4, v6
    v_lshl_add_u32 v6, v4, 7, v6
    v_add_u32 v6, s46, v6
    v_and_b32 v7, 31, v1
    v_lshlrev_b32 v7, 4, v7
    v_lshrrev_b32 v10, 5, v1
    v_lshl_add_u32 v7, v10, 10, v7
    v_add_u32 v7, s46, v7
    s_mul_i32 s50, s44, {WLDS}
    v_mul_u32_u24 v8, {LROW}, v9
    v_lshl_add_u32 v8, v4, 4, v8
    v_add_u32 v8, s50, v8
    v_bfe_u32 v11, v1, 2, 3
    v_mul_u32_u24 v11, {LROW}, v11
    v_lshl_add_u32 v11, v10, 6, v11
    v_and_b32 v12, 3, v1
    v_lshl_add_u32 v11, v12, 4, v11
    v_add_u32 v11, s50, v11
    """)
    a(f"""
    v_mul_u32_u24 v14, {LROW}, v4
    v_lshl_add_u32 v14, v9, 4, v14
    v_add_u32 v14, s50, v14
    v_mov_b32 v16, 0
    v_mov_b32 v17, 0
    v_mov_b32 v18, 0
    v_mov_b32 v19, 0
    ds_write_b128 v14, v[16:19] offset:{40*LROW}
    ds_write_b128 v14, v[16:19] offset:{44*LROW}
    v_lshlrev_b32 v12, 2, v4
    v_bfe_u32 v13, v1, 2, 2
    v_add_u32 v12, v12, v13
    v_mul_u32_u24 v12, {LROW}, v12
    v_and_b32 v13, 3, v1
    v_lshl_add_u32 v12, v13, 3, v12
    v_add_u32 v12, s50, v12
    v_lshlrev_b32 v13, 10, v13
    s_lshl_b32 s46, s42, 12
    s_add_u32 s46, s46, {WS_MKV:#x}
    v_add_u32 v13, s46, v13
    v_lshlrev_b32 v10, 9, v4
    v_lshl_add_u32 v10, v9, 4, v10
    s_lshl_b32 s46, s42, 13
    s_add_u32 s46, s46, {WS_OX:#x}
    v_add_u32 v10, s46, v10
    s_lshl_b32 s52, s42, 9
    s_lshl_b32 s47, s43, 7
    s_add_u32 s52, s52, s47
    s_add_u32 s52, s52, {WS_FLG + FA:#x}
    v_min_u32 v42, 2, v1
    v_lshlrev_b32 v42, 9, v42
    s_lshl_b32 s46, s40, 11
    s_and_b32 s47, s42, 3
    s_lshl_b32 s47, s47, 7
    s_add_u32 s46, s46, s47
    s_add_u32 s46, s46, {WS_FLG + FQ:#x}
    v_add_u32 v48, s46, v42
    s_mul_i32 s46, s42, 24576
    s_add_u32 s46, s46, {WS_QKV:#x}
    v_lshlrev_b32 v49, 7, v1
    v_add_u32 v49, s46, v49
    v_cmp_le_u32 s[56:57], 32, v1
    v_lshlrev_b32 v14, 2, v4
    s_mov_b32 s54, 0x3e0293ee
    s_mov_b32 s60, s43
    """)
    for r in range(4):
        a(f"v_add_u32 v15, {r}, v14")
        a(f"v_cmp_gt_u32 s[{84+2*r}:{85+2*r}], v15, v9")
    loop = a.lab("a_loop")
    a(f"""
    {loop}:
    s_mul_i32 s45, s60, {0 if E("NOLD", 0) else 786432}
    s_add_u32 s48, s45, 8192
    s_add_u32 s49, s45, 16384
    s_lshl_b32 s61, s60, 17
    s_lshl_b32 s63, s60, 18
    """)
    spin(a, 48, "0", 60, 40, done)
    Q, Kf = 0, 32
    for qt, vv in enumerate((3, 5)):
        for ks in range(4):
            r = Q + (qt * 4 + ks) * 4
            a(f"buffer_load_dwordx4 a[{r}:{r+3}], v{vv}, s[12:15], s45 offen offset:{1024*ks} sc1")
    for kt, vv in enumerate((3, 5)):
        for ks in range(4):
            r = Kf + (kt * 4 + ks) * 4
            a(f"buffer_load_dwordx4 a[{r}:{r+3}], v{vv}, s[12:15], s48 offen offset:{1024*ks} sc1")
    VS = 16
    WD = E("WD", 0)
    if WD:
        a(f"s_add_u32 s46, s60, {WD}")
        a("v_cmp_ge_u32 vcc, s46, v40")
    for i in range(8):
        a(f"buffer_load_dwordx4 v[{VS+4*i}:{VS+4*i+3}], v{3 if i < 4 else 5}, s[12:15], s49 offen offset:{1024*(i&3)} sc1")
    a("s_waitcnt vmcnt(0)")
    if WD:
        nw = a.lab("a_nw")
        a(f"""
        s_cbranch_vccnz {nw}
        s_add_u32 s46, s45, {WD*786432}
        buffer_load_dword v50, v49, s[12:15], s46 offen sc1
        s_add_u32 s46, s46, 8192
        buffer_load_dword v51, v49, s[12:15], s46 offen sc1
        s_add_u32 s46, s46, 8192
        buffer_load_dword v52, v49, s[12:15], s46 offen sc1
        {nw}:
        """)
    for i in range(8):
        a(f"ds_write_b128 v8, v[{VS+4*i}:{VS+4*i+3}] offset:{(i>>2)*16*LROW + (i&3)*64}")
    S = 56

    def smm(kt, qt, ks):
        c = S + (kt * 2 + qt) * 4
        ka = Kf + (kt * 4 + ks) * 4
        qa = Q + (qt * 4 + ks) * 4
        cc = "0" if ks == 0 else f"v[{c}:{c+3}]"
        a(f"v_mfma_f32_16x16x32_bf16 v[{c}:{c+3}], a[{ka}:{ka+3}], a[{qa}:{qa+3}], {cc}")
    for ks in range(4):
        for kt, qt in ((0, 0), (0, 1), (1, 1)):
            smm(kt, qt, ks)
    VF = 80
    a("s_waitcnt lgkmcnt(0)")
    for dt in range(8):
        for kt in range(2):
            r = VF + (dt * 3 + kt) * 2
            a(f"ds_read_b64_tr_b16 a[{r}:{r+1}], v12 offset:{kt*16*LROW + 32*dt}")
        if dt == 3:
            a("s_waitcnt lgkmcnt(0)")
    a("v_mov_b32 v15, 0xff800000")
    for r in range(4):
        for t in (0, 3):
            c = S + t * 4 + r
            a(f"v_cndmask_b32 v{c}, v{c}, v15, s[{84+2*r}:{85+2*r}]")
    cp = a.lab("a_cp")
    fl = a.lab("a_fl")
    ok = a.lab("a_ok")
    a(f"""
    s_mov_b32 s70, 0
    {cp}:
    buffer_load_dword v40, v13, s[12:15], s61 offen sc1
    s_waitcnt vmcnt(0)
    v_cmp_eq_u32 vcc, -1, v40
    s_add_u32 s70, s70, 1
    s_cbranch_vccz {fl}
    {cp}_s:
    s_sleep {SPA}
    s_cmp_lt_u32 s70, {TMO}
    s_cbranch_scc1 {cp}
    s_branch {done}
    {fl}:
    """)
    wstamp(a, 16, 1)
    for ks in range(4):
        a(f"buffer_load_dwordx4 v[{24+4*ks}:{27+4*ks}], v6, s[12:15], s61 offen offset:{1024*ks} sc1")
    a("buffer_load_dwordx4 v[16:19], v7, s[12:15], s61 offen offset:512 sc1")
    a("buffer_load_dwordx4 v[20:23], v7, s[12:15], s61 offen offset:2560 sc1")
    a("s_waitcnt vmcnt(0)")
    a("v_max_u32 v40, v16, v17")
    for r in range(18, 40, 2):
        a(f"v_max3_u32 v40, v40, v{r}, v{r+1}")
    a(f"""
    v_cmp_eq_u32 vcc, -1, v40
    s_nop 0
    s_cbranch_vccnz {cp}_s
    """)
    for ks in range(4):
        for qt in range(2):
            c = S + (4 + qt) * 4
            qa = Q + (qt * 4 + ks) * 4
            cc = "0" if ks == 0 else f"v[{c}:{c+3}]"
            a(f"v_mfma_f32_16x16x32_bf16 v[{c}:{c+3}], v[{24+4*ks}:{27+4*ks}], a[{qa}:{qa+3}], {cc}")
    a(f"ds_write_b128 v11, v[16:19] offset:{32*LROW}")
    a(f"ds_write_b128 v11, v[20:23] offset:{32*LROW + 128}")
    a("s_waitcnt lgkmcnt(0)")
    for dt in range(8):
        r = VF + (dt * 3 + 2) * 2
        a(f"ds_read_b64_tr_b16 a[{r}:{r+1}], v12 offset:{32*LROW + 32*dt}")
    for qt in range(2):
        for r in range(4):
            c = S + (4 + qt) * 4 + r
            a(f"v_cndmask_b32 v{c}, v{c}, v15, s[56:57]")
    P = 24

    def xred(v, op):
        a(f"""
        v_mov_b32 v{v+1}, v{v}
        s_nop 1
        v_permlane16_swap_b32 v{v}, v{v+1}
        {op} v{v}, v{v}, v{v+1}
        v_mov_b32 v{v+1}, v{v}
        s_nop 1
        v_permlane32_swap_b32 v{v}, v{v+1}
        {op} v{v}, v{v}, v{v+1}
        """)
    for qt in range(2):
        tiles = [(0, 0), (2, 0)] if qt == 0 else [(0, 1), (1, 1), (2, 1)]
        regs = [S + (kt * 2 + q) * 4 + r for kt, q in tiles for r in range(4)]
        a(f"v_max_f32 v40, v{regs[0]}, v{regs[1]}")
        for i in range(2, len(regs), 2):
            a(f"v_max3_f32 v40, v40, v{regs[i]}, v{regs[i+1]}")
        xred(40, "v_max_f32")
        a("v_mul_f32 v40, s54, v40")
        for r in regs:
            a(f"v_fma_f32 v{r}, v{r}, s54, -v40")
        for r in regs:
            a(f"v_exp_f32 v{r}, v{r}")
        a(f"v_add_f32 v40, v{regs[0]}, v{regs[1]}")
        for r in regs[2:]:
            a(f"v_add_f32 v40, v40, v{r}")
        xred(40, "v_add_f32")
        a("v_rcp_f32 v40, v40")
        a("s_nop 0")
        for r in regs:
            a(f"v_mul_f32 v{r}, v{r}, v40")
        for kt, q in tiles:
            c = S + (kt * 2 + q) * 4
            p = P + (q * 3 + kt) * 2
            a(f"v_cvt_pk_bf16_f32 v{p}, v{c}, v{c+1}")
            a(f"v_cvt_pk_bf16_f32 v{p+1}, v{c+2}, v{c+3}")
    O = 64
    a("s_waitcnt lgkmcnt(0)")
    a("s_nop 0")
    for qt in range(2):
        kts = (0, 2) if qt == 0 else (0, 1, 2)
        for kt in kts:
            for dt in range(8):
                c = O + (qt * 8 + dt) * 4
                v = VF + (dt * 3 + kt) * 2
                p = P + (qt * 3 + kt) * 2
                cc = "0" if kt == 0 else f"v[{c}:{c+3}]"
                a(f"v_mfma_f32_16x16x16_bf16 v[{c}:{c+3}], a[{v}:{v+1}], v[{p}:{p+1}], {cc}")
    a("s_add_u32 s46, s63, 4096")
    for qt in range(2):
        for p in range(4):
            c = O + (qt * 8 + 2 * p) * 4
            for i in range(4):
                a(f"v_cvt_pk_bf16_f32 v{c+i}, v{c+2*i}, v{c+2*i+1}")
            if not E("NOO", 0):
                a(f"buffer_store_dwordx4 v[{c}:{c+3}], v10, s[12:15], s{63 if p < 2 else 46} offen offset:{(p&1)*2048 + qt*256} {'' if E('PLO', 0) else 'sc1'}")
    a("s_waitcnt vmcnt(0)")
    set_flag(a, 52, 60, 16, wave=None)
    wstamp(a, 16)
    a(f"""
    s_add_u32 s60, s60, {nphase}
    s_cmp_lt_u32 s60, 64
    s_cbranch_scc1 {loop}
    s_branch {done}
    """)


def gate(a, i, done):
    if i >= E("NST", 6):
        a(f"s_branch {done}")


def workers(a, done):
    assert R1 < R2 < 64 and Q1 < Q2 < 64
    lg, p2, lw, lf2, lf1, la, lc, lh = (a.lab(x) for x in ("w_g", "w_p2", "w_wo", "w_f2", "w_f1", "w_att", "w_c", "w_h"))
    a("s_sub_u32 s48, s41, 16")
    tstamp(a, 0)
    a(f"""
    s_cmp_lt_u32 s48, 12
    s_cbranch_scc1 {lg}
    s_and_b32 s42, s48, 3
    s_mov_b32 s43, s40
    """)
    ln1_role(a, done)
    a(f"""
    s_cmp_lt_u32 s48, 14
    s_cbranch_scc1 {lh}_s
    s_and_b32 s55, s48, 1
    s_lshl_b32 s55, s55, 3
    s_add_u32 s55, s55, s40
    """)
    mod2(a)
    a(f"""
    s_barrier
    {lh}_s:
    s_mov_b32 s77, s48
    s_cmp_lt_u32 s48, 14
    s_cselect_b32 s53, 1, 2
    s_cselect_b32 s74, {HK}, {HV}
    s_mov_b32 s75, 64
    s_mov_b32 s76, {FREP}
    s_and_b32 s48, s48, 1
    s_lshl_b32 s48, s48, 1
    s_add_u32 s79, s48, 2
    s_cmp_lt_u32 s74, s75
    s_cbranch_scc1 {lg}_e
    {lh}:
    s_mov_b32 s48, s77
    s_cmp_lt_u32 s48, 14
    s_cbranch_scc1 {la}
    s_and_b32 s42, s40, 3
    s_lshr_b32 s43, s40, 2
    s_cmp_eq_u32 s48, 14
    s_cbranch_scc1 {lc}
    s_mov_b32 s75, {Q1}
    s_mov_b32 s76, 0
    s_mov_b32 s78, 2
    {lh}_f:
    """)
    gate(a, 5, done)
    red_role(a, 'f', done)
    a(f"{lc}:")
    gate(a, 2, done)
    red_role(a, 'c', done)
    a(f"""
    {la}:
    s_lshl_b32 s42, s40, 2
    s_and_b32 s46, s44, 3
    s_add_u32 s42, s42, s46
    s_and_b32 s43, s48, 1
    s_lshl_b32 s43, s43, 1
    s_lshr_b32 s46, s44, 2
    s_add_u32 s43, s43, s46
    """)
    att_role(a, done)
    a(f"""
    {lg}:
    s_lshr_b32 s53, s48, 2
    s_cmp_lt_u32 s53, 2
    s_cselect_b32 s46, 1, 0
    s_xor_b32 s53, s53, s46
    s_mov_b32 s74, 0
    s_mov_b32 s76, 0
    s_cmp_eq_u32 s53, 1
    s_cselect_b32 s75, {HK}, 64
    s_cmp_eq_u32 s53, 2
    s_cselect_b32 s75, {HV}, s75
    {lg}_e:
    """)
    gemm_role(a, 'qkv', done, p2)
    a(f"""
    {p2}:
    s_cmp_eq_u32 s76, 0
    s_cbranch_scc1 {p2}_m
    s_add_u32 s48, s48, 1
    s_cmp_lt_u32 s48, s79
    s_cbranch_scc1 {lg}_e
    s_cmp_lg_u32 s44, 0
    s_cbranch_scc1 {lh}
    s_cmp_eq_u32 s53, 1
    s_cbranch_scc1 {lh}
    v_and_b32 v10, 1, v1
    v_lshlrev_b32 v10, 7, v10
    s_sub_u32 s52, s52, {FREP + 128}
    s_sub_u32 s47, s74, 1
    """)
    spin(a, 10, "s52", 47, 11, done)
    a(f"""
    v_mov_b32 v11, s75
    s_mov_b64 exec, 3
    buffer_store_dword v11, v10, s[12:15], s52 offen sc1
    s_mov_b64 exec, -1
    s_branch {lh}
    {p2}_m:
    """)
    if HK < 64:
        a(f"""
        s_cmp_lg_u32 s53, 1
        s_cbranch_scc1 {p2}_h
        s_cmp_lg_u32 s44, 0
        s_cbranch_scc1 {p2}_h
        v_mov_b32 v10, {FREP}
        s_mov_b32 s47, 63
        """)
        spin(a, 10, "s52", 47, 11, done)
        set_flag(a, 52, 47, 10, wave=None)
        a(f"{p2}_h:")
    tstamp(a, 3)
    a(f"""
    s_cmp_lt_u32 s48, 8
    s_cselect_b32 s75, {Q1}, {R1}
    s_cmp_lt_u32 s48, 4
    s_cselect_b32 s75, 64, s75
    {p2}_r:
    s_lshr_b32 s42, s40, 1
    s_and_b32 s43, s40, 1
    s_lshl_b32 s43, s43, 2
    s_and_b32 s46, s48, 3
    s_add_u32 s43, s43, s46
    s_cmp_lt_u32 s48, 4
    s_cbranch_scc1 {lw}
    s_cmp_lt_u32 s48, 8
    s_cbranch_scc1 {lf2}
    s_cmp_lg_u32 s43, 7
    s_cbranch_scc1 {lf1}
    s_mov_b32 s43, 2
    s_cmp_eq_u32 s76, 0
    s_cbranch_scc1 {lc}
    s_mov_b32 s43, 7
    s_mov_b32 s78, 1
    {lf1}_t:
    s_cmp_lt_u32 s41, 8
    s_cselect_b32 s74, {Q1}, {Q2}
    s_cselect_b32 s75, {Q2}, 64
    s_add_u32 s43, s43, s74
    s_cmp_lt_u32 s43, s75
    s_cbranch_scc1 {lh}_f
    s_branch {done}
    {lf1}_d:
    s_cmp_eq_u32 s76, 0
    s_cbranch_scc1 {done}
    s_and_b32 s42, s49, 3
    s_lshr_b32 s43, s49, 2
    s_mov_b32 s78, 64
    s_branch {lf1}_t
    {REPL}:
    s_setprio 0
    s_barrier
    s_and_b32 s48, s41, 7
    s_add_u32 s48, s48, 4
    s_cmp_lt_u32 s41, 8
    s_cselect_b32 s74, {R1}, {R2}
    s_cselect_b32 s75, {R2}, 64
    s_cselect_b32 s76, 1, 2
    s_cselect_b32 s46, {Q1}, {Q2}
    s_cselect_b32 s47, {Q2}, 64
    s_mul_i32 s76, s76, {FREP}
    s_cmp_lt_u32 s48, 8
    s_cselect_b32 s74, s46, s74
    s_cselect_b32 s75, s47, s75
    s_branch {p2}_r
    {lf1}:
    """)
    gate(a, 3, done)
    gemm_role(a, 'f1', done, lf1 + '_d')
    a(f"{lf2}:")
    gate(a, 4, done)
    gemm_role(a, 'f2', done, done)
    a(f"{lw}:")
    gate(a, 1, done)
    gemm_role(a, 'wo', done, done)
```

```python
import os
from lib1 import *
import workers as wk

E = lambda k, d: int(os.environ.get(k, str(d)))
STAMP = E("STAMP", 0)
STEP = E("STEP", 20)
SL_G = E("SL_G", 6)
SL_L1 = E("SL_L1", 3)
SL_X = E("SL_X", 5)
SL_V = E("SL_V", 4)
KXPOS = 6
VXPOS = E("VXPOS", 2)
GA = E("GA", 1)
GB = E("GB", -1)
SL_K = E("SL_K", 0)
WARM = E("WARM", 4)
FORCE_SLOW = E("SLOW", 0)
SPLIT = E("SPLIT", 1)
NEAR = E("NEAR", 1)
FS = E("FS", 3)
TMO = 0x80000

L_MEM = 0
L_PX = 16384
L_PM = 20480
L_VWM = 53248
L_VRED = 49152
L_TICK = 26624
L_VWX = 32768
L_XL = 61440
L_KV = 27648
LDS_BYTES = wk.LDS_BYTES

PFD = 4
CTL_READY = WS_CTL + 4096


def gstamp(a, i):
    if STAMP == 2:
        a("s_memrealtime s[80:81]")
        a("s_memtime s[82:83]")
        a("s_waitcnt lgkmcnt(0)")
        a(f"s_mov_b32 s{72+i}, s80")
        a(f"s_mov_b32 s{76+i}, s82")


def hd(a, word, neg=False, val=None):
    if not E("HD", 0):
        return
    a("s_memrealtime s[80:81]")
    a("s_waitcnt lgkmcnt(0)")
    if neg:
        a("s_not_b32 s80, s80")
    a(f"""
    v_mov_b32 v126, {val or "s80"}
    v_mov_b32 v127, 0
    s_mov_b64 exec, 1
    buffer_atomic_umax v126, v127, s[16:19], 0 offen offset:{4*word}
    s_mov_b64 exec, -1
    """)


def stamp(a, i):
    if STAMP == 5:
        a(f"s_memtime s[{72+2*i}:{73+2*i}]")
    if STAMP == 1:
        a("s_memrealtime s[80:81]")
        a("s_waitcnt lgkmcnt(0)")
        a(f"s_mov_b32 s{72+i}, s80")


def tries(a, slot):
    if STAMP == 3:
        if slot == 0:
            a("s_mov_b32 s79, s70")
        else:
            a(f"s_lshl_b32 s83, s70, {8*slot}")
            a("s_or_b32 s79, s79, s83")


def stamp_dump(a):
    if STAMP == 5:
        n1 = a.lab("st5a")
        n2 = a.lab("st5b")
        a(f"""
        s_waitcnt lgkmcnt(0)
        s_cmp_lt_u32 s60, {E("S0", 8)}
        s_cbranch_scc0 {n1}
        """)
        for i in range(8):
            a(f"s_mov_b32 s{90+i}, 0")
        a(f"{n1}:")
        a("s_sub_u32 s89, s72, s88")
        a("s_add_u32 s90, s90, s89")
        for i in range(1, 7):
            a(f"s_sub_u32 s89, s{72+2*i}, s{70+2*i}")
            a(f"s_add_u32 s{90+i}, s{90+i}, s89")
        a(f"""
        s_mov_b32 s88, s84
        s_add_u32 s97, s97, 1
        s_cmp_lg_u32 s60, {E("S1", 56)}
        s_cbranch_scc1 {n2}
        s_lshl_b32 s89, s40, 4
        s_add_u32 s89, s89, s41
        s_lshl_b32 s89, s89, 3
        s_add_u32 s89, s89, s44
        s_lshl_b32 s89, s89, 5
        s_add_u32 s89, s89, {WS_STAMP:#x}
        v_mov_b32 v22, 0
        """)
        for i in range(8):
            a(f"v_mov_b32 v21, s{90+i}")
            a(f"buffer_store_dword v21, v22, s[12:15], s89 offen offset:{4*i}")
        a(f"{n2}:")
        return
    if STAMP not in (1, 2, 3):
        return
    if STAMP == 3:
        a(f"""
        s_memrealtime s[80:81]
        s_lshl_b32 s82, s40, 4
        s_add_u32 s82, s82, s41
        s_lshl_b32 s82, s82, 3
        s_add_u32 s82, s82, s44
        s_lshl_b32 s82, s82, 6
        s_add_u32 s82, s82, s60
        s_lshl_b32 s82, s82, 3
        s_add_u32 s82, s82, {WS_STAMP:#x}
        v_mov_b32 v22, 0
        v_mov_b32 v21, s79
        s_waitcnt lgkmcnt(0)
        v_mov_b32 v20, s80
        s_mov_b64 exec, 1
        buffer_store_dwordx2 v[20:21], v22, s[12:15], s82 offen
        s_mov_b64 exec, -1
        """)
        return
    nst = a.lab("nost")
    a(f"""
    s_cmp_lg_u32 s60, {STEP if STAMP == 1 else 62}
    s_cbranch_scc1 {nst}
    """)
    gstamp(a, 3)
    a(f"""
    s_lshl_b32 s82, s40, 4
    s_add_u32 s82, s82, s41
    s_lshl_b32 s82, s82, 3
    s_add_u32 s82, s82, s44
    s_lshl_b32 s82, s82, 5
    s_add_u32 s82, s82, {WS_STAMP:#x}
    v_mov_b32 v20, 0
    """)
    for i in range(8):
        a(f"v_mov_b32 v21, s{72+i}")
        a(f"buffer_store_dword v21, v20, s[12:15], s82 offen offset:{4*i}")
    a(f"{nst}:")


def check_sentinel(a, regs, tmp):
    regs = list(regs)
    a(f"v_max3_u32 v{tmp}, v{regs[0]}, v{regs[1]}, v{regs[2]}")
    rest = regs[3:]
    while len(rest) >= 2:
        a(f"v_max3_u32 v{tmp}, v{tmp}, v{rest[0]}, v{rest[1]}")
        rest = rest[2:]
    if rest:
        a(f"v_max_u32 v{tmp}, v{tmp}, v{rest[0]}")
    a(f"v_cmp_eq_u32 vcc, -1, v{tmp}")


COLD = []


def flush_cold(a):
    for blk in COLD:
        blk()
    COLD.clear()


def retry(a, lab, done):
    fail = a.lab("rt")
    a(f"s_cbranch_vccnz {fail}")
    COLD.append(lambda: a(f"""
    {fail}:
    s_add_u32 s70, s70, 1
    s_cmp_lt_u32 s70, {TMO}
    s_cbranch_scc1 {lab}
    s_branch {done}
    """))


def roles(a, done):
    tk = a.lab("tk")
    got = a.lab("got")
    sp = a.lab("sp")
    nz = a.lab("nz")
    a(f"""
    s_getreg_b32 s39, hwreg(HW_REG_XCC_ID)
    s_and_b32 s39, s39, 7
    s_cmp_lg_u32 s44, 1
    s_cbranch_scc1 {nz}
    v_mov_b32 v32, 0
    v_mov_b32 v33, 0
    v_mov_b32 v34, 0
    v_mov_b32 v35, 0
    v_lshlrev_b32 v4, 4, v1
    s_lshl_b32 s45, s2, 10
    s_add_u32 s45, s45, {WS_CTL:#x}
    buffer_store_dwordx4 v[32:35], v4, s[12:15], s45 offen sc1
    {nz}:
    """)
    if NEAR:
        nv = a.lab("nv")
        a(f"""
        s_cmp_lt_u32 s44, 4
        s_cbranch_scc1 {nv}
        s_load_dword s47, s[22:23], s59
        s_add_u32 s45, s59, 0x4000
        s_add_u32 s46, s59, 0x6000
        s_add_u32 s48, s59, 0x6080
        s_add_u32 s49, s59, 0x4080
        s_waitcnt vmcnt(3) lgkmcnt(0)
        s_memtime s[60:61]
        s_waitcnt lgkmcnt(0)
        s_load_dword s47, s[22:23], s45
        s_waitcnt lgkmcnt(0)
        s_memtime s[62:63]
        s_waitcnt lgkmcnt(0)
        s_load_dword s47, s[22:23], s46
        s_waitcnt lgkmcnt(0)
        s_load_dword s47, s[22:23], s48
        s_waitcnt lgkmcnt(0)
        s_memtime s[64:65]
        s_waitcnt lgkmcnt(0)
        s_load_dword s47, s[22:23], s49
        s_waitcnt lgkmcnt(0)
        s_memtime s[66:67]
        s_waitcnt lgkmcnt(0)
        s_sub_u32 s66, s66, s64
        s_sub_u32 s64, s64, s62
        s_sub_u32 s62, s62, s60
        s_add_u32 s62, s62, s66
        s_add_u32 s64, s64, 40
        s_cmp_gt_u32 s62, s64
        s_cselect_b32 s45, 1, 0
        s_lshr_b32 s46, s39, 2
        s_xor_b32 s45, s45, s46
        s_xor_b32 s45, s45, {1 if SPLIT == 1 else 0}
        v_mov_b32 v3, s45
        s_lshl_b32 s46, s44, 2
        s_add_u32 s46, s46, {wk.L_BC + 16}
        v_mov_b32 v4, s46
        ds_write_b32 v4, v3
        {nv}:
        """)
    wk.mod1_finish(a)
    a(f"""
    s_cmp_lg_u32 s44, 1
    s_cbranch_scc1 {tk}
    v_mov_b32 v4, {wk.L_BC + 32}
    ds_read_b128 v[32:35], v4
    s_and_b32 s45, s2, 7
    s_lshl_b32 s45, s45, 7
    s_lshr_b32 s46, s2, 3
    s_lshl_b32 s46, s46, 2
    s_add_u32 s45, s45, s46
    s_add_u32 s45, s45, {WS_VOTE:#x}
    v_mov_b32 v4, 0
    s_waitcnt lgkmcnt(0)
    v_add3_u32 v32, v32, v33, v34
    v_add_u32 v32, v32, v35
    s_mov_b64 exec, 1
    buffer_store_dword v32, v4, s[12:15], s45 offen sc1
    s_mov_b64 exec, -1
    v_mov_b32 v3, 1
    {("s_mov_b32 s40, s39", "s_lshr_b32 s40, s2, 5", "s_and_b32 s40, s2, 3")[E("FAKEX", 0)]}
    s_lshl_b32 s45, s40, 5
    v_mov_b32 v4, 0
    s_waitcnt vmcnt(0)
    s_mov_b64 exec, 1
    buffer_atomic_add v3, v4, s[16:19], s45 offen sc0
    s_waitcnt vmcnt(0)
    v_readfirstlane_b32 s41, v3
    s_nop 3
    s_cmp_lt_u32 s41, 32
    s_cbranch_scc1 {got}
    v_mov_b32 v3, 1
    buffer_atomic_add v3, v4, s[16:19], 0 offen offset:16 sc0
    s_waitcnt vmcnt(0)
    v_readfirstlane_b32 s46, v3
    s_mov_b64 exec, -1
    v_and_b32 v4, 7, v1
    v_lshlrev_b32 v4, 5, v4
    s_mov_b32 s70, 0
    {sp}:
    s_sleep 8
    buffer_load_dword v3, v4, s[16:19], 0 offen sc1
    s_waitcnt vmcnt(0)
    s_mov_b32 s48, 0
    """)
    for i in range(8):
        a(f"v_readlane_b32 s{50+i}, v3, {i}")
    a("s_nop 3")
    for i in range(8):
        a(f"s_add_u32 s48, s48, s{50+i}")
    a(f"""
    s_add_u32 s70, s70, 1
    s_cmp_ge_u32 s70, {TMO}
    s_cbranch_scc1 {done}
    s_cmp_lt_u32 s48, 256
    s_cbranch_scc1 {sp}
    """)
    for i in range(8):
        a(f"""
        s_min_u32 s48, s{50+i}, 32
        s_mov_b32 s40, {i}
        s_add_u32 s41, s48, s46
        s_cmp_lt_u32 s41, 32
        s_cbranch_scc1 {got}
        s_sub_u32 s46, s41, 32
        """)
    a(f"""
    s_branch {done}
    {got}:
    s_mov_b64 exec, -1
    s_lshl_b32 s45, s40, 8
    s_or_b32 s45, s45, s41
    v_mov_b32 v3, s45
    v_mov_b32 v4, {wk.L_BC + 8}
    ds_write_b32 v4, v3
    s_waitcnt lgkmcnt(0)
    {tk}:
    s_barrier
    v_mov_b32 v4, {wk.L_BC + 8}
    ds_read_b32 v3, v4
    s_waitcnt lgkmcnt(0)
    v_readfirstlane_b32 s45, v3
    s_nop 3
    s_lshr_b32 s40, s45, 8
    s_and_b32 s41, s45, 0xff
    """)
    if SPLIT:
        a(f"""
        s_lshr_b32 s45, s40, 2
        s_xor_b32 s45, s45, {1 if SPLIT == 1 else 0}
        s_lshl_b32 s45, s45, 4
        s_and_b32 s40, s40, 3
        s_lshl_b32 s40, s40, 1
        s_lshr_b32 s46, s41, 4
        s_add_u32 s40, s40, s46
        s_and_b32 s41, s41, 15
        s_add_u32 s41, s41, s45
        """)


def stage_issue(a, sr, voff, soffs):
    for i, so in enumerate(soffs):
        a(f"s_add_u32 m0, s45, {1024*i}")
        a(f"s_add_u32 s48, s46, {so:#x}")
        a(f"buffer_load_dwordx4 v{voff}, s[{sr}:{sr+3}], s48 offen lds")


def stage_read(a, vtr, frags, second):
    for i, (r, off) in enumerate(frags):
        a(f"ds_read_b64_tr_b16 a[{r}:{r+1}], v{vtr} offset:{off}")
        a(f"ds_read_b64_tr_b16 a[{r+2}:{r+3}], v{vtr} offset:{off+second}")
        if i % 4 == 3:
            a("s_waitcnt lgkmcnt(0)")


def halves_add(a, d):
    a(f"v_permlane32_swap_b32 v{d}, v{d+2}")
    a(f"v_permlane32_swap_b32 v{d+1}, v{d+3}")
    a(f"v_add_f32 v{d}, v{d}, v{d+2}")
    a(f"v_add_f32 v{d+1}, v{d+1}, v{d+3}")


def pack_cols(a, d):
    a(f"""
    s_mov_b32 vcc_lo, 0x55555555
    s_mov_b32 vcc_hi, 0x55555555
    v_cndmask_b32_dpp v{d+2}, v{d+1}, v{d}, vcc quad_perm:[1,0,3,2] row_mask:0xf bank_mask:0xf
    s_not_b64 vcc, vcc
    v_cndmask_b32_dpp v{d+3}, v{d}, v{d+1}, vcc quad_perm:[1,0,3,2] row_mask:0xf bank_mask:0xf
    v_cvt_pk_bf16_f32 v{d+2}, v{d+2}, v{d+3}
    v_min_u32 v{d+2}, -2, v{d+2}
    """)


def kx_prefetch(a, t_off, base=32):
    a(f"s_add_u32 s46, s{t_off}, 4096")
    for kt in range(2):
        for ks in range(4):
            r = base + (kt * 4 + ks) * 4
            a(f"buffer_load_dwordx4 v[{r}:{r+3}], v6, s[12:15], s{t_off if kt == 0 else 46} offen offset:{1024*ks} sc1")


def vx_load(a, only=None):
    if only in (None, 0):
        a(f"s_add_u32 s46, s65, 4096")
    for ks in range(4):
        if only is not None and ks != only:
            continue
        for kt in range(2):
            r = 32 + (kt * 4 + ks) * 4
            a(f"buffer_load_dwordx4 v[{r}:{r+3}], v15, s[12:15], s{65 if kt == 0 else 46} offen offset:{1024*ks} sc1")
    if only in (None, 3):
        a(f"s_add_u32 s65, s65, {32*24576}")


def kx_dma(a):
    a("s_add_u32 s46, s64, 4096")
    for kt in range(2):
        a(f"s_add_u32 m0, s59, {4096*kt}")
        a("s_nop 0")
        for ks in range(4):
            a(f"buffer_load_dwordx4 v28, s[12:15], s{64 if kt == 0 else 46} offen offset:{1024*ks} sc1 lds")
    a(f"s_add_u32 s64, s64, {32*24576}")


def phase_f(a, younger, hooks={}, c0=0, c1=4):
    if younger is not None:
        a(f"s_waitcnt vmcnt({younger})")

    def drain(ct):
        c = 64 + ct * 8
        for i in range(4):
            a(f"v_cvt_pk_bf16_f32 v{c+i}, v{c+2*i}, v{c+2*i+1}")
        a(f"ds_write_b128 v10, v[{c}:{c+3}] offset:{L_VWX + ct*1024}")
    for ct in range(c0, c1):
        if ct in hooks:
            hooks[ct]()
        for ks in range(4):
            for kt in range(2):
                c = 64 + (ct * 2 + kt) * 4
                f = 32 + (kt * 4 + ks) * 4
                w = 64 + ct * 16 + ks * 4
                cc = "0" if ks == 0 else f"v[{c}:{c+3}]"
                a(f"v_mfma_f32_16x16x32_bf16 v[{c}:{c+3}], v[{f}:{f+3}], a[{w}:{w+3}], {cc}")
        if ct > 0:
            drain(ct - 1)
    if c1 == 4:
        a("s_nop 2")
        drain(3)
    if c1 in hooks:
        hooks[c1]()


def kv_wait(a, done):
    lp = a.lab("kv_lp")
    ok = a.lab("kv_ok")
    a(f"""
    s_cmp_gt_u32 s69, s68
    s_cbranch_scc1 {ok}
    s_mov_b32 s70, 0
    {lp}:
    v_and_b32 v22, 1, v1
    v_lshlrev_b32 v22, 9, v22
    buffer_load_dword v23, v22, s[12:15], s57 offen sc1
    s_waitcnt vmcnt(0)
    v_readlane_b32 s69, v23, 0
    v_readlane_b32 s45, v23, 1
    s_add_u32 s70, s70, 1
    s_nop 2
    s_min_u32 s69, s69, s45
    s_cmp_gt_u32 s69, s68
    s_cbranch_scc1 {ok}
    s_sleep 4
    s_cmp_lt_u32 s70, {TMO}
    s_cbranch_scc1 {lp}
    s_branch {done}
    {ok}:
    """)


def mkv_publish(a, st):
    sk = a.lab("s_np")
    a(f"""
    s_cmp_lg_u32 s44, 3
    s_cbranch_scc1 {sk}
    ds_read_b128 v[20:23], v6
    s_lshl_b32 s45, s60, 17
    s_add_u32 s45, s45, s67
    s_waitcnt lgkmcnt(0)
    v_min_u32 v20, -2, v20
    v_min_u32 v21, -2, v21
    v_min_u32 v22, -2, v22
    v_min_u32 v23, -2, v23
    buffer_store_dwordx4 v[20:23], v2, s[12:15], s45 offen sc1
    {sk}:
    """)


def s_loop(a, done, fast):
    st = "" if fast else "sc1"
    loop = a.lab("s_loop")
    a.align(E("PADS", 0))
    a(f"{loop}:")
    for i in range(4):
        a(f"v_mov_b32 v{16+i}, 0")
    a("s_add_u32 s58, s58, 4")
    a("s_mov_b32 s70, 1")
    a("s_waitcnt vmcnt(0)")
    a("s_barrier")
    if STAMP == 1:
        a("s_mov_b32 s78, s72")
    stamp(a, 0)
    for i in range(12):
        a(f"ds_read_b128 v[{64+4*i}:{67+4*i}], v2 offset:{L_MEM + 1024*i}")
    for i in range(16):
        if i < 4:
            a(f"s_waitcnt lgkmcnt(11)")
        else:
            a(f"s_waitcnt lgkmcnt({15-i})")
        a(f"v_smfmac_f32_16x16x64_bf16 v[16:19], v[{64+4*i}:{67+4*i}], a[{8*i}:{8*i+7}], v3")
        if i < 4:
            k = 12 + i
            a(f"ds_read_b128 v[{64+4*k}:{67+4*k}], v2 offset:{L_MEM + 1024*k}")
    a("s_nop 7")
    halves_add(a, 16)
    last = a.lab("s_last")
    xl = a.lab("s_xl")
    w2 = a.lab("s_w2")
    w3 = a.lab("s_w3")
    a(f"""
    v_cvt_pk_bf16_f32 v16, v16, v17
    ds_write_b16 v5, v16
    ds_write_b16_d16_hi v5, v16 offset:16
    s_mov_b64 exec, 1
    ds_add_u32 v29, v30
    s_mov_b64 exec, -1
    {xl}:
    ds_read_b32 v10, v29
    ds_read_b128 v[64:67], v2 offset:{L_XL}
    s_cmp_eq_u32 s60, 63
    s_cbranch_scc1 {last}
    s_cmp_ge_u32 s44, 2
    s_cbranch_scc1 {w2}
    s_waitcnt lgkmcnt(0)
    v_mfma_f32_16x16x32_bf16 v[16:19], v[32:35], v[64:67], 0
    {w2}_b:
    v_cmp_ne_u32 vcc, s58, v10
    s_nop 0
    """)
    stamp(a, 1)
    retry(a, xl, done)
    COLD.append(lambda: a(f"""
    {w2}:
    s_cmp_eq_u32 s44, 3
    s_cbranch_scc1 {w3}
    s_waitcnt lgkmcnt(0)
    v_mfma_f32_16x16x32_bf16 v[16:19], v[64:67], v[64:67], 0
    s_branch {w2}_b
    {w3}:
    s_sleep {E("SL_X3", 3)}
    s_branch {w3}_b
    """))
    a(f"""
    s_mov_b64 exec, s[50:51]
    s_nop 3
    v_min_u32 v16, -2, v16
    v_min_u32 v17, -2, v17
    v_min_u32 v18, -2, v18
    v_min_u32 v19, -2, v19
    buffer_store_dwordx4 v[16:19], v4, s[12:15], s61 offen {st}
    s_mov_b64 exec, -1
    {w3}_b:
    """)
    stamp(a, 2)
    if SL_X:
        a(f"s_sleep {SL_X}")
    xp = a.lab("s_xp")
    xf = a.lab("s_xf")
    xok = a.lab("s_xok")
    a("s_mov_b32 s70, 1")
    a(f"{xp}:")
    for j in range(4):
        a(f"buffer_load_dwordx4 v[{64+4*j}:{67+4*j}], v7, s[12:15], s61 offen offset:{1024*j} sc1")
        a(f"buffer_load_dword v{80+j}, v28, s[12:15], s61 offen offset:{256*j} sc1")
    a("s_waitcnt vmcnt(4)")
    for i in range(4):
        a(f"v_add_f32 v{16+i}, v{64+i}, v{68+i}")
    a("v_add_f32 v20, v80, v81")
    for j in (2, 3):
        a(f"s_waitcnt vmcnt({6-2*j})")
        for i in range(4):
            a(f"v_add_f32 v{16+i}, v{16+i}, v{64+4*j+i}")
        a(f"v_add_f32 v20, v20, v{80+j}")
    a(f"""
    v_cmp_u_f32 s[46:47], v16, v17
    v_cmp_u_f32 s[48:49], v18, v19
    v_cmp_u_f32 vcc, v20, v20
    v_max3_f32 v10, v16, v17, v18
    s_or_b64 s[46:47], s[46:47], s[48:49]
    v_max3_f32 v10, v10, v19, v20
    s_or_b64 vcc, vcc, s[46:47]
    s_cbranch_scc1 {xf}
    {xok}:
    """)

    def xcold():
        a(f"{xf}:")
        check_sentinel(a, range(64, 84), 11)
        a(f"""
        s_add_u32 s70, s70, 1
        s_cbranch_vccz {xok}
        s_cmp_lt_u32 s70, {TMO}
        s_cbranch_scc1 {xp}
        s_branch {done}
        """)
    COLD.append(xcold)
    tries(a, 0)
    if STAMP == 1:
        a("s_mov_b32 s79, s70")
    stamp(a, 3)

    def xred(op, nop=True):
        a(f"""
        {"s_nop 1" if nop else ""}
        {op}_dpp v11, v10, v10 row_ror:8 row_mask:0xf bank_mask:0xf
        {op}_dpp v10, v10, v10 row_ror:8 row_mask:0xf bank_mask:0xf
        s_nop 1
        v_permlane16_swap_b32 v10, v11
        {op} v12, v10, v11
        {op} v10, v10, v11
        s_nop 1
        v_permlane32_swap_b32 v10, v12
        {op} v10, v10, v12
        """)
    xred("v_max_f32", nop=False)
    a("v_mul_f32 v10, s66, v10")
    S = [16, 17, 18, 19, 20]
    for r in S:
        a(f"v_fma_f32 v{r}, v{r}, s66, -v10")
    for r in S:
        a(f"v_exp_f32 v{r}, v{r}")
    a("""
    v_add_f32 v10, v16, v17
    v_add_f32 v11, v18, v19
    v_add_f32 v10, v10, v20
    v_add_f32 v10, v10, v11
    """)
    xred("v_add_f32")
    a("v_rcp_f32 v10, v10")
    a("s_nop 0")
    for r in S:
        a(f"v_mul_f32 v{r}, v{r}, v10")
    a("""
    v_cvt_pk_bf16_f32 v16, v16, v17
    v_cvt_pk_bf16_f32 v17, v18, v19
    v_cvt_pk_bf16_f32 v18, v20, v20
    ds_write_b64 v8, v[16:17]
    ds_write_b16 v9, v18
    """)

    def ahead():
        nk = a.lab("s_nk")
        a(f"""
        s_add_u32 s63, s63, {32*24576}
        s_cmp_ge_u32 s44, 2
        s_cbranch_scc1 {nk}
        buffer_load_dwordx4 v[32:35], v6, s[12:15], s63 offen sc1
        {nk}:
        s_add_u32 s45, s63, {32*24576}
        s_mov_b64 exec, 0xf
        buffer_load_dword v15, v14, s[12:15], s45 offen sc1
        s_mov_b64 exec, -1
        """)
    WA = E("WA", 3)
    if WA == 3:
        ahead()
    a("s_waitcnt lgkmcnt(0)")
    stamp(a, 4)
    a("s_barrier")
    stamp(a, 5)
    if STAMP == 5:
        stamp(a, 6)
    if WA == 1:
        ahead()
    nr = a.lab("s_nr")
    a(f"""
    s_cmp_eq_u32 s44, 3
    s_cbranch_scc1 {nr}
    s_xor_b32 s45, s61, 0x8000
    s_mov_b64 exec, s[50:51]
    buffer_store_dwordx4 v[24:27], v4, s[12:15], s45 offen {st}
    s_mov_b64 exec, -1
    {nr}:
    """)
    mkv_publish(a, st)
    na = a.lab("s_na")
    a(f"""
    s_add_u32 s68, s60, 3
    s_min_u32 s68, s68, 63
    v_readlane_b32 s45, v0, 0
    v_readlane_b32 s46, v0, 1
    s_nop 0
    s_min_u32 s45, s45, s46
    s_max_u32 s69, s69, s45
    """)
    kv_wait(a, done)
    a(f"""
    s_add_u32 s45, s60, {E("AKD", 7)}
    s_min_u32 s45, s45, 63
    s_cmp_gt_u32 s69, s45
    s_cbranch_scc1 {na}
    v_and_b32 v22, 1, v1
    v_lshlrev_b32 v22, 9, v22
    buffer_load_dword v0, v22, s[12:15], s57 offen sc1
    {na}:
    """)
    stamp_dump(a)
    a(f"""
    s_add_u32 s60, s60, 1
    s_add_u32 s61, s61, 0x4000
    s_and_b32 s61, s61, 0xffff
    s_branch {loop}
    {last}:
    s_waitcnt lgkmcnt(0)
    s_barrier
    """)
    mkv_publish(a, st)
    if E("HD", 0):
        sk = a.lab("hd")
        a(f"s_cmp_lg_u32 s44, 0")
        a(f"s_cbranch_scc1 {sk}")
        hd(a, 6)
        a(f"{sk}:")
    a(f"s_branch {wk.REPL}")
    flush_cold(a)


def v_loop(a, done, fast):
    st = "" if fast else "sc1"
    loop = a.lab("v_loop")
    lp = a.lab("v_l1")
    lm = a.lab("v_l1m")
    assert VXPOS != 1
    a("s_mov_b32 s70, 1")
    a("v_mov_b32 v16, 0")
    a("v_mov_b32 v17, 0")
    a(f"s_branch {lm}")
    a.align(E("PADV", 0))
    a(f"{loop}:")
    a("s_mov_b32 s70, 1")

    def l1load():
        for i in range(4):
            a(f"buffer_load_dwordx4 v[{64+4*i}:{67+4*i}], v9, s[12:15], s61 offen offset:{1024*i} sc1")
    l1load()
    yv = 0
    if VXPOS == 1:
        vx_load(a)
        yv = 8
    for i in range(8):
        a(f"v_mov_b32 v{16+i}, 0")
    lok = a.lab("v_l1ok")

    def lchk(i):
        x = 64 + 4 * i
        a(f"ds_write_b128 v10, v[{x}:{x+3}] offset:{L_MEM + 1024*i}")
        a(f"v_max3_u32 v24, v{x}, v{x+1}, v{x+2}")
        a(f"v_max_u32 v24, v24, v{x+3}")
        a(f"v_cmp_eq_u32 s[{48+2*i}:{49+2*i}], -1, v24")

    def lany():
        a("""
        s_or_b64 s[46:47], s[48:49], s[50:51]
        s_or_b64 vcc, s[52:53], s[54:55]
        s_or_b64 vcc, vcc, s[46:47]
        """)

    def lcold():
        a(f"{lp}:")
        for i in range(4):
            sk = a.lab("v_ls")
            a(f"""
            s_mov_b64 exec, s[{48+2*i}:{49+2*i}]
            s_cbranch_execz {sk}
            buffer_load_dwordx4 v[{64+4*i}:{67+4*i}], v9, s[12:15], s61 offen offset:{1024*i} sc1
            {sk}:
            """)
        a(f"""
        s_mov_b64 exec, -1
        s_add_u32 s70, s70, 1
        s_cmp_ge_u32 s70, {TMO}
        s_cbranch_scc1 {done}
        s_waitcnt vmcnt(0)
        """)
        for i in range(4):
            sk = a.lab("v_lc")
            a(f"s_cmp_eq_u64 s[{48+2*i}:{49+2*i}], 0")
            a(f"s_cbranch_scc1 {sk}")
            lchk(i)
            a(f"{sk}:")
        lany()
        a(f"s_cbranch_scc1 {lp}")
        a(f"s_branch {lok}")
    COLD.append(lcold)
    a(f"{lm}:")
    for i in range(4):
        a(f"s_waitcnt vmcnt({3-i})")
        lchk(i)
    lany()
    a(f"s_cbranch_scc1 {lp}")
    a(f"{lok}:")
    tries(a, 0)
    if STAMP == 1:
        a("s_mov_b32 s83, s70")
    a("s_waitcnt lgkmcnt(0)")
    stamp(a, 0)
    a("s_barrier")
    if VXPOS == 4:
        vx_load(a)
    for i in range(4):
        if VXPOS == 5:
            vx_load(a, i)
        for e in range(2):
            a(f"v_smfmac_f32_16x16x64_bf16 v[{16+4*e}:{19+4*e}], v[{64+4*i}:{67+4*i}], a[{32*e+8*i}:{32*e+8*i+7}], v3")
    if VXPOS == 2:
        vx_load(a)
    else:
        a("s_nop 6")
    a("""
    v_permlane32_swap_b32 v16, v18
    v_permlane32_swap_b32 v17, v19
    v_permlane32_swap_b32 v20, v22
    v_permlane32_swap_b32 v21, v23
    v_add_f32 v16, v16, v18
    v_add_f32 v17, v17, v19
    v_add_f32 v18, v20, v22
    v_add_f32 v19, v21, v23
    ds_write_b128 v14, v[16:19]
    s_mov_b64 exec, 1
    ds_add_u32 v29, v30
    s_mov_b64 exec, -1
    s_add_u32 s58, s58, 4
    """)
    last = a.lab("v_last")
    k1 = a.lab("v_k1")
    rl = a.lab("v_rl")
    a(f"""
    s_bitcmp1_b32 s44, 0
    s_cbranch_scc1 {k1}
    s_mov_b32 s70, 0
    {rl}:
    ds_read_b32 v24, v29
    """)
    for u in range(4):
        a(f"ds_read_b64 v[{16+2*u}:{17+2*u}], v13 offset:{1024*u}")
    a("""
    s_waitcnt lgkmcnt(2)
    v_cmp_ne_u32 vcc, s58, v24
    v_add_f32 v16, v16, v18
    v_add_f32 v17, v17, v19
    s_waitcnt lgkmcnt(0)
    """)
    retry(a, rl, done)
    a("""
    v_add_f32 v20, v20, v22
    v_add_f32 v21, v21, v23
    v_add_f32 v16, v16, v20
    v_add_f32 v17, v17, v21
    """)
    pack_cols(a, 16)
    a(f"""
    buffer_store_dword v18, v4, s[12:15], s62 offen {st}
    ds_write_b32 v5, v18
    {k1}:
    s_cmp_eq_u32 s60, 63
    s_cbranch_scc1 {last}
    """)
    stamp(a, 1)
    for h in range(4):
        a(f"ds_read_b128 v[{80+4*h}:{83+4*h}], v27 offset:{L_VWX + 4096*h}")
    for i in range(16):
        a(f"v_mov_b32 v{96+i}, 0")
    if SL_V:
        sv = a.lab("v_sv")
        a(f"""
        s_bitcmp1_b32 s44, 0
        s_cbranch_scc0 {sv}
        s_sleep {E("SL_V1", 3)}
        {sv}:
        s_sleep {SL_V}
        """)
    vp = a.lab("v_vp")
    a("s_mov_b32 s70, 1")
    a(f"{vp}:")
    for s_ in range(2):
        a(f"buffer_load_dwordx4 v[{64+4*s_}:{67+4*s_}], v11, s[12:15], s62 offen offset:{1024*s_} sc1")
    a("s_waitcnt vmcnt(0)")
    check_sentinel(a, range(64, 72), 20)
    retry(a, vp, done)
    tries(a, 1)
    stamp(a, 2)
    for ct in range(4):
        for s_ in range(2):
            w = 64 + ct * 16 + 8 * s_
            a(f"v_smfmac_f32_16x16x64_bf16 v[{96+4*ct}:{99+4*ct}], v[{64+4*s_}:{67+4*s_}], a[{w}:{w+7}], v3")
    a("s_nop 1")
    if VXPOS == 0:
        vx_load(a)
    for ct in range(4):
        d = 96 + 4 * ct
        a(f"v_cvt_pk_bf16_f32 v{d}, v{d}, v{d+1}")
        a(f"v_cvt_pk_bf16_f32 v{d+1}, v{d+2}, v{d+3}")
        a(f"ds_write_b64 v12, v[{d}:{d+1}] offset:{2048*ct}")
    if VXPOS == 3:
        vx_load(a)
    a("s_waitcnt lgkmcnt(0)")
    stamp(a, 3)
    a("s_barrier")
    for h in range(4):
        a(f"ds_read_b128 v[{96+4*h}:{99+4*h}], v2 offset:{L_PX + 1024*h}")
    for m in range(2):
        a(f"ds_read_b128 v[{112+8*m}:{115+8*m}], v31 offset:{512*m}")
        a(f"ds_read_b128 v[{116+8*m}:{119+8*m}], v25 offset:{1024*m}")
    for h in range(4):
        a(f"s_waitcnt lgkmcnt({7-h})")
        cc = "0" if h == 0 else "v[16:19]"
        a(f"v_mfma_f32_16x16x32_bf16 v[16:19], v[{80+4*h}:{83+4*h}], v[{96+4*h}:{99+4*h}], {cc}")
    for m in range(2):
        a(f"s_waitcnt lgkmcnt({2-2*m})")
        a(f"v_mfma_f32_16x16x32_bf16 v[16:19], v[{116+8*m}:{119+8*m}], v[{112+8*m}:{115+8*m}], v[16:19]")
    a("""
    s_mov_b32 exec_lo, 0x00ff00ff
    s_mov_b32 exec_hi, 0x00ff00ff
    s_nop 5
    """)
    a("""
    v_cvt_pk_bf16_f32 v16, v16, v17
    v_cvt_pk_bf16_f32 v17, v18, v19
    v_min_u32 v16, -2, v16
    v_min_u32 v17, -2, v17
    buffer_store_dwordx2 v[16:17], v6, s[12:15], s63 offen sc1
    s_mov_b64 exec, -1
    """)
    stamp(a, 4)
    def gload(b):
        for i in range(8):
            a(f"buffer_load_dword v{b+i}, v7, s[12:15], s63 offen offset:{256*i} sc1")

    def gsum(b, younger):
        for i in range(8):
            a(f"s_waitcnt vmcnt({younger+7-i})")
            if i == 0:
                a(f"v_lshlrev_b32 v20, 16, v{b}")
                a(f"v_and_b32 v21, 0xffff0000, v{b}")
            else:
                a(f"v_lshlrev_b32 v22, 16, v{b+i}")
                a(f"v_and_b32 v23, 0xffff0000, v{b+i}")
                a("v_add_f32 v20, v20, v22")
                a("v_add_f32 v21, v21, v23")
        a("""
        v_cmp_u_f32 vcc, v20, v21
        v_cvt_pk_bf16_f32 v20, v20, v21
        """)
    a("""
    s_add_u32 s61, s61, 0x4000
    s_and_b32 s61, s61, 0xffff
    s_mov_b32 s70, 1
    """)
    gp = a.lab("v_gp")
    gok = a.lab("v_gok")

    def ga_hook():
        if SL_G:
            a(f"s_sleep {SL_G}")
        gload(96)
    hooks = {GA: ga_hook}
    if GB >= 0:
        hooks[GB] = lambda: gload(112)
    if KXPOS == 5:
        kx_dma(a)
    if E("NOF", 0):
        ga_hook()
    else:
        phase_f(a, 9 if KXPOS == 5 else 1, hooks, 0, FS)
    stamp(a, 5)
    gf = a.lab("v_gf")
    a(f"{gp}:")
    gsum(96, 0)
    a(f"s_cbranch_vccnz {gf}")
    a(f"{gok}:")

    def gcold():
        a(f"{gf}:")
        check_sentinel(a, range(96, 104), 24)
        a("v_min_u32 v20, -2, v20")
        a("s_add_u32 s70, s70, 1")
        a(f"s_cbranch_vccz {gok}")
        gload(96)
        a(f"""
        s_cmp_lt_u32 s70, {TMO}
        s_cbranch_scc1 {gp}
        s_branch {done}
        """)
    COLD.append(gcold)
    a(f"buffer_store_dword v20, v8, s[12:15], s61 offen {st}")
    tries(a, 2)
    nr = a.lab("v_nr")
    a(f"""
    s_xor_b32 s45, s61, 0x8000
    buffer_store_dword v26, v8, s[12:15], s45 offen {st}
    s_bitcmp1_b32 s44, 0
    s_cbranch_scc1 {nr}
    s_xor_b32 s45, s62, 0x4000
    buffer_store_dword v26, v4, s[12:15], s45 offen {st}
    {nr}:
    """)
    if STAMP == 1:
        a("s_lshl_b32 s79, s70, 16")
        a("s_or_b32 s79, s79, s83")
    stamp(a, 6)
    stamp_dump(a)
    a(f"""
    s_add_u32 s60, s60, 1
    s_add_u32 s62, s62, 0x2000
    s_and_b32 s62, s62, 0x7fff
    s_and_b32 s45, s60, 0x38
    s_bitcmp1_b64 s[66:67], s45
    s_cselect_b32 s45, 8192, 0
    s_lshl_b32 s63, s60, 18
    s_add_u32 s63, s63, s45
    """)
    if FS < 4:
        phase_f(a, None, {}, FS, 4)
    if SL_L1:
        a(f"s_sleep {SL_L1}")
    a(f"""
    s_branch {loop}
    {last}:
    s_waitcnt lgkmcnt(0)
    s_barrier
    s_branch {wk.REPL}
    """)
    flush_cold(a)


def gen_chain(a):
    name = "k3_chain_kernel"
    kernel_header(a, name)
    done = a.lab("c_done")
    a(f"""
    s_cmp_ge_u32 s2, 256
    s_cbranch_scc1 {done}
    s_load_dwordx4 s[20:23], s[0:1], {KA['dbg']}
    v_and_b32 v1, 63, v0
    v_lshrrev_b32 v2, 6, v0
    s_nop 0
    v_readfirstlane_b32 s44, v2
    s_waitcnt lgkmcnt(0)
    """)
    srd(a, 12, 22, 23, WS_SIZE)
    srd(a, 16, 20, 21, 256)
    if E("CTOUCH", 0):
        here = a.lab("c_here")
        ce = a.lab("c_ct")
        a(f"""
        s_getpc_b64 s[24:25]
        {here}:
        v_lshlrev_b32 v3, 7, v0
        v_mov_b32 v5, s25
        v_add_co_u32 v4, vcc, s24, v3
        s_nop 1
        v_addc_co_u32 v5, vcc, 0, v5, vcc
        v_cmp_gt_u32 vcc, {done} - {here}, v3
        s_and_saveexec_b64 s[26:27], vcc
        s_cbranch_execz {ce}
        global_load_dword v109, v[4:5], off
        {ce}:
        s_mov_b64 exec, s[26:27]
        """)
    gstamp(a, 0)
    if E("HD", 0):
        a("s_memrealtime s[92:93]")
        a("s_waitcnt lgkmcnt(0)")
        a("s_not_b32 s93, s92")
    if STAMP == 3:
        a("s_memrealtime s[90:91]")
    if NEAR:
        np_ = a.lab("np")
        a(f"""
        s_and_b32 s59, s2, 7
        s_lshl_b32 s59, s59, 21
        s_lshr_b32 s46, s2, 3
        s_lshl_b32 s46, s46, 16
        s_add_u32 s59, s59, s46
        s_lshl_b32 s46, s44, 8
        s_add_u32 s59, s59, s46
        s_add_u32 s59, s59, {WS_G + 0x4000:#x}
        s_cmp_lt_u32 s44, 4
        s_cbranch_scc1 {np_}
        v_mov_b32 v32, -1
        v_mov_b32 v33, -1
        v_mov_b32 v34, -1
        v_mov_b32 v35, -1
        v_and_b32 v3, 15, v1
        v_lshlrev_b32 v3, 4, v3
        v_bfe_u32 v4, v1, 4, 1
        v_lshl_add_u32 v3, v4, 13, v3
        s_add_u32 s46, s59, 0x4000
        s_mov_b64 exec, 0xffffffff
        buffer_store_dwordx4 v[32:35], v3, s[12:15], s46 offen sc1
        s_mov_b64 exec, -1
        {np_}:
        """)
    wk.mod1_issue(a)
    roles(a, done)
    if STAMP == 3:
        a(f"""
        s_lshl_b32 s82, s40, 5
        s_add_u32 s82, s82, s41
        s_lshl_b32 s82, s82, 2
        s_add_u32 s82, s82, {WS_STAMP + 0x80000:#x}
        v_mov_b32 v3, s90
        v_mov_b32 v4, 0
        buffer_store_dword v3, v4, s[12:15], s82 offen
        """)
    chain = a.lab("c_chain")
    a(f"""
    s_cmp_lt_u32 s41, 16
    s_cbranch_scc1 {chain}
    """)
    wk.workers(a, done)
    a(f"{chain}:")
    for r in range(4, 16):
        a(f"v_mov_b32 v{r}, 0")
    wk.tstamp(a, 0)
    assert WS_QKRING == WS_MRING + 0x80000
    a(f"""
    v_mov_b32 v32, -1
    v_mov_b32 v33, -1
    v_mov_b32 v34, -1
    v_mov_b32 v35, -1
    v_lshlrev_b32 v2, 4, v1
    s_lshl_b32 s45, s40, 16
    s_lshl_b32 s46, s41, 12
    s_add_u32 s45, s45, s46
    s_and_b32 s46, s44, 3
    s_lshl_b32 s46, s46, 10
    s_add_u32 s45, s45, s46
    s_lshr_b32 s46, s44, 2
    s_lshl_b32 s46, s46, 19
    s_add_u32 s45, s45, s46
    s_add_u32 s45, s45, {WS_MRING:#x}
    buffer_store_dwordx4 v[32:35], v2, s[12:15], s45 offen sc1
    s_lshl_b32 s45, s40, 15
    s_lshl_b32 s46, s41, 11
    s_add_u32 s45, s45, s46
    s_lshl_b32 s46, s44, 8
    s_add_u32 s45, s45, s46
    s_add_u32 s45, s45, {WS_VRING:#x}
    s_mov_b64 exec, 0xffff
    buffer_store_dwordx4 v[32:35], v2, s[12:15], s45 offen sc1
    s_lshl_b32 s45, s40, 16
    s_lshl_b32 s46, s41, 8
    s_add_u32 s45, s45, s46
    s_and_b32 s46, s44, 3
    s_lshl_b32 s46, s46, 14
    s_add_u32 s45, s45, s46
    s_add_u32 s45, s45, {WS_SMRING:#x}
    buffer_store_dwordx4 v[32:35], v2, s[12:15], s45 offen sc1
    s_mov_b64 exec, -1
    """)
    if E("TOUCH", 0) == 2:
        a(f"""
        s_load_dwordx4 s[4:7], s[0:1], {KA['Wq']}
        s_load_dwordx2 s[8:9], s[0:1], {KA['Wv']}
        v_lshrrev_b32 v2, 3, v0
        v_lshlrev_b32 v2, 13, v2
        v_and_b32 v3, 7, v0
        v_lshl_add_u32 v2, v3, 7, v2
        s_lshl_b32 s45, s41, 19
        s_lshl_b32 s46, s40, 10
        s_add_u32 s45, s45, s46
        s_waitcnt lgkmcnt(0)
        """)
        for i, (lo, hi) in enumerate(((6, 7), (8, 9), (4, 5))):
            srd(a, 24, lo, hi, 1024 * 8192)
            a(f"buffer_load_dword v{109+i}, v2, s[24:27], s45 offen")
    if E("TOUCH", 0) == 1:
        a(f"""
        s_lshr_b32 s46, s44, 2
        s_lshl_b32 s46, s46, 3
        s_add_u32 s46, s46, {KA['Wk']}
        s_load_dwordx2 s[4:5], s[0:1], s46
        v_bfe_u32 v2, v0, 3, 5
        v_lshlrev_b32 v2, 13, v2
        v_and_b32 v3, 7, v0
        v_lshl_add_u32 v2, v3, 7, v2
        s_and_b32 s45, s41, 7
        s_lshl_b32 s45, s45, 18
        s_lshr_b32 s46, s41, 3
        s_lshl_b32 s46, s46, 22
        s_add_u32 s45, s45, s46
        s_add_u32 s45, s45, {256*8192}
        s_lshl_b32 s46, s40, 10
        s_add_u32 s45, s45, s46
        s_waitcnt lgkmcnt(0)
        """)
        srd(a, 24, 4, 5, 1024 * 8192)
        a(f"buffer_load_dword v110, v2, s[24:27], s45 offen")
    a(f"""
    v_lshlrev_b32 v2, 4, v1
    v_and_b32 v3, 8, v1
    v_cmp_eq_u32 vcc, 0, v3
    v_mov_b32 v3, 0xeeeeeeee
    v_mov_b32 v4, 0x44444444
    v_cndmask_b32 v3, v3, v4, vcc
    v_and_b32 v100, 15, v1
    v_lshrrev_b32 v101, 4, v1
    v_and_b32 v102, 1, v101
    v_lshrrev_b32 v103, 1, v101
    v_lshlrev_b32 v104, 2, v102
    v_lshl_add_u32 v104, v103, 1, v104
    v_and_b32 v105, 1, v1
    v_add_u32 v104, v104, v105
    v_and_b32 v106, 7, v1
    v_bfe_u32 v107, v1, 3, 1
    s_lshr_b32 s42, s41, 2
    s_and_b32 s43, s41, 3
    s_lshl_b32 s49, s40, 2
    s_add_u32 s49, s49, s42
    s_lshl_b32 s45, s44, 14
    """)
    a("""
    v_lshlrev_b32 v22, 3, v101
    v_bfe_u32 v23, v1, 2, 2
    v_add_u32 v22, v22, v23
    v_and_b32 v23, 3, v1
    v_lshlrev_b32 v24, 3, v23
    v_lshl_add_u32 v20, v22, 6, v24
    v_lshl_add_u32 v21, v22, 7, v24
    v_lshrrev_b32 v22, 2, v1
    v_lshlrev_b32 v23, 4, v23
    v_lshl_add_u32 v24, v22, 13, v23
    v_lshrrev_b32 v22, 3, v1
    v_lshlrev_b32 v23, 4, v106
    v_lshl_add_u32 v25, v22, 11, v23
    """)
    vinit = a.lab("v_init")
    join = a.lab("c_join")
    a(f"""
    s_cmp_ge_u32 s44, 4
    s_cbranch_scc1 {vinit}
    """)
    a(f"""
    s_lshr_b32 s50, s44, 1
    s_and_b32 s51, s44, 1
    s_load_dwordx4 s[4:7], s[0:1], {KA['Wq']}
    s_lshl_b32 s46, s49, 8
    s_lshl_b32 s48, s43, 6
    s_add_u32 s46, s46, s48
    s_lshl_b32 s48, s44, 21
    s_add_u32 s46, s46, s48
    s_lshl_b32 s52, s51, 5
    s_xor_b32 s53, s50, 1
    s_lshl_b32 s53, s53, 16
    s_add_u32 s52, s52, s53
    v_add_u32 v20, s52, v20
    s_waitcnt lgkmcnt(0)
    """)
    srd(a, 24, 6, 7, 1024 * 8192)
    srd(a, 28, 4, 5, 1024 * 8192)
    a(f"""
    s_lshl_b32 s52, s51, 9
    s_lshl_b32 s53, s50, 7
    s_add_u32 s52, s52, s53
    s_add_u32 s52, s52, {L_XL}
    v_lshlrev_b32 v5, 1, v106
    v_lshl_add_u32 v5, v107, 8, v5
    v_lshl_add_u32 v5, v102, 6, v5
    v_lshl_add_u32 v5, v103, 5, v5
    v_add_u32 v5, s52, v5
    s_lshl_b32 s67, s49, 12
    s_lshl_b32 s53, s43, 10
    s_add_u32 s67, s67, s53
    s_add_u32 s67, s67, {WS_MKV:#x}
    s_lshl_b32 s52, s40, 16
    s_lshl_b32 s53, s44, 12
    s_add_u32 s53, s52, s53
    s_add_u32 s53, s53, {WS_QKRING:#x}
    v_add_u32 v7, s53, v2
    s_lshl_b32 s53, s44, 10
    s_add_u32 s53, s52, s53
    s_add_u32 s53, s53, {WS_SMRING:#x}
    v_lshlrev_b32 v28, 7, v103
    v_lshl_add_u32 v28, v106, 4, v28
    v_lshl_add_u32 v28, v102, 3, v28
    v_lshl_add_u32 v28, v107, 2, v28
    v_add_u32 v28, s53, v28
    s_lshl_b32 s52, s44, 10
    s_add_u32 s52, s52, {L_PX}
    v_lshlrev_b32 v8, 8, v101
    v_lshl_add_u32 v8, v106, 4, v8
    v_lshl_add_u32 v8, v107, 3, v8
    v_add_u32 v8, s52, v8
    s_lshl_b32 s52, s44, 8
    s_add_u32 s52, s52, {L_PM}
    v_lshlrev_b32 v9, 4, v106
    v_lshl_add_u32 v9, v101, 2, v9
    v_lshl_add_u32 v9, v107, 1, v9
    v_add_u32 v9, s52, v9
    s_mov_b32 s66, 0x3e0293ee
    """)
    if E("TWAIT", 0):
        a("s_waitcnt vmcnt(0)")
    wk.tstamp(a, 4)
    for r in range(2):
        stage_issue(a, 24 + 4 * r, 24, [16 * i * 8192 for i in range(16)])
        a("s_add_u32 s45, s45, 0x10000")
    a("s_waitcnt vmcnt(0)")
    wk.tstamp(a, 5)
    a("s_barrier")
    wk.tstamp(a, 6)
    wk.zwait(a, done, 16)
    nr = a.lab("c_nr")
    a(f"""
    s_cmp_lg_u32 s44, 0
    s_cbranch_scc1 {nr}
    s_or_b32 s47, s39, 0x100
    v_mov_b32 v16, s47
    s_lshl_b32 s52, s40, 6
    s_lshl_b32 s53, s41, 2
    s_add_u32 s52, s52, s53
    s_add_u32 s52, s52, {CTL_READY:#x}
    v_mov_b32 v17, 0
    s_mov_b64 exec, 1
    buffer_store_dword v16, v17, s[12:15], s52 offen sc1
    s_mov_b64 exec, -1
    {nr}:
    """)
    stage_read(a, 20, [(4 * f, 2048 * f) for f in range(32)], 256)
    a(f"""
    s_mov_b32 s63, 0
    """)
    wk.tstamp(a, 1)
    a("s_barrier")
    a(f"""
    s_lshl_b32 s52, s40, 2
    s_add_u32 s52, s52, s44
    s_mul_i32 s52, s52, 24576
    s_lshl_b32 s53, s41, 9
    s_add_u32 s52, s52, s53
    s_add_u32 s52, s52, {WS_QKV + 16384:#x}
    v_and_b32 v14, 3, v1
    v_lshlrev_b32 v14, 7, v14
    v_add_u32 v14, s52, v14
    s_lshl_b32 s52, s40, 16
    s_lshl_b32 s53, s41, 10
    s_add_u32 s53, s53, s52
    s_lshl_b32 s54, s44, 7
    s_add_u32 s53, s53, s54
    s_add_u32 s53, s53, {WS_QKRING:#x}
    v_lshlrev_b32 v4, 4, v106
    v_lshl_add_u32 v10, v102, 7, v4
    v_lshl_add_u32 v4, v101, 8, v4
    v_add_u32 v4, s53, v4
    s_lshl_b32 s53, s41, 8
    s_add_u32 s53, s53, s52
    s_add_u32 s53, s53, {WS_SMRING:#x}
    v_add_u32 v10, s53, v10
    s_cmp_ge_u32 s44, 2
    s_cselect_b64 vcc, -1, 0
    v_cndmask_b32 v4, v4, v10, vcc
    s_mul_i32 s52, s49, 24576
    s_lshl_b32 s53, s44, 12
    s_add_u32 s52, s52, s53
    s_lshl_b32 s53, s43, 10
    s_add_u32 s52, s52, s53
    s_add_u32 s52, s52, {WS_QKV + 8192:#x}
    v_add_u32 v6, s52, v2
    v_lshrrev_b32 v10, 3, v1
    v_lshlrev_b32 v10, 8, v10
    v_lshl_add_u32 v10, v106, 4, v10
    v_add_u32 v10, {L_XL + 128}, v10
    v_add_u32 v11, {L_KV}, v2
    v_cmp_gt_u32 s[52:53], 32, v1
    s_nop 1
    v_cndmask_b32 v10, v11, v10, s[52:53]
    v_cndmask_b32 v6, v6, v10, vcc
    v_mov_b32 v24, -1
    v_mov_b32 v25, -1
    v_mov_b32 v26, -1
    v_mov_b32 v27, -1
    v_mov_b32 v29, {L_TICK + 20}
    v_mov_b32 v30, 0
    ds_write_b32 v29, v30
    v_mov_b32 v30, 1
    s_lshl_b32 s58, s40, 11
    s_lshl_b32 s53, s44, 7
    s_add_u32 s58, s58, s53
    s_add_u32 s58, s58, {WS_FLG + FQ + 512:#x}
    s_mov_b32 s69, 0
    v_mov_b32 v0, 0
    s_cmp_ge_u32 s44, 2
    s_cselect_b32 s50, 0, 0x00ff00ff
    s_mov_b32 s51, 0x00ff00ff
    s_setprio 1
    s_branch {join}
    """)
    a(f"""
    {vinit}:
    s_sub_u32 s54, s44, 4
    s_lshr_b32 s51, s54, 1
    s_and_b32 s50, s54, 1
    s_load_dwordx4 s[4:7], s[0:1], {KA['Wv']}
    s_load_dwordx2 s[8:9], s[0:1], {KA['mem0']}
    s_waitcnt lgkmcnt(0)
    """)
    srd(a, 24, 4, 5, 1024 * 8192)
    srd(a, 28, 6, 7, 4096 * 2048)
    srd(a, 32, 8, 9, 16384)
    a(f"""
    s_lshl_b32 s45, s54, 12
    s_add_u32 s45, s45, 0x20000
    v_add_u32 v20, s45, v20
    v_add_u32 v21, s45, v21
    v_add_u32 v22, s45, v2
    s_lshl_b32 s46, s49, 8
    s_lshl_b32 s48, s43, 6
    s_add_u32 s46, s46, s48
    s_lshl_b32 s48, s54, 21
    s_add_u32 s46, s46, s48
    """)
    wo_reg = lambda i: 64 + 16 * (i & 3) + 4 * (i >> 2)
    wv_reg = lambda i: 32 * (i & 1) + 4 * (i >> 1)
    for i in range(16):
        a(f"s_add_u32 s48, s46, {16*i*8192:#x}")
        a(f"buffer_load_dwordx4 a[{wv_reg(i)}:{wv_reg(i)+3}], v24, s[24:27], s48 offen")
    a(f"""
    s_lshl_b32 s52, s40, 15
    s_lshl_b32 s53, s42, 11
    s_add_u32 s52, s52, s53
    s_lshl_b32 s53, s43, 9
    s_add_u32 s52, s52, s53
    s_lshl_b32 s53, s51, 8
    s_add_u32 s52, s52, s53
    s_add_u32 s52, s52, {WS_VRING:#x}
    v_bfe_u32 v4, v1, 1, 1
    v_lshlrev_b32 v4, 7, v4
    v_lshl_add_u32 v4, v104, 4, v4
    v_and_b32 v5, 12, v100
    v_add_u32 v4, v4, v5
    v_add_u32 v4, s52, v4
    v_mov_b32 v26, -1
    """)
    a(f"""
    s_lshl_b32 s52, s51, 5
    s_add_u32 s52, s52, {L_KV + 512}
    v_and_b32 v5, 14, v100
    v_lshlrev_b32 v5, 1, v5
    v_lshl_add_u32 v5, v104, 6, v5
    v_add_u32 v5, s52, v5
    """)
    a(f"""
    s_lshl_b32 s52, s41, 14
    s_lshl_b32 s53, s54, 11
    s_add_u32 s52, s52, s53
    s_add_u32 s52, s52, {WS_G:#x}
    v_lshlrev_b32 v6, {3 if E("GL", 1) else 6}, v101
    v_lshl_add_u32 v6, v106, {5 if E("GL", 1) else 3}, v6
    v_and_b32 v7, 3, v1
    v_lshlrev_b32 v7, {3 if E("GL", 1) else 6}, v7
    v_bfe_u32 v30, v1, 2, 3
    v_lshl_add_u32 v7, v30, {5 if E("GL", 1) else 3}, v7
    v_lshl_add_u32 v7, v103, 2, v7
    v_add_u32 v7, s52, v7
    s_lshl_b32 s53, s40, 8
    s_add_u32 s52, s52, s53
    v_add_u32 v6, s52, v6
    v_lshlrev_b32 v30, 4, v100
    v_lshl_add_u32 v30, v101, 18, v30
    v_add_u32 v30, s52, v30
    v_mov_b32 v32, -1
    v_mov_b32 v33, -1
    v_mov_b32 v34, -1
    v_mov_b32 v35, -1
    buffer_store_dwordx4 v[32:35], v30, s[12:15], 0 offen sc1
    s_mov_b32 s53, 8192
    buffer_store_dwordx4 v[32:35], v30, s[12:15], s53 offen sc1
    """)
    a(f"""
    s_lshl_b32 s55, s40, 16
    s_add_u32 s55, s55, {WS_MRING:#x}
    s_lshl_b32 s52, s41, 10
    s_lshl_b32 s53, s54, 8
    s_add_u32 s52, s52, s53
    s_add_u32 s52, s52, s55
    v_lshlrev_b32 v8, 2, v1
    v_add_u32 v8, s52, v8
    s_lshl_b32 s53, s54, 12
    v_add_u32 v10, s53, v2
    v_add_u32 v9, s55, v10
    s_lshl_b32 s52, s40, 15
    s_lshl_b32 s53, s54, 11
    s_add_u32 s52, s52, s53
    s_add_u32 s52, s52, {WS_VRING:#x}
    v_add_u32 v11, s52, v2
    s_lshl_b32 s52, s54, 9
    s_add_u32 s52, s52, {L_VWM}
    v_lshlrev_b32 v12, 4, v100
    v_lshl_add_u32 v12, v102, 3, v12
    v_lshl_add_u32 v12, v103, 8, v12
    v_add_u32 v12, s52, v12
    s_lshl_b32 s52, s51, 3
    s_add_u32 s52, s52, {L_VRED}
    v_add_u32 v13, s52, v2
    s_lshl_b32 s52, s54, 10
    s_add_u32 s52, s52, {L_VRED}
    v_add_u32 v14, s52, v2
    s_lshl_b32 s52, s40, 2
    s_add_u32 s52, s52, s54
    s_mul_i32 s52, s52, 24576
    s_add_u32 s52, s52, {WS_QKV + 16384:#x}
    v_add_u32 v15, s52, v2
    s_lshl_b32 s52, s54, 10
    v_add_u32 v27, s52, v2
    """)
    a(f"""
    v_lshlrev_b32 v30, 11, v106
    v_lshl_add_u32 v30, v101, 5, v30
    v_lshl_add_u32 v30, v107, 2, v30
    s_lshl_b32 s52, s54, 9
    """)
    for i in range(4):
        for p in range(4):
            a(f"buffer_load_dword v{112+4*i+p}, v30, s[32:35], s52 offen offset:{128*i + 8*p}")
    a(f"""
    s_lshl_b32 s46, s40, 2
    s_add_u32 s46, s46, s54
    s_lshl_b32 s46, s46, 18
    s_lshl_b32 s48, s41, 7
    s_add_u32 s46, s46, s48
    """)
    for i in range(16):
        a(f"s_add_u32 s48, s46, {8*i*2048:#x}")
        a(f"buffer_load_dwordx4 a[{wo_reg(i)}:{wo_reg(i)+3}], v25, s[28:31], s48 offen")
    a("s_waitcnt vmcnt(16)")
    for grp in range(8):
        if grp == 4:
            a("s_barrier")
            a("s_waitcnt vmcnt(0)")
        g4 = grp & 3
        reg = wv_reg if grp < 4 else wo_reg
        for j in range(4):
            r = reg(4 * g4 + j)
            a(f"ds_write_b128 v22, a[{r}:{r+3}] offset:{1024*j}")
        a("s_waitcnt lgkmcnt(0)")
        if grp >= 4:
            stage_read(a, 21, [(64 + 16 * ct + 4 * g4, 32 * ct) for ct in range(4)], 512)
        else:
            stage_read(a, 20, [(32 * e + 4 * (2 * g4 + h), 2048 * h + 32 * e) for h in range(2) for e in range(2)], 256)
    a("""
    s_mov_b32 s65, 0
    s_waitcnt vmcnt(0)
    s_barrier
    """)
    a(f"""
    s_lshl_b32 s57, s40, 11
    s_lshl_b32 s53, s54, 7
    s_add_u32 s57, s57, s53
    s_add_u32 s57, s57, {WS_FLG + FQ + 512:#x}
    s_mov_b32 s69, 0
    s_mov_b32 s68, 0
    """)
    kv_wait(a, done)
    a(f"""
    v_subrev_u32 v28, 8192, v15
    v_lshlrev_b32 v31, 4, v100
    v_lshl_add_u32 v31, v103, 8, v31
    v_add_u32 v31, {L_PM}, v31
    s_lshl_b32 s52, s54, 11
    s_add_u32 s52, s52, {L_VWM}
    v_add_u32 v25, s52, v2
    v_mov_b32 v29, {L_TICK + 16}
    v_mov_b32 v30, 0
    ds_write_b32 v29, v30
    v_mov_b32 v30, 1
    s_mov_b32 s58, 0
    s_mov_b32 s64, 0
    """)
    if KXPOS == 5:
        kx_dma(a)
    vx_load(a)
    a(f"""
    s_mov_b32 s45, {WS_VOTE:#x}
    buffer_load_dwordx4 v[96:99], v2, s[12:15], s45 offen sc1
    """)
    phase_f(a, 0)
    a(f"""
    v_add3_u32 v96, v96, v97, v98
    v_add_u32 v96, v96, v99
    s_nop 1
    v_add_u32_dpp v96, v96, v96 quad_perm:[1,0,3,2] row_mask:0xf bank_mask:0xf
    s_nop 1
    v_add_u32_dpp v96, v96, v96 quad_perm:[2,3,0,1] row_mask:0xf bank_mask:0xf
    s_nop 1
    v_add_u32_dpp v96, v96, v96 row_half_mirror row_mask:0xf bank_mask:0xf
    v_cmp_lt_u32 s[66:67], 64, v96
    s_nop 3
    {"" if NEAR == 1 else "s_mov_b64 s[66:67], 0" if NEAR == 0 else "s_not_b64 s[66:67], s[66:67]"}
    s_bitcmp1_b32 s66, 0
    s_cselect_b32 s63, 8192, 0
    """)
    a("s_mov_b32 s68, 1")
    kv_wait(a, done)
    a("s_waitcnt lgkmcnt(0)")
    for i in range(16):
        a(f"v_min_u32 v{64+i}, -2, v{112+i}")
    for i in range(8):
        a(f"v_mov_b32 v{16+i}, 0")
    a(f"{join}:")
    gstamp(a, 1)
    nh = a.lab("c_nh")
    rp = a.lab("c_rp")
    a(f"""
    s_mov_b32 s60, 0
    s_mov_b32 s61, 0
    s_mov_b32 s62, 0
    s_cmp_lg_u32 s44, 0
    s_cbranch_scc1 {nh}
    v_lshlrev_b32 v17, 3, v1
    s_lshl_b32 s46, s40, 3
    v_mov_b32 v21, s46
    s_mov_b32 s45, {CTL_READY:#x}
    s_mov_b32 s70, 0
    {rp}:
    buffer_load_dwordx2 v[18:19], v17, s[12:15], s45 offen sc1
    buffer_load_dwordx2 v[22:23], v21, s[12:15], s45 offen offset:512 sc1
    s_waitcnt vmcnt(0)
    v_min3_u32 v20, v18, v19, v22
    v_min_u32 v20, v20, v23
    v_cmp_eq_u32 vcc, 0, v20
    """)
    retry(a, rp, done)
    a(f"""
    v_cmp_eq_u32 s[52:53], v18, v16
    v_cmp_eq_u32 vcc, v19, v16
    v_cmp_eq_u32 s[54:55], v22, v16
    v_cmp_eq_u32 s[56:57], v23, v16
    s_lshl_b32 s46, s40, 3
    s_nop 3
    s_and_b64 s[52:53], s[52:53], vcc
    {"" if SPLIT else "s_and_b64 s[52:53], s[52:53], s[54:55]"}
    {"" if SPLIT else "s_and_b64 s[52:53], s[52:53], s[56:57]"}
    s_lshr_b64 s[52:53], s[52:53], s46
    s_and_b32 s52, s52, 0xff
    s_cmp_eq_u32 s52, 0xff
    s_cselect_b32 s52, {0 if FORCE_SLOW else 1}, 0
    v_mov_b32 v16, s52
    v_mov_b32 v17, {L_TICK}
    ds_write_b32 v17, v16
    {nh}:
    s_waitcnt lgkmcnt(0)
    s_barrier
    v_mov_b32 v17, {L_TICK}
    ds_read_b32 v16, v17
    s_waitcnt lgkmcnt(0)
    v_readfirstlane_b32 s52, v16
    """)
    gstamp(a, 2)
    if E("HD", 0):
        sk = a.lab("hd")
        a(f"s_cmp_lg_u32 s44, 4")
        a(f"s_cbranch_scc1 {sk}")
        hd(a, 5)
        hd(a, 1, val="s66")
        hd(a, 2, val="s67")
        a(f"{sk}:")
    lsf, lss, lvf, lvs = (a.lab(x) for x in ("sf", "ss", "vf", "vs"))
    a(f"""
    s_nop 3
    s_cmp_ge_u32 s44, 4
    s_cbranch_scc1 {lvf}
    s_mov_b32 s57, s58
    s_mov_b32 s58, 0
    s_cmp_ge_u32 s44, 2
    s_cbranch_scc1 {lsf}
    buffer_load_dwordx4 v[32:35], v6, s[12:15], 0 offen sc1
    {lsf}:
    s_cmp_eq_u32 s52, 0
    s_cbranch_scc1 {lss}
    """)
    s_loop(a, done, True)
    a(f"{lss}:")
    s_loop(a, done, False)
    a(f"""
    {lvf}:
    s_cmp_eq_u32 s52, 0
    s_cbranch_scc1 {lvs}
    """)
    v_loop(a, done, True)
    a(f"{lvs}:")
    v_loop(a, done, False)
    a(f"{done}:")
    if E("HD", 0):
        sk = a.lab("hd")
        a(f"s_cmp_ge_u32 s2, 256")
        a(f"s_cbranch_scc1 {sk}")
        a(f"s_cmp_lg_u32 s44, 0")
        a(f"s_cbranch_scc1 {sk}")
        hd(a, 7)
        hd(a, 3, val="s93")
        a(f"{sk}:")
    a("s_endpgm")
    return name, kd(name, 256, accum=128), f"grid=(256,1,1) block=(512,1,1) lds={LDS_BYTES}"
```

```python
import os
from lib1 import *
import workers as wk

E = lambda k, d: int(os.environ.get(k, str(d)))
STAMP = E("STAMP", 0)
STEP = E("STEP", 20)
SL_G = E("SL_G", 7)
SL_L1 = E("SL_L1", 3)
SL_X = E("SL_X", 5)
SL_V = E("SL_V", 3)
KXPOS = 6
VXPOS = E("VXPOS", 8)
GA = E("GA", 0)
GB = E("GB", -1)
SL_K = E("SL_K", 0)
WARM = E("WARM", 4)
FORCE_SLOW = E("SLOW", 0)
SPLIT = E("SPLIT", 1)
NEAR = E("NEAR", 1)
SB = E("SB", 1)
EF = E("EF", 0)
EFS = E("EFS", 2)
XGP = E("XGP", 2)
XSL = E("XSL", 2)
FS = E("FS", 3)
TMO = 0x80000

L_MEM = 0
L_PX = 16384
L_PM = 20480
L_VWM = 53248
L_VRED = 49152
L_TICK = 26624
L_VWX = 32768
L_XL = 61440
L_XG = 65536
L_OL = 62464
NU = 4 * (64 - XS)
assert XT0 + NU + 1 <= 58
L_KV = 27648
LDS_BYTES = wk.LDS_BYTES

PFD = 4
CTL_READY = WS_CTL + 4096
CTL_VOTE = WS_CTL + 6144


def gstamp(a, i):
    if STAMP == 2:
        a("s_memrealtime s[80:81]")
        a("s_memtime s[82:83]")
        a("s_waitcnt lgkmcnt(0)")
        a(f"s_mov_b32 s{72+i}, s80")
        a(f"s_mov_b32 s{76+i}, s82")


def hd(a, word, neg=False, val=None):
    if not E("HD", 0):
        return
    a("s_memrealtime s[80:81]")
    a("s_waitcnt lgkmcnt(0)")
    if neg:
        a("s_not_b32 s80, s80")
    a(f"""
    v_mov_b32 v126, {val or "s80"}
    v_mov_b32 v127, 0
    s_mov_b64 exec, 1
    buffer_atomic_umax v126, v127, s[16:19], 0 offen offset:{4*word}
    s_mov_b64 exec, -1
    """)


def stamp(a, i):
    if STAMP == 5:
        a(f"s_memtime s[{72+2*i}:{73+2*i}]")
    if STAMP == 1:
        a("s_memrealtime s[80:81]")
        a("s_waitcnt lgkmcnt(0)")
        a(f"s_mov_b32 s{72+i}, s80")


def tries(a, slot):
    if STAMP == 3:
        if slot == 0:
            a("s_mov_b32 s79, s70")
        else:
            a(f"s_lshl_b32 s83, s70, {8*slot}")
            a("s_or_b32 s79, s79, s83")


def stamp_dump(a):
    if STAMP == 5:
        n1 = a.lab("st5a")
        n2 = a.lab("st5b")
        a(f"""
        s_waitcnt lgkmcnt(0)
        s_cmp_lt_u32 s60, {E("S0", 8)}
        s_cbranch_scc0 {n1}
        """)
        for i in range(8):
            a(f"s_mov_b32 s{90+i}, 0")
        a(f"{n1}:")
        a("s_sub_u32 s89, s72, s88")
        a("s_add_u32 s90, s90, s89")
        for i in range(1, 7):
            a(f"s_sub_u32 s89, s{72+2*i}, s{70+2*i}")
            a(f"s_add_u32 s{90+i}, s{90+i}, s89")
        a(f"""
        s_mov_b32 s88, s84
        s_add_u32 s97, s97, 1
        s_cmp_lg_u32 s60, {E("S1", 56)}
        s_cbranch_scc1 {n2}
        s_lshl_b32 s89, s40, 4
        s_add_u32 s89, s89, s41
        s_lshl_b32 s89, s89, 3
        s_add_u32 s89, s89, s44
        s_lshl_b32 s89, s89, 5
        s_add_u32 s89, s89, {WS_STAMP:#x}
        v_mov_b32 v22, 0
        """)
        for i in range(8):
            a(f"v_mov_b32 v21, s{90+i}")
            a(f"buffer_store_dword v21, v22, s[12:15], s89 offen offset:{4*i}")
        a(f"{n2}:")
        return
    if STAMP not in (1, 2, 3):
        return
    if STAMP == 3:
        a(f"""
        s_memrealtime s[80:81]
        s_lshl_b32 s82, s40, 4
        s_add_u32 s82, s82, s41
        s_lshl_b32 s82, s82, 3
        s_add_u32 s82, s82, s44
        s_lshl_b32 s82, s82, 6
        s_add_u32 s82, s82, s60
        s_lshl_b32 s82, s82, 3
        s_add_u32 s82, s82, {WS_STAMP:#x}
        v_mov_b32 v22, 0
        v_mov_b32 v21, s79
        s_waitcnt lgkmcnt(0)
        v_mov_b32 v20, s80
        s_mov_b64 exec, 1
        buffer_store_dwordx2 v[20:21], v22, s[12:15], s82 offen
        s_mov_b64 exec, -1
        """)
        return
    nst = a.lab("nost")
    a(f"""
    s_cmp_lg_u32 s60, {STEP if STAMP == 1 else 62}
    s_cbranch_scc1 {nst}
    """)
    gstamp(a, 3)
    a(f"""
    s_lshl_b32 s82, s40, 4
    s_add_u32 s82, s82, s41
    s_lshl_b32 s82, s82, 3
    s_add_u32 s82, s82, s44
    s_lshl_b32 s82, s82, 5
    s_add_u32 s82, s82, {WS_STAMP:#x}
    v_mov_b32 v20, 0
    """)
    for i in range(8):
        a(f"v_mov_b32 v21, s{72+i}")
        a(f"buffer_store_dword v21, v20, s[12:15], s82 offen offset:{4*i}")
    a(f"{nst}:")


def check_sentinel(a, regs, tmp):
    regs = list(regs)
    a(f"v_max3_u32 v{tmp}, v{regs[0]}, v{regs[1]}, v{regs[2]}")
    rest = regs[3:]
    while len(rest) >= 2:
        a(f"v_max3_u32 v{tmp}, v{tmp}, v{rest[0]}, v{rest[1]}")
        rest = rest[2:]
    if rest:
        a(f"v_max_u32 v{tmp}, v{tmp}, v{rest[0]}")
    a(f"v_cmp_eq_u32 vcc, -1, v{tmp}")


COLD = []


def flush_cold(a):
    for blk in COLD:
        blk()
    COLD.clear()


def retry(a, lab, done):
    fail = a.lab("rt")
    a(f"s_cbranch_vccnz {fail}")
    COLD.append(lambda: a(f"""
    {fail}:
    s_add_u32 s70, s70, 1
    s_cmp_lt_u32 s70, {TMO}
    s_cbranch_scc1 {lab}
    s_branch {done}
    """))


def roles(a, done):
    tk = a.lab("tk")
    got = a.lab("got")
    sp = a.lab("sp")
    nz = a.lab("nz")
    a(f"""
    s_getreg_b32 s39, hwreg(HW_REG_XCC_ID)
    s_and_b32 s39, s39, 7
    s_cmp_lg_u32 s44, 1
    s_cbranch_scc1 {nz}
    v_mov_b32 v32, 0
    v_mov_b32 v33, 0
    v_mov_b32 v34, 0
    v_mov_b32 v35, 0
    v_lshlrev_b32 v4, 4, v1
    s_lshl_b32 s45, s2, 10
    s_add_u32 s45, s45, {WS_CTL:#x}
    buffer_store_dwordx4 v[32:35], v4, s[12:15], s45 offen sc1
    {nz}:
    """)
    wk.mod1_finish(a)
    a(f"""
    s_cmp_lg_u32 s44, 1
    s_cbranch_scc1 {tk}
    v_mov_b32 v3, 1
    {("s_mov_b32 s40, s39", "s_lshr_b32 s40, s2, 5", "s_and_b32 s40, s2, 3")[E("FAKEX", 0)]}
    s_lshl_b32 s45, s40, 5
    v_mov_b32 v4, 0
    s_waitcnt vmcnt(0)
    s_mov_b64 exec, 1
    buffer_atomic_add v3, v4, s[16:19], s45 offen sc0
    s_waitcnt vmcnt(0)
    v_readfirstlane_b32 s41, v3
    s_nop 3
    s_cmp_lt_u32 s41, 32
    s_cbranch_scc1 {got}
    v_mov_b32 v3, 1
    buffer_atomic_add v3, v4, s[16:19], 0 offen offset:16 sc0
    s_waitcnt vmcnt(0)
    v_readfirstlane_b32 s46, v3
    s_mov_b64 exec, -1
    v_and_b32 v4, 7, v1
    v_lshlrev_b32 v4, 5, v4
    s_mov_b32 s70, 0
    {sp}:
    s_sleep 8
    buffer_load_dword v3, v4, s[16:19], 0 offen sc1
    s_waitcnt vmcnt(0)
    s_mov_b32 s48, 0
    """)
    for i in range(8):
        a(f"v_readlane_b32 s{50+i}, v3, {i}")
    a("s_nop 3")
    for i in range(8):
        a(f"s_add_u32 s48, s48, s{50+i}")
    a(f"""
    s_add_u32 s70, s70, 1
    s_cmp_ge_u32 s70, {TMO}
    s_cbranch_scc1 {done}
    s_cmp_lt_u32 s48, 256
    s_cbranch_scc1 {sp}
    """)
    for i in range(8):
        a(f"""
        s_min_u32 s48, s{50+i}, 32
        s_mov_b32 s40, {i}
        s_add_u32 s41, s48, s46
        s_cmp_lt_u32 s41, 32
        s_cbranch_scc1 {got}
        s_sub_u32 s46, s41, 32
        """)
    a(f"""
    s_branch {done}
    {got}:
    s_mov_b64 exec, -1
    s_lshl_b32 s45, s40, 8
    s_or_b32 s45, s45, s41
    v_mov_b32 v3, s45
    v_mov_b32 v4, {wk.L_BC + 8}
    ds_write_b32 v4, v3
    s_waitcnt lgkmcnt(0)
    {tk}:
    s_barrier
    v_mov_b32 v4, {wk.L_BC + 8}
    ds_read_b32 v3, v4
    s_waitcnt lgkmcnt(0)
    v_readfirstlane_b32 s45, v3
    s_nop 3
    s_lshr_b32 s40, s45, 8
    s_and_b32 s41, s45, 0xff
    """)
    if SPLIT:
        a(f"""
        s_lshr_b32 s45, s40, 2
        s_xor_b32 s45, s45, {1 if SPLIT == 1 else 0}
        s_lshl_b32 s45, s45, 4
        s_and_b32 s40, s40, 3
        s_lshl_b32 s40, s40, 1
        s_lshr_b32 s46, s41, 4
        s_add_u32 s40, s40, s46
        s_and_b32 s41, s41, 15
        s_add_u32 s41, s41, s45
        """)


def stage_issue(a, sr, voff, soffs):
    for i, so in enumerate(soffs):
        a(f"s_add_u32 m0, s45, {1024*i}")
        a(f"s_add_u32 s48, s46, {so:#x}")
        a(f"buffer_load_dwordx4 v{voff}, s[{sr}:{sr+3}], s48 offen lds")


def stage_read(a, vtr, frags, second):
    for i, (r, off) in enumerate(frags):
        a(f"ds_read_b64_tr_b16 a[{r}:{r+1}], v{vtr} offset:{off}")
        a(f"ds_read_b64_tr_b16 a[{r+2}:{r+3}], v{vtr} offset:{off+second}")
        if i % 4 == 3:
            a("s_waitcnt lgkmcnt(0)")


def halves_add(a, d):
    a(f"v_permlane32_swap_b32 v{d}, v{d+2}")
    a(f"v_permlane32_swap_b32 v{d+1}, v{d+3}")
    a(f"v_add_f32 v{d}, v{d}, v{d+2}")
    a(f"v_add_f32 v{d+1}, v{d+1}, v{d+3}")


def pack_cols(a, d):
    a(f"""
    s_mov_b32 vcc_lo, 0x55555555
    s_mov_b32 vcc_hi, 0x55555555
    v_cndmask_b32_dpp v{d+2}, v{d+1}, v{d}, vcc quad_perm:[1,0,3,2] row_mask:0xf bank_mask:0xf
    s_not_b64 vcc, vcc
    v_cndmask_b32_dpp v{d+3}, v{d}, v{d+1}, vcc quad_perm:[1,0,3,2] row_mask:0xf bank_mask:0xf
    v_cvt_pk_bf16_f32 v{d+2}, v{d+2}, v{d+3}
    v_min_u32 v{d+2}, -2, v{d+2}
    """)


def kx_prefetch(a, t_off, base=32):
    a(f"s_add_u32 s46, s{t_off}, 4096")
    for kt in range(2):
        for ks in range(4):
            r = base + (kt * 4 + ks) * 4
            a(f"buffer_load_dwordx4 v[{r}:{r+3}], v6, s[12:15], s{t_off if kt == 0 else 46} offen offset:{1024*ks} sc1")


def vx_load(a, only=None):
    if only in (None, 0):
        a(f"s_add_u32 s46, s65, 4096")
    for ks in range(4):
        if only is not None and ks != only:
            continue
        for kt in range(2):
            r = 32 + (kt * 4 + ks) * 4
            a(f"buffer_load_dwordx4 v[{r}:{r+3}], v15, s[12:15], s{65 if kt == 0 else 46} offen offset:{1024*ks} sc1")
    if only in (None, 3):
        a(f"s_add_u32 s65, s65, {32*24576}")


def kx_dma(a):
    a("s_add_u32 s46, s64, 4096")
    for kt in range(2):
        a(f"s_add_u32 m0, s59, {4096*kt}")
        a("s_nop 0")
        for ks in range(4):
            a(f"buffer_load_dwordx4 v28, s[12:15], s{64 if kt == 0 else 46} offen offset:{1024*ks} sc1 lds")
    a(f"s_add_u32 s64, s64, {32*24576}")


def phase_f(a, younger, hooks={}, c0=0, c1=4):
    if younger is not None:
        a(f"s_waitcnt vmcnt({younger})")

    base = (lambda ct: (72, 112, 120, 72)[ct]) if EF and younger != 0 else (lambda ct: 64 + 8 * ct)

    def drain(ct):
        c = base(ct)
        for i in range(4):
            a(f"v_cvt_pk_bf16_f32 v{c+i}, v{c+2*i}, v{c+2*i+1}")
        a(f"ds_write_b128 v10, v[{c}:{c+3}] offset:{L_VWX + ct*1024}")
    for ct in range(c0, c1):
        if ct in hooks:
            hooks[ct]()
        for ks in range(4):
            for kt in range(2):
                c = base(ct) + 4 * kt
                f = 32 + (kt * 4 + ks) * 4
                w = 64 + ct * 16 + ks * 4
                cc = "0" if ks == 0 else f"v[{c}:{c+3}]"
                a(f"v_mfma_f32_16x16x32_bf16 v[{c}:{c+3}], v[{f}:{f+3}], a[{w}:{w+3}], {cc}")
        if ct > 0:
            drain(ct - 1)
    if c1 == 4:
        a("s_nop 2")
        drain(3)
    if c1 in hooks:
        hooks[c1]()


def kv_wait(a, done):
    lp = a.lab("kv_lp")
    ok = a.lab("kv_ok")
    a(f"""
    s_cmp_gt_u32 s69, s68
    s_cbranch_scc1 {ok}
    s_mov_b32 s70, 0
    {lp}:
    v_and_b32 v22, 1, v1
    v_lshlrev_b32 v22, 9, v22
    buffer_load_dword v23, v22, s[12:15], s57 offen sc1
    s_waitcnt vmcnt(0)
    v_readlane_b32 s69, v23, 0
    v_readlane_b32 s45, v23, 1
    s_add_u32 s70, s70, 1
    s_nop 2
    s_min_u32 s69, s69, s45
    s_cmp_gt_u32 s69, s68
    s_cbranch_scc1 {ok}
    s_sleep 4
    s_cmp_lt_u32 s70, {TMO}
    s_cbranch_scc1 {lp}
    s_branch {done}
    {ok}:
    """)


def mkv_publish(a, st):
    sk = a.lab("s_np")
    a(f"""
    s_cmp_lg_u32 s44, 3
    s_cbranch_scc1 {sk}
    ds_read_b128 v[20:23], v6
    s_lshl_b32 s45, s60, 17
    s_add_u32 s45, s45, s67
    s_waitcnt lgkmcnt(0)
    v_min_u32 v20, -2, v20
    v_min_u32 v21, -2, v21
    v_min_u32 v22, -2, v22
    v_min_u32 v23, -2, v23
    buffer_store_dwordx4 v[20:23], v2, s[12:15], s45 offen sc1
    {sk}:
    """)


def s_loop(a, done, fast):
    st = "" if fast else "sc1"
    loop = a.lab("s_loop")
    a.align(E("PADS", 0))
    a(f"{loop}:")
    for i in range(4):
        a(f"v_mov_b32 v{16+i}, 0")
    a("s_add_u32 s58, s58, 4")
    a("s_mov_b32 s70, 1")
    a("s_waitcnt vmcnt(0) lgkmcnt(0)")
    a("s_barrier")
    if STAMP == 1:
        a("s_mov_b32 s78, s72")
    stamp(a, 0)
    for i in range(12):
        a(f"ds_read_b128 v[{64+4*i}:{67+4*i}], v2 offset:{L_MEM + 1024*i}")
    if E("WA", 1) == 4:
        a("""
        s_mov_b64 exec, s[52:53]
        buffer_load_dwordx4 v[48:51], v52, s[12:15], s63 offen sc1
        s_mov_b64 exec, -1
        """)
    for i in range(16):
        if i < 4:
            a(f"s_waitcnt lgkmcnt(11)")
        else:
            a(f"s_waitcnt lgkmcnt({15-i})")
        a(f"v_smfmac_f32_16x16x64_bf16 v[16:19], v[{64+4*i}:{67+4*i}], a[{8*i}:{8*i+7}], v3")
        if i < 4:
            k = 12 + i
            a(f"ds_read_b128 v[{64+4*k}:{67+4*k}], v2 offset:{L_MEM + 1024*k}")
    a("s_nop 7")
    halves_add(a, 16)
    last = a.lab("s_last")
    xl = a.lab("s_xl")
    w2 = a.lab("s_w2")
    w3 = a.lab("s_w3")
    a(f"""
    v_cvt_pk_bf16_f32 v16, v16, v17
    ds_write_b16 v5, v16
    ds_write_b16_d16_hi v5, v16 offset:16
    s_mov_b64 exec, 1
    ds_add_u32 v29, v30
    s_mov_b64 exec, -1
    {xl}:
    ds_read_b32 v10, v29
    ds_read_b128 v[64:67], v2 offset:{L_XL}
    s_cmp_eq_u32 s60, 63
    s_cbranch_scc1 {last}
    s_cmp_ge_u32 s44, 2
    s_cbranch_scc1 {w2}
    s_waitcnt lgkmcnt(0)
    v_mfma_f32_16x16x32_bf16 v[16:19], v[32:35], v[64:67], 0
    {w2}_b:
    v_cmp_ne_u32 vcc, s58, v10
    s_nop 0
    """)
    stamp(a, 1)
    retry(a, xl, done)
    COLD.append(lambda: a(f"""
    {w2}:
    s_cmp_eq_u32 s44, 3
    s_cbranch_scc1 {w3}
    s_waitcnt lgkmcnt(0)
    v_mfma_f32_16x16x32_bf16 v[16:19], v[64:67], v[64:67], 0
    s_branch {w2}_b
    {w3}:
    s_sleep {E("SL_X3", 3)}
    s_branch {w3}_b
    """))
    a(f"""
    s_mov_b64 exec, s[50:51]
    s_nop 3
    """)
    if SB:
        a(f"""
        v_cvt_pk_bf16_f32 v16, v16, v17
        v_cvt_pk_bf16_f32 v17, v18, v19
        v_pk_min_u16 v16, v16, v54
        v_pk_min_u16 v17, v17, v54
        buffer_store_dwordx2 v[16:17], v4, s[12:15], s61 offen {st}
        """)
    else:
        a(f"""
        v_min_u32 v16, -2, v16
        v_min_u32 v17, -2, v17
        v_min_u32 v18, -2, v18
        v_min_u32 v19, -2, v19
        buffer_store_dwordx4 v[16:19], v4, s[12:15], s61 offen {st}
        """)
    a(f"""
    s_mov_b64 exec, -1
    {w3}_b:
    """)
    stamp(a, 2)
    if SL_X:
        a(f"s_sleep {SL_X}")
    xp = a.lab("s_xp")
    xf = a.lab("s_xf")
    xok = a.lab("s_xok")
    a("s_mov_b32 s70, 1")
    a(f"{xp}:")
    if SB:
        for j in range(4):
            a(f"buffer_load_dwordx2 v[{64+2*j}:{65+2*j}], v7, s[12:15], s61 offen offset:{512*j} sc1")
            a(f"buffer_load_short_d16_hi v{56+j}, v28, s[12:15], s61 offen offset:{128*j} sc1")
        a("s_mov_b32 s46, 0x00003f80")
        a("s_mov_b32 s47, 0x3f800000")
        for j in range(4):
            a(f"s_waitcnt vmcnt({6-2*j})")
            for i in range(4):
                a(f"v_dot2_f32_bf16 v{16+i}, v{64+2*j+(i>>1)}, s{46+(i&1)}, {'0' if j == 0 else 'v%d' % (16+i)}")
            if j == 1:
                a("v_add_f32 v20, v56, v57")
            if j > 1:
                a(f"v_add_f32 v20, v20, v{56+j}")
        a("s_nop 0")
    else:
        for j in range(4):
            a(f"buffer_load_dwordx4 v[{64+4*j}:{67+4*j}], v7, s[12:15], s61 offen offset:{1024*j} sc1")
            a(f"buffer_load_dword v{80+j}, v28, s[12:15], s61 offen offset:{256*j} sc1")
        a("s_waitcnt vmcnt(4)")
        for i in range(4):
            a(f"v_add_f32 v{16+i}, v{64+i}, v{68+i}")
        a("v_add_f32 v20, v80, v81")
        for j in (2, 3):
            a(f"s_waitcnt vmcnt({6-2*j})")
            for i in range(4):
                a(f"v_add_f32 v{16+i}, v{16+i}, v{64+4*j+i}")
            a(f"v_add_f32 v20, v20, v{80+j}")
    a(f"""
    v_cmp_u_f32 s[46:47], v16, v17
    v_cmp_u_f32 s[48:49], v18, v19
    v_cmp_u_f32 vcc, v20, v20
    v_max3_f32 v10, v16, v17, v18
    s_or_b64 s[46:47], s[46:47], s[48:49]
    v_max3_f32 v10, v10, v19, v20
    s_or_b64 vcc, vcc, s[46:47]
    s_cbranch_scc1 {xf}
    {xok}:
    """)

    def xcold():
        a(f"{xf}:")
        if SB:
            for j in range(4):
                a(f"v_or_b32 v{72+j}, 0xffff, v{56+j}")
        check_sentinel(a, range(64, 76 if SB else 84), 11)
        a(f"""
        s_add_u32 s70, s70, 1
        s_cbranch_vccz {xok}
        s_cmp_lt_u32 s70, {TMO}
        s_cbranch_scc1 {xp}
        s_branch {done}
        """)
    COLD.append(xcold)
    tries(a, 0)
    if STAMP == 1:
        a("s_mov_b32 s79, s70")
    stamp(a, 3)

    def xred(op, nop=True):
        a(f"""
        {"s_nop 1" if nop else ""}
        {op}_dpp v11, v10, v10 row_ror:8 row_mask:0xf bank_mask:0xf
        {op}_dpp v10, v10, v10 row_ror:8 row_mask:0xf bank_mask:0xf
        s_nop 1
        v_permlane16_swap_b32 v10, v11
        {op} v12, v10, v11
        {op} v10, v10, v11
        s_nop 1
        v_permlane32_swap_b32 v10, v12
        {op} v10, v10, v12
        """)
    xred("v_max_f32", nop=False)
    a("v_mul_f32 v10, s66, v10")
    S = [16, 17, 18, 19, 20]
    for r in S:
        a(f"v_fma_f32 v{r}, v{r}, s66, -v10")
    for r in S:
        a(f"v_exp_f32 v{r}, v{r}")
    a("""
    v_add_f32 v10, v16, v17
    v_add_f32 v11, v18, v19
    v_add_f32 v10, v10, v20
    v_add_f32 v10, v10, v11
    """)
    xred("v_add_f32")
    a("v_rcp_f32 v10, v10")
    a("s_nop 0")
    for r in S:
        a(f"v_mul_f32 v{r}, v{r}, v10")
    a("""
    v_cvt_pk_bf16_f32 v16, v16, v17
    v_cvt_pk_bf16_f32 v17, v18, v19
    v_cvt_pk_bf16_f32 v18, v20, v20
    ds_write_b64 v8, v[16:17]
    ds_write_b16 v9, v18
    """)

    def ahead():
        nk = a.lab("s_nk")
        a(f"""
        s_add_u32 s63, s63, {32*24576}
        s_cmp_ge_u32 s44, 2
        s_cbranch_scc1 {nk}
        buffer_load_dwordx4 v[32:35], v6, s[12:15], s63 offen sc1
        {nk}:
        s_add_u32 s45, s60, 2
        s_cmp_le_u32 s69, s45
        s_cbranch_scc1 {nk}_w
        s_add_u32 s45, s63, {32*24576}
        s_mov_b64 exec, 0xf
        buffer_load_dword v15, v14, s[12:15], s45 offen sc1
        s_mov_b64 exec, -1
        {nk}_w:
        """)

    def hwarm():
        if not (NU and E("XW", 0)):
            return
        nh = a.lab("s_nh")
        a(f"""
        s_sub_u32 s45, s60, {XT0 - 1}
        s_cmp_ge_u32 s45, {NU}
        s_cbranch_scc1 {nh}
        s_and_b32 s46, s45, 1
        s_lshl_b32 s46, s46, 15
        s_lshr_b32 s47, s45, 2
        s_lshl_b32 s47, s47, 16
        s_add_u32 s46, s46, s47
        s_and_b32 s47, s45, 2
        s_lshl_b32 s47, s47, 7
        s_add_u32 s46, s46, s47
        buffer_load_dword v47, v46, s[12:15], s46 offen sc1
        {nh}:
        """)
    WA = E("WA", 1)
    if WA == 3:
        ahead()
    a("s_waitcnt lgkmcnt(0)")
    stamp(a, 4)
    a("s_barrier")
    stamp(a, 5)
    if STAMP == 5:
        stamp(a, 6)
    if WA == 1:
        ahead()
    if WA == 5:
        nk = a.lab("s_nk")
        a(f"""
        s_add_u32 s63, s63, {32*24576}
        s_cmp_ge_u32 s44, 2
        s_cbranch_scc1 {nk}
        buffer_load_dwordx4 v[32:35], v6, s[12:15], s63 offen sc1
        {nk}:
        s_add_u32 s45, s60, 3
        s_cmp_le_u32 s69, s45
        s_cbranch_scc1 {nk}_w
        s_add_u32 s46, s56, s63
        s_add_u32 s46, s22, s46
        s_addc_u32 s47, s23, 0
        """)
        for i in range(16):
            a(f"s_load_dword s{96 + (i & 3)}, s[46:47], {64*i}")
        a(f"{nk}_w:")
    if WA == 4:
        for i in range(4):
            a(f"v_mov_b32 v{32+i}, v{48+i}")
        a(f"s_add_u32 s63, s63, {32*24576}")
    hwarm()
    nr = a.lab("s_nr")
    a(f"""
    s_cmp_eq_u32 s44, 3
    s_cbranch_scc1 {nr}
    s_xor_b32 s45, s61, 0x8000
    s_mov_b64 exec, s[50:51]
    {"buffer_store_dwordx2 v[24:25]" if SB else "buffer_store_dwordx4 v[24:27]"}, v4, s[12:15], s45 offen {st}
    s_mov_b64 exec, -1
    {nr}:
    """)
    mkv_publish(a, st)
    na = a.lab("s_na")
    a(f"""
    s_add_u32 s68, s60, {3 if WA == 4 else 2}
    s_min_u32 s68, s68, 63
    v_readlane_b32 s45, v0, 0
    v_readlane_b32 s46, v0, 1
    s_nop 0
    s_min_u32 s45, s45, s46
    s_max_u32 s69, s69, s45
    """)
    kv_wait(a, done)
    a(f"""
    s_add_u32 s45, s60, {E("AKD", 7)}
    s_min_u32 s45, s45, 63
    s_cmp_gt_u32 s69, s45
    s_cbranch_scc1 {na}
    v_and_b32 v22, 1, v1
    v_lshlrev_b32 v22, 9, v22
    buffer_load_dword v0, v22, s[12:15], s57 offen sc1
    {na}:
    """)
    if NU:
        xe = a.lab("s_xe")
        x1 = a.lab("s_x1")
        x0 = a.lab("s_x0")
        a(f"""
        s_sub_u32 s45, s60, {XT0 + 1}
        s_cmp_gt_u32 s45, {NU}
        s_cbranch_scc1 {xe}
        {"s_sleep %d" % E("SL_XG", 1) if E("SL_XG", 1) else ""}
        s_setprio 0
        s_bitcmp1_b32 s45, 0
        s_cbranch_scc1 {x1}
        s_cmp_eq_u32 s45, 0
        s_cbranch_scc1 {x0}
        s_bitcmp1_b32 s44, 0
        s_cbranch_scc1 {x0}
        ds_read_b128 v[40:43], v31
        s_sub_u32 s46, s45, 2
        s_lshr_b32 s47, s46, 2
        s_mul_i32 s47, s47, 786432
        s_and_b32 s46, s46, 2
        s_lshl_b32 s46, s46, 11
        s_add_u32 s47, s47, s46
        s_waitcnt lgkmcnt(0)
        buffer_store_dwordx4 v[40:43], v13, s[12:15], s47 offen sc1
        {x0}:
        s_cmp_eq_u32 s45, {NU}
        s_cbranch_scc1 {xe}
        """)

        def xg(kh):
            if E("XNOC", 0):
                return
            for i in range(12):
                a(f"ds_read_b128 v[{64+4*i}:{67+4*i}], v44 offset:{16384*kh + 1024*i}")
            for i in range(16):
                a(f"s_waitcnt lgkmcnt({11 if i < 4 else 15-i})")
                w = 64 * kh + 4 * i
                cc = "0" if kh == 0 and i == 0 else "v[36:39]"
                a(f"v_mfma_f32_16x16x32_bf16 v[36:39], a[{w}:{w+3}], v[{64+4*i}:{67+4*i}], {cc}")
                if i < 4:
                    a(f"ds_read_b128 v[{112+4*i}:{115+4*i}], v44 offset:{16384*kh + 1024*(12+i)}")
        xg(0)
        a(f"s_branch {xe}")
        a(f"{x1}:")
        xg(1)
        a(f"""
        s_nop 7
        v_cvt_pk_bf16_f32 v40, v36, v37
        v_cvt_pk_bf16_f32 v41, v38, v39
        ds_write_b64 v45, v[40:41]
        s_waitcnt lgkmcnt(0)
        {xe}:
        s_setprio 1
        """)
    stamp_dump(a)
    a(f"""
    s_add_u32 s60, s60, 1
    s_add_u32 s61, s61, 0x4000
    s_and_b32 s61, s61, 0xffff
    s_branch {loop}
    {last}:
    s_waitcnt lgkmcnt(0)
    s_barrier
    """)
    mkv_publish(a, st)
    if E("HD", 0):
        sk = a.lab("hd")
        a(f"s_cmp_lg_u32 s44, 0")
        a(f"s_cbranch_scc1 {sk}")
        hd(a, 6)
        a(f"{sk}:")
    a(f"s_branch {wk.REPL}")
    flush_cold(a)


def v_loop(a, done, fast):
    st = "" if fast else "sc1"
    loop = a.lab("v_loop")
    lp = a.lab("v_l1")
    lm = a.lab("v_l1m")
    assert VXPOS != 1
    a("s_mov_b32 s70, 1")
    a("v_mov_b32 v16, 0")
    a("v_mov_b32 v17, 0")
    if EF:
        for h in range(4):
            a(f"ds_read_b128 v[{80+4*h}:{83+4*h}], v27 offset:{L_VWX + 4096*h}")
    a(f"s_branch {lm}")
    a.align(E("PADV", 0))
    a(f"{loop}:")
    a("s_mov_b32 s70, 1")

    def xg_dma():
        if not NU:
            return
        nx = a.lab("v_nx")
        fl = a.lab("v_fl")
        a(f"""
        s_sub_u32 s45, s60, {XT0}
        s_cmp_ge_u32 s45, {NU}
        s_cbranch_scc1 {nx}_s
        s_cmp_eq_u32 s45, 0
        s_cbranch_scc1 {fl}
        {fl}_b:
        s_and_b32 s46, s45, 1
        s_lshl_b32 s47, s46, 14
        s_add_u32 s47, s47, s59
        s_lshl_b32 s46, s46, 15
        s_lshr_b32 s48, s45, 2
        s_lshl_b32 s48, s48, 16
        s_add_u32 s46, s46, s48
        s_and_b32 s48, s45, 2
        s_lshl_b32 s48, s48, 7
        s_add_u32 s46, s46, s48
        """)
        for i in range(4):
            a(f"s_add_u32 m0, s47, {1024*i}")
            a(f"s_add_u32 s48, s46, {2048*i}")
            if not E("XNOD", 0):
                a("buffer_load_dwordx4 v28, s[12:15], s48 offen sc1 lds")
        a(f"{nx}:")

        def flc():
            a(f"""
            {fl}:
            v_and_b32 v22, 31, v1
            v_lshlrev_b32 v22, 7, v22
            s_mov_b32 s46, {WS_FLG + FL:#x}
            s_mov_b32 s47, 56
            """)
            wk.spin(a, 22, "s46", 47, 23, done)
            a(f"s_branch {fl}_b")
        COLD.append(flc)
        COLD.append(lambda: a(f"""
        {nx}_s:
        {"s_sleep %d" % XSL if XGP == 2 and XSL else ""}
        s_branch {nx}
        """))

    def l1load():
        for i in range(4):
            a(f"buffer_load_dwordx4 v[{64+4*i}:{67+4*i}], v9, s[12:15], s61 offen offset:{1024*i} sc1")
    l1load()
    yv = 0
    if VXPOS == 1:
        vx_load(a)
        yv = 8
    for i in range(8):
        a(f"v_mov_b32 v{16+i}, 0")
    lok = a.lab("v_l1ok")

    def lchk(i):
        x = 64 + 4 * i
        a(f"ds_write_b128 v10, v[{x}:{x+3}] offset:{L_MEM + 1024*i}")
        a(f"v_max3_u32 v24, v{x}, v{x+1}, v{x+2}")
        a(f"v_max_u32 v24, v24, v{x+3}")
        a(f"v_cmp_eq_u32 s[{48+2*i}:{49+2*i}], -1, v24")

    def lany():
        a("""
        s_or_b64 s[46:47], s[48:49], s[50:51]
        s_or_b64 vcc, s[52:53], s[54:55]
        s_or_b64 vcc, vcc, s[46:47]
        """)

    def lcold():
        a(f"{lp}:")
        for i in range(4):
            sk = a.lab("v_ls")
            a(f"""
            s_mov_b64 exec, s[{48+2*i}:{49+2*i}]
            s_cbranch_execz {sk}
            buffer_load_dwordx4 v[{64+4*i}:{67+4*i}], v9, s[12:15], s61 offen offset:{1024*i} sc1
            {sk}:
            """)
        a(f"""
        s_mov_b64 exec, -1
        s_add_u32 s70, s70, 1
        s_cmp_ge_u32 s70, {TMO}
        s_cbranch_scc1 {done}
        s_waitcnt vmcnt(0)
        """)
        for i in range(4):
            sk = a.lab("v_lc")
            a(f"s_cmp_eq_u64 s[{48+2*i}:{49+2*i}], 0")
            a(f"s_cbranch_scc1 {sk}")
            lchk(i)
            a(f"{sk}:")
        lany()
        a(f"s_cbranch_scc1 {lp}")
        a(f"s_branch {lok}")
    COLD.append(lcold)
    a(f"{lm}:")
    for i in range(4):
        a(f"s_waitcnt vmcnt({3-i})")
        lchk(i)
    lany()
    a(f"s_cbranch_scc1 {lp}")
    a(f"{lok}:")
    tries(a, 0)
    if STAMP == 1:
        a("s_mov_b32 s83, s70")
    a("s_waitcnt lgkmcnt(0)")
    stamp(a, 0)
    a("s_barrier")
    if VXPOS == 4:
        vx_load(a)
    for i in range(4):
        if VXPOS == 5:
            vx_load(a, i)
        for e in range(2):
            a(f"v_smfmac_f32_16x16x64_bf16 v[{16+4*e}:{19+4*e}], v[{64+4*i}:{67+4*i}], a[{32*e+8*i}:{32*e+8*i+7}], v3")
    if VXPOS == 2:
        vx_load(a)
        if XGP == 1:
            xg_dma()
    else:
        a("s_nop 6")
    a("""
    v_permlane32_swap_b32 v16, v18
    v_permlane32_swap_b32 v17, v19
    v_permlane32_swap_b32 v20, v22
    v_permlane32_swap_b32 v21, v23
    v_add_f32 v16, v16, v18
    v_add_f32 v17, v17, v19
    v_add_f32 v18, v20, v22
    v_add_f32 v19, v21, v23
    ds_write_b128 v14, v[16:19]
    s_mov_b64 exec, 1
    ds_add_u32 v29, v30
    s_mov_b64 exec, -1
    s_add_u32 s58, s58, 4
    """)
    last = a.lab("v_last")
    k1 = a.lab("v_k1")
    rl = a.lab("v_rl")
    def k1c():
        a(f"{k1}_c:")
        if VXPOS in (6, 8):
            vx_load(a)
        if EF:
            a("s_waitcnt vmcnt(0)")
        a(f"s_branch {k1}")
    COLD.append(k1c)
    a(f"""
    s_bitcmp1_b32 s44, 0
    s_cbranch_scc1 {k1}_c
    s_mov_b32 s70, 0
    {rl}:
    ds_read_b32 v24, v29
    """)
    for u in range(4):
        a(f"ds_read_b64 v[{16+2*u}:{17+2*u}], v13 offset:{1024*u}")
    a("""
    s_waitcnt lgkmcnt(2)
    v_cmp_ne_u32 vcc, s58, v24
    v_add_f32 v16, v16, v18
    v_add_f32 v17, v17, v19
    s_waitcnt lgkmcnt(0)
    """)
    retry(a, rl, done)
    a("""
    v_add_f32 v20, v20, v22
    v_add_f32 v21, v21, v23
    v_add_f32 v16, v16, v20
    v_add_f32 v17, v17, v21
    """)
    pack_cols(a, 16)
    a(f"""
    buffer_store_dword v18, v4, s[12:15], s62 offen {st}
    ds_write_b32 v5, v18
    """)
    if VXPOS == 6:
        vx_load(a)
    a(f"""
    {k1}:
    s_cmp_eq_u32 s60, 63
    s_cbranch_scc1 {last}
    """)
    stamp(a, 1)
    def vwx_read():
        for h in range(4):
            a(f"ds_read_b128 v[{80+4*h}:{83+4*h}], v27 offset:{L_VWX + 4096*h}")
    if not EF:
        vwx_read()
    for i in range(16):
        a(f"v_mov_b32 v{96+i}, 0")
    if EF:
        phase_f(a, 1, {}, 0, EFS)
    if SL_V:
        sv = a.lab("v_sv")
        a(f"""
        s_bitcmp1_b32 s44, 0
        s_cbranch_scc0 {sv}
        s_sleep {E("SL_V1", 1)}
        {sv}:
        s_sleep {SL_V}
        """)
    vp = a.lab("v_vp")
    a("s_mov_b32 s70, 1")

    def vmload():
        for s_ in range(2):
            a(f"buffer_load_dwordx4 v[{64+4*s_}:{67+4*s_}], v11, s[12:15], s62 offen offset:{1024*s_} sc1")
    vmload()
    if EF and EFS < 4:
        phase_f(a, None, {}, EFS, 4)
    COLD.append(lambda: (a(f"{vp}:"), vmload(), a(f"s_branch {vp}_m")))
    a(f"{vp}_m:")
    a("s_waitcnt vmcnt(0)")
    check_sentinel(a, range(64, 72), 20)
    retry(a, vp, done)
    tries(a, 1)
    stamp(a, 2)
    for ct in range(4):
        for s_ in range(2):
            w = 64 + ct * 16 + 8 * s_
            a(f"v_smfmac_f32_16x16x64_bf16 v[{96+4*ct}:{99+4*ct}], v[{64+4*s_}:{67+4*s_}], a[{w}:{w+7}], v3")
    a("s_nop 1")
    if VXPOS == 0:
        vx_load(a)
    for ct in range(4):
        d = 96 + 4 * ct
        a(f"v_cvt_pk_bf16_f32 v{d}, v{d}, v{d+1}")
        a(f"v_cvt_pk_bf16_f32 v{d+1}, v{d+2}, v{d+3}")
        a(f"ds_write_b64 v12, v[{d}:{d+1}] offset:{2048*ct}")
    if VXPOS == 8:
        r8 = a.lab("v_r8")
        a("s_bitcmp1_b32 s44, 0")
        a(f"s_cbranch_scc1 {r8}")
        vx_load(a)
        a(f"{r8}:")
    if XGP == 0:
        xg_dma()
    a("s_waitcnt lgkmcnt(0)")
    stamp(a, 3)
    a("s_barrier")
    for h in range(4):
        a(f"ds_read_b128 v[{96+4*h}:{99+4*h}], v2 offset:{L_PX + 1024*h}")
    for m in range(2):
        a(f"ds_read_b128 v[{112+8*m}:{115+8*m}], v31 offset:{512*m}")
        a(f"ds_read_b128 v[{116+8*m}:{119+8*m}], v25 offset:{1024*m}")
    for h in range(4):
        a(f"s_waitcnt lgkmcnt({7-h})")
        cc = "0" if h == 0 else "v[16:19]"
        a(f"v_mfma_f32_16x16x32_bf16 v[16:19], v[{80+4*h}:{83+4*h}], v[{96+4*h}:{99+4*h}], {cc}")
    for m in range(2):
        a(f"s_waitcnt lgkmcnt({2-2*m})")
        a(f"v_mfma_f32_16x16x32_bf16 v[16:19], v[{116+8*m}:{119+8*m}], v[{112+8*m}:{115+8*m}], v[16:19]")
    a("""
    s_mov_b32 exec_lo, 0x00ff00ff
    s_mov_b32 exec_hi, 0x00ff00ff
    s_nop 5
    """)
    a("""
    v_cvt_pk_bf16_f32 v16, v16, v17
    v_cvt_pk_bf16_f32 v17, v18, v19
    v_min_u32 v16, -2, v16
    v_min_u32 v17, -2, v17
    buffer_store_dwordx2 v[16:17], v6, s[12:15], s63 offen sc1
    s_mov_b64 exec, -1
    """)
    stamp(a, 4)
    if XGP == 2:
        if VXPOS == 8 and NU:
            a("s_waitcnt vmcnt(1)")
        xg_dma()
    def gload(b):
        for i in range(8):
            a(f"buffer_load_dword v{b+i}, v7, s[12:15], s63 offen offset:{256*i} sc1")

    def gsum(b, younger):
        if E("DOT", 0):
            a("s_mov_b32 s46, 0x00003f80")
            a("s_mov_b32 s47, 0x3f800000")
            for i in range(8):
                if i % 2 == 0:
                    a(f"s_waitcnt vmcnt({younger+6-i})")
                d = 20 + 2 * (i & 1)
                for h in range(2):
                    a(f"v_dot2_f32_bf16 v{d+h}, v{b+i}, s{46+h}, {'0' if i < 2 else 'v%d' % (d+h)}")
            a("s_nop 2")
            a("v_add_f32 v20, v20, v22")
            a("v_add_f32 v21, v21, v23")
        for i in range(8):
            if E("DOT", 0):
                break
            a(f"s_waitcnt vmcnt({younger+7-i})")
            if i == 0:
                a(f"v_lshlrev_b32 v20, 16, v{b}")
                a(f"v_and_b32 v21, 0xffff0000, v{b}")
            else:
                a(f"v_lshlrev_b32 v22, 16, v{b+i}")
                a(f"v_and_b32 v23, 0xffff0000, v{b+i}")
                a("v_add_f32 v20, v20, v22")
                a("v_add_f32 v21, v21, v23")
        a("""
        v_cmp_u_f32 vcc, v20, v21
        v_cvt_pk_bf16_f32 v20, v20, v21
        """)
    a("""
    s_add_u32 s61, s61, 0x4000
    s_and_b32 s61, s61, 0xffff
    s_mov_b32 s70, 1
    """)
    gp = a.lab("v_gp")
    gok = a.lab("v_gok")

    def ga_hook():
        sl = SL_G - (XSL if NU and XGP == 2 else 0)
        if sl > 0:
            a(f"s_sleep {sl}")
        gload(96)
    hooks = {GA: ga_hook}
    if GB >= 0:
        hooks[GB] = lambda: gload(112)
    if KXPOS == 5:
        kx_dma(a)
    if EF:
        vwx_read()
    if E("NOF", 0) or EF:
        ga_hook()
    else:
        phase_f(a, 1 if VXPOS == 8 and not (NU and XGP == 2) else None, hooks, 0, FS)
    stamp(a, 5)
    gf = a.lab("v_gf")
    a(f"{gp}:")
    gsum(96, 0)
    a(f"s_cbranch_vccnz {gf}")
    a(f"{gok}:")

    def gcold():
        a(f"{gf}:")
        check_sentinel(a, range(96, 104), 24)
        a("v_min_u32 v20, -2, v20")
        a("s_add_u32 s70, s70, 1")
        a(f"s_cbranch_vccz {gok}")
        gload(96)
        a(f"""
        s_cmp_lt_u32 s70, {TMO}
        s_cbranch_scc1 {gp}
        s_branch {done}
        """)
    COLD.append(gcold)
    a(f"buffer_store_dword v20, v8, s[12:15], s61 offen {st}")
    tries(a, 2)
    nr = a.lab("v_nr")
    a(f"""
    s_xor_b32 s45, s61, 0x8000
    buffer_store_dword v26, v8, s[12:15], s45 offen {st}
    s_bitcmp1_b32 s44, 0
    s_cbranch_scc1 {nr}
    s_xor_b32 s45, s62, 0x4000
    buffer_store_dword v26, v4, s[12:15], s45 offen {st}
    {nr}:
    """)
    if STAMP == 1:
        a("s_lshl_b32 s79, s70, 16")
        a("s_or_b32 s79, s79, s83")
    stamp(a, 6)
    stamp_dump(a)
    a(f"""
    s_add_u32 s60, s60, 1
    s_add_u32 s62, s62, 0x2000
    s_and_b32 s62, s62, 0x7fff
    s_and_b32 s45, s60, 0x38
    s_bitcmp1_b64 s[66:67], s45
    s_cselect_b32 s45, 8192, 0
    s_lshl_b32 s63, s60, 18
    s_add_u32 s63, s63, s45
    """)
    if FS < 4 and not EF:
        phase_f(a, None, {}, FS, 4)
    if SL_L1:
        a(f"s_sleep {SL_L1}")
    a(f"""
    s_branch {loop}
    {last}:
    s_waitcnt lgkmcnt(0)
    s_barrier
    s_branch {wk.REPL}
    """)
    flush_cold(a)


def gen_chain(a):
    name = "k3_chain_kernel"
    kernel_header(a, name)
    done = a.lab("c_done")
    a(f"""
    s_cmp_ge_u32 s2, 256
    s_cbranch_scc1 {done}
    s_load_dwordx4 s[20:23], s[0:1], {KA['dbg']}
    v_and_b32 v1, 63, v0
    v_lshrrev_b32 v2, 6, v0
    s_nop 0
    v_readfirstlane_b32 s44, v2
    s_waitcnt lgkmcnt(0)
    """)
    srd(a, 12, 22, 23, WS_SIZE)
    srd(a, 16, 20, 21, 256)
    if E("CTOUCH", 1):
        here = a.lab("c_here")
        ce = a.lab("c_ct")
        a(f"""
        s_getpc_b64 s[24:25]
        {here}:
        v_lshlrev_b32 v3, 7, v0
        v_mov_b32 v5, s25
        v_add_co_u32 v4, vcc, s24, v3
        s_nop 1
        v_addc_co_u32 v5, vcc, 0, v5, vcc
        v_cmp_gt_u32 vcc, {done} - {here}, v3
        s_and_saveexec_b64 s[26:27], vcc
        s_cbranch_execz {ce}
        global_load_dword v109, v[4:5], off
        {ce}:
        s_mov_b64 exec, s[26:27]
        """)
    gstamp(a, 0)
    if E("HD", 0):
        a("s_memrealtime s[92:93]")
        a("s_waitcnt lgkmcnt(0)")
        a("s_not_b32 s93, s92")
    if STAMP == 3:
        a("s_memrealtime s[90:91]")
    wk.mod1_issue(a)
    ET = E("ET", 0)
    if ET:
        et = a.lab("et")
        a(f"""
        s_lshr_b32 s46, s2, 7
        s_lshl_b32 s46, s46, 3
        s_add_u32 s46, s46, {KA['Wk']}
        s_load_dwordx2 s[4:5], s[0:1], s46
        v_lshlrev_b32 v36, 7, v0
        s_and_b32 s45, s2, 127
        s_lshl_b32 s45, s45, 16
        s_waitcnt lgkmcnt(0)
        """)
        srd(a, 24, 4, 5, 1024 * 8192)
        if ET == 2:
            a("s_cmp_lt_u32 s44, 4")
            a(f"s_cbranch_scc1 {et}")
        a("buffer_load_dword v37, v36, s[24:27], s45 offen")
        a(f"{et}:")
    roles(a, done)
    if STAMP == 3:
        a(f"""
        s_lshl_b32 s82, s40, 5
        s_add_u32 s82, s82, s41
        s_lshl_b32 s82, s82, 2
        s_add_u32 s82, s82, {WS_STAMP + 0x80000:#x}
        v_mov_b32 v3, s90
        v_mov_b32 v4, 0
        buffer_store_dword v3, v4, s[12:15], s82 offen
        """)
    chain = a.lab("c_chain")
    a(f"""
    s_cmp_lt_u32 s41, 16
    s_cbranch_scc1 {chain}
    """)
    wk.workers(a, done)
    a(f"{chain}:")
    for r in range(4, 16):
        a(f"v_mov_b32 v{r}, 0")
    wk.tstamp(a, 0)
    assert WS_QKRING == WS_MRING + 0x80000
    a(f"""
    v_mov_b32 v32, -1
    v_mov_b32 v33, -1
    v_mov_b32 v34, -1
    v_mov_b32 v35, -1
    v_lshlrev_b32 v2, 4, v1
    s_lshl_b32 s45, s40, 16
    s_lshl_b32 s46, s41, 12
    s_add_u32 s45, s45, s46
    s_and_b32 s46, s44, 3
    s_lshl_b32 s46, s46, 10
    s_add_u32 s45, s45, s46
    s_lshr_b32 s46, s44, 2
    s_lshl_b32 s46, s46, 19
    s_add_u32 s45, s45, s46
    s_add_u32 s45, s45, {WS_MRING:#x}
    buffer_store_dwordx4 v[32:35], v2, s[12:15], s45 offen sc1
    s_lshl_b32 s45, s40, 15
    s_lshl_b32 s46, s41, 11
    s_add_u32 s45, s45, s46
    s_lshl_b32 s46, s44, 8
    s_add_u32 s45, s45, s46
    s_add_u32 s45, s45, {WS_VRING:#x}
    s_mov_b64 exec, 0xffff
    buffer_store_dwordx4 v[32:35], v2, s[12:15], s45 offen sc1
    s_lshl_b32 s45, s40, 16
    s_lshl_b32 s46, s41, 8
    s_add_u32 s45, s45, s46
    s_and_b32 s46, s44, 3
    s_lshl_b32 s46, s46, 14
    s_add_u32 s45, s45, s46
    s_add_u32 s45, s45, {WS_SMRING:#x}
    buffer_store_dwordx4 v[32:35], v2, s[12:15], s45 offen sc1
    s_mov_b64 exec, -1
    """)
    if E("TOUCH", 0) == 2:
        a(f"""
        s_load_dwordx4 s[4:7], s[0:1], {KA['Wq']}
        s_load_dwordx2 s[8:9], s[0:1], {KA['Wv']}
        v_lshrrev_b32 v2, 3, v0
        v_lshlrev_b32 v2, 13, v2
        v_and_b32 v3, 7, v0
        v_lshl_add_u32 v2, v3, 7, v2
        s_lshl_b32 s45, s41, 19
        s_lshl_b32 s46, s40, 10
        s_add_u32 s45, s45, s46
        s_waitcnt lgkmcnt(0)
        """)
        for i, (lo, hi) in enumerate(((6, 7), (8, 9), (4, 5))):
            srd(a, 24, lo, hi, 1024 * 8192)
            a(f"buffer_load_dword v{109+i}, v2, s[24:27], s45 offen")
    if E("TOUCH", 0) == 1:
        a(f"""
        s_lshr_b32 s46, s44, 2
        s_lshl_b32 s46, s46, 3
        s_add_u32 s46, s46, {KA['Wk']}
        s_load_dwordx2 s[4:5], s[0:1], s46
        v_bfe_u32 v2, v0, 3, 5
        v_lshlrev_b32 v2, 13, v2
        v_and_b32 v3, 7, v0
        v_lshl_add_u32 v2, v3, 7, v2
        s_and_b32 s45, s41, 7
        s_lshl_b32 s45, s45, 18
        s_lshr_b32 s46, s41, 3
        s_lshl_b32 s46, s46, 22
        s_add_u32 s45, s45, s46
        s_add_u32 s45, s45, {256*8192}
        s_lshl_b32 s46, s40, 10
        s_add_u32 s45, s45, s46
        s_waitcnt lgkmcnt(0)
        """)
        srd(a, 24, 4, 5, 1024 * 8192)
        a(f"buffer_load_dword v110, v2, s[24:27], s45 offen")
    a(f"""
    v_lshlrev_b32 v2, 4, v1
    v_and_b32 v3, 8, v1
    v_cmp_eq_u32 vcc, 0, v3
    v_mov_b32 v3, 0xeeeeeeee
    v_mov_b32 v4, 0x44444444
    v_cndmask_b32 v3, v3, v4, vcc
    v_and_b32 v100, 15, v1
    v_lshrrev_b32 v101, 4, v1
    v_and_b32 v102, 1, v101
    v_lshrrev_b32 v103, 1, v101
    v_lshlrev_b32 v104, 2, v102
    v_lshl_add_u32 v104, v103, 1, v104
    v_and_b32 v105, 1, v1
    v_add_u32 v104, v104, v105
    v_and_b32 v106, 7, v1
    v_bfe_u32 v107, v1, 3, 1
    s_lshr_b32 s42, s41, 2
    s_and_b32 s43, s41, 3
    s_lshl_b32 s49, s40, 2
    s_add_u32 s49, s49, s42
    s_lshl_b32 s45, s44, 14
    """)
    a("""
    v_lshlrev_b32 v22, 3, v101
    v_bfe_u32 v23, v1, 2, 2
    v_add_u32 v22, v22, v23
    v_and_b32 v23, 3, v1
    v_lshlrev_b32 v24, 3, v23
    v_lshl_add_u32 v20, v22, 6, v24
    v_lshl_add_u32 v21, v22, 7, v24
    v_lshrrev_b32 v22, 2, v1
    v_lshlrev_b32 v23, 4, v23
    v_lshl_add_u32 v24, v22, 13, v23
    v_lshrrev_b32 v22, 3, v1
    v_lshlrev_b32 v23, 4, v106
    v_lshl_add_u32 v25, v22, 11, v23
    """)
    vinit = a.lab("v_init")
    join = a.lab("c_join")
    a(f"""
    s_cmp_ge_u32 s44, 4
    s_cbranch_scc1 {vinit}
    """)
    a(f"""
    s_lshr_b32 s50, s44, 1
    s_and_b32 s51, s44, 1
    s_load_dwordx4 s[4:7], s[0:1], {KA['Wq']}
    s_lshl_b32 s46, s49, 8
    s_lshl_b32 s48, s43, 6
    s_add_u32 s46, s46, s48
    s_lshl_b32 s48, s44, 21
    s_add_u32 s46, s46, s48
    s_lshl_b32 s52, s51, 5
    s_xor_b32 s53, s50, 1
    s_lshl_b32 s53, s53, 16
    s_add_u32 s52, s52, s53
    v_add_u32 v20, s52, v20
    s_waitcnt lgkmcnt(0)
    """)
    srd(a, 24, 6, 7, 1024 * 8192)
    srd(a, 28, 4, 5, 1024 * 8192)
    a(f"""
    s_lshl_b32 s52, s51, 9
    s_lshl_b32 s53, s50, 7
    s_add_u32 s52, s52, s53
    s_add_u32 s52, s52, {L_XL}
    v_lshlrev_b32 v5, 1, v106
    v_lshl_add_u32 v5, v107, 8, v5
    v_lshl_add_u32 v5, v102, 6, v5
    v_lshl_add_u32 v5, v103, 5, v5
    v_add_u32 v5, s52, v5
    s_lshl_b32 s67, s49, 12
    s_lshl_b32 s53, s43, 10
    s_add_u32 s67, s67, s53
    s_add_u32 s67, s67, {WS_MKV:#x}
    s_lshl_b32 s52, s40, 16
    s_lshl_b32 s53, s44, {12 - SB}
    s_add_u32 s53, s52, s53
    s_add_u32 s53, s53, {WS_QKRING:#x}
    v_lshlrev_b32 v7, {4 - SB}, v1
    v_add_u32 v7, s53, v7
    s_lshl_b32 s53, s44, {10 - SB}
    s_add_u32 s53, s52, s53
    s_add_u32 s53, s53, {WS_SMRING:#x}
    v_lshlrev_b32 v28, {7 - SB}, v103
    v_lshl_add_u32 v28, v106, {4 - SB}, v28
    v_lshl_add_u32 v28, v102, {3 - SB}, v28
    v_lshl_add_u32 v28, v107, {2 - SB}, v28
    v_add_u32 v28, s53, v28
    s_lshl_b32 s52, s44, 10
    s_add_u32 s52, s52, {L_PX}
    v_lshlrev_b32 v8, 8, v101
    v_lshl_add_u32 v8, v106, 4, v8
    v_lshl_add_u32 v8, v107, 3, v8
    v_add_u32 v8, s52, v8
    s_lshl_b32 s52, s44, 8
    s_add_u32 s52, s52, {L_PM}
    v_lshlrev_b32 v9, 4, v106
    v_lshl_add_u32 v9, v101, 2, v9
    v_lshl_add_u32 v9, v107, 1, v9
    v_add_u32 v9, s52, v9
    s_mov_b32 s66, 0x3e0293ee
    """)
    if E("TWAIT", 0):
        a("s_waitcnt vmcnt(0)")
    wk.tstamp(a, 4)
    for r in range(2):
        stage_issue(a, 24 + 4 * r, 24, [16 * i * 8192 for i in range(16)])
        a("s_add_u32 s45, s45, 0x10000")
    a("s_waitcnt vmcnt(0)")
    wk.tstamp(a, 5)
    a("s_barrier")
    wk.tstamp(a, 6)
    wk.zwait(a, done, 16)
    nr = a.lab("c_nr")
    a(f"""
    s_cmp_lg_u32 s44, 0
    s_cbranch_scc1 {nr}
    s_or_b32 s47, s39, 0x100
    v_mov_b32 v16, s47
    s_lshl_b32 s52, s40, 6
    s_lshl_b32 s53, s41, 2
    s_add_u32 s52, s52, s53
    s_add_u32 s52, s52, {CTL_READY:#x}
    v_mov_b32 v17, 0
    s_mov_b64 exec, 1
    buffer_store_dword v16, v17, s[12:15], s52 offen sc1
    s_mov_b64 exec, -1
    {nr}:
    """)
    stage_read(a, 20, [(4 * f, 2048 * f) for f in range(32)], 256)
    a(f"""
    s_mov_b32 s63, 0
    """)
    wk.tstamp(a, 1)
    a("s_barrier")
    a(f"""
    s_lshl_b32 s52, s40, 2
    s_add_u32 s52, s52, s44
    s_mul_i32 s52, s52, 24576
    s_lshl_b32 s53, s41, 9
    s_add_u32 s52, s52, s53
    s_add_u32 s52, s52, {WS_QKV + 16384:#x}
    v_and_b32 v14, 3, v1
    v_lshlrev_b32 v14, 7, v14
    v_add_u32 v14, s52, v14
    s_lshl_b32 s52, s40, 16
    s_lshl_b32 s53, s41, {10 - SB}
    s_add_u32 s53, s53, s52
    s_lshl_b32 s54, s44, {7 - SB}
    s_add_u32 s53, s53, s54
    s_add_u32 s53, s53, {WS_QKRING:#x}
    v_lshlrev_b32 v4, {4 - SB}, v106
    v_lshl_add_u32 v10, v102, {7 - SB}, v4
    v_lshl_add_u32 v4, v101, {8 - SB}, v4
    v_add_u32 v4, s53, v4
    v_mov_b32 v54, 0xfffefffe
    v_mov_b32 v56, 0
    v_mov_b32 v57, 0
    v_mov_b32 v58, 0
    v_mov_b32 v59, 0
    s_lshl_b32 s53, s41, {8 - SB}
    s_add_u32 s53, s53, s52
    s_add_u32 s53, s53, {WS_SMRING:#x}
    v_add_u32 v10, s53, v10
    s_cmp_ge_u32 s44, 2
    s_cselect_b64 vcc, -1, 0
    v_cndmask_b32 v4, v4, v10, vcc
    s_mul_i32 s52, s49, 24576
    s_lshl_b32 s53, s44, 12
    s_add_u32 s52, s52, s53
    s_lshl_b32 s53, s43, 10
    s_add_u32 s52, s52, s53
    s_add_u32 s52, s52, {WS_QKV + 8192:#x}
    v_add_u32 v6, s52, v2
    v_lshrrev_b32 v10, 3, v1
    v_lshlrev_b32 v10, 8, v10
    v_lshl_add_u32 v10, v106, 4, v10
    v_add_u32 v10, {L_XL + 128}, v10
    v_add_u32 v11, {L_KV}, v2
    v_cmp_gt_u32 s[52:53], 32, v1
    s_nop 1
    v_cndmask_b32 v10, v11, v10, s[52:53]
    v_cndmask_b32 v6, v6, v10, vcc
    v_mov_b32 v24, -1
    v_mov_b32 v25, -1
    v_mov_b32 v26, -1
    v_mov_b32 v27, -1
    s_and_b32 s52, s40, 1
    s_lshl_b32 s52, s52, 14
    s_lshl_b32 s53, s41, 10
    s_add_u32 s52, s52, s53
    s_lshl_b32 s53, s50, 9
    s_add_u32 s52, s52, s53
    s_lshl_b32 s53, s51, 7
    s_add_u32 s52, s52, s53
    s_add_u32 s52, s52, {WS_H1 + XS*65536:#x}
    v_mov_b32 v46, s52
    v_add_u32 v44, {L_XG}, v2
    s_lshl_b32 s52, s50, 10
    s_add_u32 s52, s52, {L_OL}
    v_add_u32 v31, s52, v2
    s_lshl_b32 s53, s51, 9
    s_add_u32 s52, s52, s53
    v_lshlrev_b32 v45, 4, v100
    v_lshl_add_u32 v45, v103, 8, v45
    v_lshl_add_u32 v45, v102, 3, v45
    v_add_u32 v45, s52, v45
    s_mul_i32 s52, s49, 24576
    s_lshl_b32 s53, s50, 13
    s_add_u32 s52, s52, s53
    s_lshl_b32 s53, s43, 10
    s_add_u32 s52, s52, s53
    s_add_u32 s52, s52, {WS_QKV + XS*786432:#x}
    v_add_u32 v13, s52, v2
    v_mov_b32 v29, {L_TICK + 20}
    v_mov_b32 v30, 0
    ds_write_b32 v29, v30
    v_mov_b32 v30, 1
    s_lshl_b32 s58, s40, 11
    s_lshl_b32 s53, s44, 7
    s_add_u32 s58, s58, s53
    s_add_u32 s58, s58, {WS_FLG + FQ + 512:#x}
    s_mov_b32 s69, 0
    v_mov_b32 v0, 0
    s_cmp_ge_u32 s44, 2
    s_cselect_b32 s50, 0, 0x00ff00ff
    s_mov_b32 s51, 0x00ff00ff
    """)
    if NEAR:
        a(f"""
        s_xor_b32 s45, s44, 2
        s_or_b32 s45, s45, s41
        s_cbranch_scc1 {join}_p
        s_lshl_b32 s45, s40, 21
        s_add_u32 s45, s45, {WS_G + 7*262144:#x}
        v_and_b32 v10, 31, v1
        v_lshlrev_b32 v10, 4, v10
        v_lshl_add_u32 v10, v103, 13, v10
        buffer_store_dwordx4 v[24:27], v10, s[12:15], s45 offen sc1
        s_add_u32 s46, s45, 0x1000
        s_load_dword s47, s[22:23], s46
        s_mov_b32 s60, -1
        s_mov_b32 s61, -1
        s_waitcnt vmcnt(0) lgkmcnt(0)
        """)
        for i in range(8):
            a(f"""
            s_add_u32 s46, s45, {(i & 1)*0x2000 + (i >> 1)*128}
            s_memtime s[84:85]
            s_waitcnt lgkmcnt(0)
            s_load_dword s47, s[22:23], s46
            s_waitcnt lgkmcnt(0)
            s_memtime s[86:87]
            s_waitcnt lgkmcnt(0)
            s_sub_u32 s86, s86, s84
            s_min_u32 s{60 + (i & 1)}, s{60 + (i & 1)}, s86
            """)
        a(f"""
        s_cmp_gt_u32 s60, s61
        s_cselect_b32 s45, 3, 2
        v_mov_b32 v10, s45
        v_mov_b32 v11, 0
        s_lshl_b32 s45, s40, 7
        s_add_u32 s45, s45, {CTL_VOTE:#x}
        s_mov_b64 exec, 1
        buffer_store_dword v10, v11, s[12:15], s45 offen sc1
        s_mov_b64 exec, -1
        {join}_p:
        """)
    a(f"""
    s_setprio 1
    s_branch {join}
    """)
    a(f"""
    {vinit}:
    s_sub_u32 s54, s44, 4
    s_lshr_b32 s51, s54, 1
    s_and_b32 s50, s54, 1
    s_load_dwordx4 s[4:7], s[0:1], {KA['Wv']}
    s_load_dwordx2 s[8:9], s[0:1], {KA['mem0']}
    s_waitcnt lgkmcnt(0)
    """)
    srd(a, 24, 4, 5, 1024 * 8192)
    srd(a, 28, 6, 7, 4096 * 2048)
    srd(a, 32, 8, 9, 16384)
    a(f"""
    s_lshl_b32 s45, s54, 12
    s_add_u32 s45, s45, 0x20000
    v_add_u32 v20, s45, v20
    v_add_u32 v21, s45, v21
    v_add_u32 v22, s45, v2
    s_lshl_b32 s46, s49, 8
    s_lshl_b32 s48, s43, 6
    s_add_u32 s46, s46, s48
    s_lshl_b32 s48, s54, 21
    s_add_u32 s46, s46, s48
    """)
    wo_reg = lambda i: 64 + 16 * (i & 3) + 4 * (i >> 2)
    wv_reg = lambda i: 32 * (i & 1) + 4 * (i >> 1)
    for i in range(16):
        a(f"s_add_u32 s48, s46, {16*i*8192:#x}")
        a(f"buffer_load_dwordx4 a[{wv_reg(i)}:{wv_reg(i)+3}], v24, s[24:27], s48 offen")
    a(f"""
    s_lshl_b32 s52, s40, 15
    s_lshl_b32 s53, s42, 11
    s_add_u32 s52, s52, s53
    s_lshl_b32 s53, s43, 9
    s_add_u32 s52, s52, s53
    s_lshl_b32 s53, s51, 8
    s_add_u32 s52, s52, s53
    s_add_u32 s52, s52, {WS_VRING:#x}
    v_bfe_u32 v4, v1, 1, 1
    v_lshlrev_b32 v4, 7, v4
    v_lshl_add_u32 v4, v104, 4, v4
    v_and_b32 v5, 12, v100
    v_add_u32 v4, v4, v5
    v_add_u32 v4, s52, v4
    v_mov_b32 v26, -1
    """)
    a(f"""
    s_lshl_b32 s52, s51, 5
    s_add_u32 s52, s52, {L_KV + 512}
    v_and_b32 v5, 14, v100
    v_lshlrev_b32 v5, 1, v5
    v_lshl_add_u32 v5, v104, 6, v5
    v_add_u32 v5, s52, v5
    """)
    a(f"""
    s_lshl_b32 s52, s41, 14
    s_lshl_b32 s53, s54, 11
    s_add_u32 s52, s52, s53
    s_add_u32 s52, s52, {WS_G:#x}
    v_lshlrev_b32 v6, {3 if E("GL", 1) else 6}, v101
    v_lshl_add_u32 v6, v106, {5 if E("GL", 1) else 3}, v6
    v_and_b32 v7, 3, v1
    v_lshlrev_b32 v7, {3 if E("GL", 1) else 6}, v7
    v_bfe_u32 v30, v1, 2, 3
    v_lshl_add_u32 v7, v30, {5 if E("GL", 1) else 3}, v7
    v_lshl_add_u32 v7, v103, 2, v7
    v_add_u32 v7, s52, v7
    s_lshl_b32 s53, s40, 8
    s_add_u32 s52, s52, s53
    v_add_u32 v6, s52, v6
    v_lshlrev_b32 v30, 4, v100
    v_lshl_add_u32 v30, v101, 18, v30
    v_add_u32 v30, s52, v30
    v_mov_b32 v32, -1
    v_mov_b32 v33, -1
    v_mov_b32 v34, -1
    v_mov_b32 v35, -1
    buffer_store_dwordx4 v[32:35], v30, s[12:15], 0 offen sc1
    s_mov_b32 s53, 8192
    buffer_store_dwordx4 v[32:35], v30, s[12:15], s53 offen sc1
    """)
    a(f"""
    s_lshl_b32 s55, s40, 16
    s_add_u32 s55, s55, {WS_MRING:#x}
    s_lshl_b32 s52, s41, 10
    s_lshl_b32 s53, s54, 8
    s_add_u32 s52, s52, s53
    s_add_u32 s52, s52, s55
    v_lshlrev_b32 v8, 2, v1
    v_add_u32 v8, s52, v8
    s_lshl_b32 s53, s54, 12
    v_add_u32 v10, s53, v2
    v_add_u32 v9, s55, v10
    s_lshl_b32 s52, s40, 15
    s_lshl_b32 s53, s54, 11
    s_add_u32 s52, s52, s53
    s_add_u32 s52, s52, {WS_VRING:#x}
    v_add_u32 v11, s52, v2
    s_lshl_b32 s52, s54, 9
    s_add_u32 s52, s52, {L_VWM}
    v_lshlrev_b32 v12, 4, v100
    v_lshl_add_u32 v12, v102, 3, v12
    v_lshl_add_u32 v12, v103, 8, v12
    v_add_u32 v12, s52, v12
    s_lshl_b32 s52, s51, 3
    s_add_u32 s52, s52, {L_VRED}
    v_add_u32 v13, s52, v2
    s_lshl_b32 s52, s54, 10
    s_add_u32 s52, s52, {L_VRED}
    v_add_u32 v14, s52, v2
    s_lshl_b32 s52, s40, 2
    s_add_u32 s52, s52, s54
    s_mul_i32 s52, s52, 24576
    s_add_u32 s52, s52, {WS_QKV + 16384:#x}
    v_add_u32 v15, s52, v2
    s_lshl_b32 s52, s54, 10
    v_add_u32 v27, s52, v2
    """)
    a(f"""
    v_lshlrev_b32 v30, 11, v106
    v_lshl_add_u32 v30, v101, 5, v30
    v_lshl_add_u32 v30, v107, 2, v30
    s_lshl_b32 s52, s54, 9
    """)
    for i in range(4):
        for p in range(4):
            a(f"buffer_load_dword v{112+4*i+p}, v30, s[32:35], s52 offen offset:{128*i + 8*p}")
    a(f"""
    s_lshl_b32 s46, s40, 2
    s_add_u32 s46, s46, s54
    s_lshl_b32 s46, s46, 18
    s_lshl_b32 s48, s41, 7
    s_add_u32 s46, s46, s48
    """)
    for i in range(16):
        a(f"s_add_u32 s48, s46, {8*i*2048:#x}")
        a(f"buffer_load_dwordx4 a[{wo_reg(i)}:{wo_reg(i)+3}], v25, s[28:31], s48 offen")
    a("s_waitcnt vmcnt(16)")
    for grp in range(8):
        if grp == 4:
            a("s_barrier")
            a("s_waitcnt vmcnt(0)")
        g4 = grp & 3
        reg = wv_reg if grp < 4 else wo_reg
        for j in range(4):
            r = reg(4 * g4 + j)
            a(f"ds_write_b128 v22, a[{r}:{r+3}] offset:{1024*j}")
        a("s_waitcnt lgkmcnt(0)")
        if grp >= 4:
            stage_read(a, 21, [(64 + 16 * ct + 4 * g4, 32 * ct) for ct in range(4)], 512)
        else:
            stage_read(a, 20, [(32 * e + 4 * (2 * g4 + h), 2048 * h + 32 * e) for h in range(2) for e in range(2)], 256)
    a("""
    s_mov_b32 s65, 0
    s_waitcnt vmcnt(0)
    s_barrier
    """)
    a(f"""
    s_lshl_b32 s57, s40, 11
    s_lshl_b32 s53, s54, 7
    s_add_u32 s57, s57, s53
    s_add_u32 s57, s57, {WS_FLG + FQ + 512:#x}
    s_mov_b32 s69, 0
    s_mov_b32 s68, 0
    """)
    kv_wait(a, done)
    a(f"""
    v_lshlrev_b32 v28, 9, v101
    v_lshl_add_u32 v28, v100, 4, v28
    s_lshl_b32 s52, s54, 13
    s_add_u32 s52, s52, {WS_H1 + XS*65536:#x}
    v_add_u32 v28, s52, v28
    s_lshl_b32 s59, s54, 12
    s_add_u32 s59, s59, {L_XG}
    v_lshlrev_b32 v31, 4, v100
    v_lshl_add_u32 v31, v103, 8, v31
    v_add_u32 v31, {L_PM}, v31
    s_lshl_b32 s52, s54, 11
    s_add_u32 s52, s52, {L_VWM}
    v_add_u32 v25, s52, v2
    v_mov_b32 v29, {L_TICK + 16}
    v_mov_b32 v30, 0
    ds_write_b32 v29, v30
    v_mov_b32 v30, 1
    s_mov_b32 s58, 0
    s_mov_b32 s64, 0
    """)
    if KXPOS == 5:
        kx_dma(a)
    vx_load(a)
    phase_f(a, 0)
    a("s_mov_b64 s[66:67], 0")
    a("s_mov_b32 s63, 0")
    a("s_mov_b32 s68, 1")
    kv_wait(a, done)
    if NEAR:
        a(f"""
        v_lshrrev_b32 v22, 3, v1
        v_lshlrev_b32 v22, 7, v22
        s_mov_b32 s45, {CTL_VOTE:#x}
        s_mov_b32 s46, 0
        """)
        wk.spin(a, 22, "s45", 46, 23, done)
        a(f"""
        v_cmp_{"eq" if NEAR == 1 else "ne"}_u32 s[66:67], 3, v23
        s_nop 3
        s_bitcmp1_b32 s66, 0
        s_cselect_b32 s63, 8192, 0
        """)
    a("s_waitcnt lgkmcnt(0)")
    for i in range(16):
        a(f"v_min_u32 v{64+i}, -2, v{112+i}")
    for i in range(8):
        a(f"v_mov_b32 v{16+i}, 0")
    a(f"{join}:")
    gstamp(a, 1)
    nh = a.lab("c_nh")
    rp = a.lab("c_rp")
    a(f"""
    s_mov_b32 s60, 0
    s_mov_b32 s61, 0
    s_mov_b32 s62, 0
    s_cmp_lg_u32 s44, 0
    s_cbranch_scc1 {nh}
    v_lshlrev_b32 v17, 3, v1
    s_lshl_b32 s46, s40, 3
    v_mov_b32 v21, s46
    s_mov_b32 s45, {CTL_READY:#x}
    s_mov_b32 s70, 0
    {rp}:
    buffer_load_dwordx2 v[18:19], v17, s[12:15], s45 offen sc1
    buffer_load_dwordx2 v[22:23], v21, s[12:15], s45 offen offset:512 sc1
    s_waitcnt vmcnt(0)
    v_min3_u32 v20, v18, v19, v22
    v_min_u32 v20, v20, v23
    v_cmp_eq_u32 vcc, 0, v20
    """)
    retry(a, rp, done)
    a(f"""
    v_cmp_eq_u32 s[52:53], v18, v16
    v_cmp_eq_u32 vcc, v19, v16
    v_cmp_eq_u32 s[54:55], v22, v16
    v_cmp_eq_u32 s[56:57], v23, v16
    s_lshl_b32 s46, s40, 3
    s_nop 3
    s_and_b64 s[52:53], s[52:53], vcc
    {"" if SPLIT else "s_and_b64 s[52:53], s[52:53], s[54:55]"}
    {"" if SPLIT else "s_and_b64 s[52:53], s[52:53], s[56:57]"}
    s_lshr_b64 s[52:53], s[52:53], s46
    s_and_b32 s52, s52, 0xff
    s_cmp_eq_u32 s52, 0xff
    s_cselect_b32 s52, {0 if FORCE_SLOW else 1}, 0
    v_mov_b32 v16, s52
    v_mov_b32 v17, {L_TICK}
    ds_write_b32 v17, v16
    {nh}:
    s_waitcnt lgkmcnt(0)
    s_barrier
    v_mov_b32 v17, {L_TICK}
    ds_read_b32 v16, v17
    s_waitcnt lgkmcnt(0)
    v_readfirstlane_b32 s52, v16
    """)
    gstamp(a, 2)
    if E("HD", 0):
        sk = a.lab("hd")
        a(f"s_cmp_lg_u32 s44, 4")
        a(f"s_cbranch_scc1 {sk}")
        hd(a, 5)
        hd(a, 1, val="s66")
        hd(a, 2, val="s67")
        a(f"{sk}:")
    lsf, lss, lvf, lvs = (a.lab(x) for x in ("sf", "ss", "vf", "vs"))
    a(f"""
    s_nop 3
    s_cmp_ge_u32 s44, 4
    s_cbranch_scc1 {lvf}
    s_mov_b32 s57, s58
    s_mov_b32 s58, 0
    s_cmp_ge_u32 s44, 2
    s_cbranch_scc1 {lsf}
    buffer_load_dwordx4 v[32:35], v6, s[12:15], 0 offen sc1
    {lsf}:
    s_mov_b32 s54, s52
    v_add_u32 v52, {32*24576}, v6
    s_mul_i32 s53, s49, 24576
    s_lshl_b32 s55, s43, 11
    s_add_u32 s53, s53, s55
    s_and_b32 s55, s44, 1
    s_lshl_b32 s55, s55, 10
    s_add_u32 s53, s53, s55
    s_add_u32 s53, s53, {WS_QKV + 16384 + 2*32*24576:#x}
    v_and_b32 v53, 7, v1
    v_lshlrev_b32 v53, 7, v53
    v_add_u32 v53, s53, v53
    s_cmp_ge_u32 s44, 2
    s_cselect_b64 vcc, -1, 0
    s_cselect_b64 s[52:53], 0xff, -1
    v_cndmask_b32 v52, v52, v53, vcc
    s_cselect_b32 s55, {32*24576}, 0
    v_readfirstlane_b32 s56, v52
    s_nop 3
    s_sub_u32 s56, s56, s55
    s_cmp_eq_u32 s54, 0
    s_cbranch_scc1 {lss}
    """)
    s_loop(a, done, True)
    a(f"{lss}:")
    s_loop(a, done, False)
    a(f"""
    {lvf}:
    s_cmp_eq_u32 s52, 0
    s_cbranch_scc1 {lvs}
    """)
    v_loop(a, done, True)
    a(f"{lvs}:")
    v_loop(a, done, False)
    a(f"{done}:")
    if E("HD", 0):
        sk = a.lab("hd")
        a(f"s_cmp_ge_u32 s2, 256")
        a(f"s_cbranch_scc1 {sk}")
        a(f"s_cmp_lg_u32 s44, 0")
        a(f"s_cbranch_scc1 {sk}")
        hd(a, 7)
        hd(a, 3, val="s93")
        a(f"{sk}:")
    a("s_endpgm")
    return name, kd(name, 256, accum=128), f"grid=(256,1,1) block=(512,1,1) lds={LDS_BYTES}"
```

```python
import os
from lib1 import *

E = lambda k, d: int(os.environ.get(k, str(d)))
TMO = 0x80000
SPIN = E("SPIN", 3)
SPA = E("SPA", 4)
M16G = E("M16", 1)
F1M32 = E("F1M32", 1)
R1 = E("R1", 60)
R2 = E("R2", 63)
Q1 = E("Q1", R1)
Q2 = E("Q2", R2)
REPL = "L_replica"
HK = E("KH", 41)
HV = E("VH", 54)
SOFT = E("SOFT", 0)
CB = E("CB", 1)
LOOKAT = E("LOOKAT", 12)
MIDB = E("MIDB", 6)
L_BC = 147456
L_EX = 131072
LDS_BYTES = 147456 + 256


def spin(a, vaddr, soff, sseg, vtmp, done, sleep=None):
    lp = a.lab("spin")
    ok = a.lab("spok")
    a(f"""
    s_mov_b32 s70, 0
    {lp}:
    buffer_load_dword v{vtmp}, v{vaddr}, s[12:15], {soff} offen sc1
    s_waitcnt vmcnt(0)
    v_cmp_ge_u32 vcc, s{sseg}, v{vtmp}
    s_add_u32 s70, s70, 1
    s_cbranch_vccz {ok}
    s_sleep {SPIN if sleep is None else sleep}
    s_cmp_lt_u32 s70, {TMO}
    s_cbranch_scc1 {lp}
    s_branch {done}
    {ok}:
    """)


def zwait(a, done, vt):
    lp = a.lab("zw")
    ok = a.lab("zwok")
    a(f"""
    s_cmp_lg_u32 s44, 0
    s_cbranch_scc1 {ok}
    v_and_b32 v{vt}, 7, v1
    v_lshlrev_b32 v{vt}, 5, v{vt}
    s_mov_b32 s70, 0
    {lp}:
    buffer_load_dword v{vt+1}, v{vt}, s[16:19], 0 offen sc1
    s_waitcnt vmcnt(0)
    v_add_u32_dpp v{vt+1}, v{vt+1}, v{vt+1} row_ror:1 row_mask:0xf bank_mask:0xf
    s_nop 1
    v_add_u32_dpp v{vt+1}, v{vt+1}, v{vt+1} row_ror:2 row_mask:0xf bank_mask:0xf
    s_nop 1
    v_add_u32_dpp v{vt+1}, v{vt+1}, v{vt+1} row_ror:4 row_mask:0xf bank_mask:0xf
    v_cmp_ne_u32 vcc, 0x100, v{vt+1}
    s_add_u32 s70, s70, 1
    s_cbranch_vccz {ok}
    s_sleep 4
    s_cmp_lt_u32 s70, {TMO}
    s_cbranch_scc1 {lp}
    s_branch {done}
    {ok}:
    """)


def set_flag(a, soff, sseg, vt, wave=0):
    sk = a.lab("sf")
    if wave is not None:
        a(f"s_cmp_lg_u32 s44, {wave}")
        a(f"s_cbranch_scc1 {sk}")
    a(f"""
    v_mov_b32 v{vt}, s{sseg}
    v_add_u32 v{vt}, 1, v{vt}
    v_mov_b32 v{vt+1}, 0
    s_mov_b64 exec, 1
    buffer_store_dword v{vt}, v{vt+1}, s[12:15], s{soff} offen sc1
    s_mov_b64 exec, -1
    {sk}:
    """)


def wstamp(a, vt, slot=0, kind=None, sseg=60):
    if E("STAMP", 0) != 3:
        return
    a(f"""
    s_memrealtime s[80:81]
    s_lshl_b32 s82, s40, 5
    s_add_u32 s82, s82, {"31" if kind == "f" else "s41"}
    s_lshl_b32 s82, s82, 3
    s_add_u32 s82, s82, s44
    s_lshl_b32 s82, s82, 6
    s_add_u32 s82, s82, s{sseg}
    s_lshl_b32 s82, s82, 4
    s_add_u32 s82, s82, {WS_STAMP + (0x400000 if kind == 'qkv' else 0x100000) + 4*slot:#x}
    v_mov_b32 v{vt+1}, 0
    s_waitcnt lgkmcnt(0)
    v_mov_b32 v{vt}, s80
    s_mov_b64 exec, 1
    buffer_store_dword v{vt}, v{vt+1}, s[12:15], s82 offen
    s_mov_b64 exec, -1
    """)


def tstamp(a, idx):
    if E("STAMP", 0) != 3:
        return
    sk = a.lab("ts")
    a(f"""
    s_cmp_lg_u32 s44, 0
    s_cbranch_scc1 {sk}
    s_memrealtime s[80:81]
    s_lshl_b32 s82, s40, 5
    s_add_u32 s82, s82, s41
    s_lshl_b32 s82, s82, 6
    s_add_u32 s82, s82, {WS_STAMP + 0x700000 + 4*idx:#x}
    v_mov_b32 v127, 0
    s_waitcnt lgkmcnt(0)
    v_mov_b32 v126, s80
    s_mov_b64 exec, 1
    buffer_store_dword v126, v127, s[12:15], s82 offen
    s_mov_b64 exec, -1
    {sk}:
    """)


def cstamp(a, i, kind, cond=None):
    if E("STAMP", 0) == 6 and kind == os.environ.get("CKIND", "qkv"):
        if i == 0:
            for j in range(90, 98):
                a(f"s_mov_b32 s{j}, 0")
            a("s_mov_b32 s82, 0")
        elif i == 7:
            a(f"""
            s_lshl_b32 s82, s40, 5
            s_add_u32 s82, s82, s41
            s_lshl_b32 s82, s82, 3
            s_add_u32 s82, s82, s44
            s_lshl_b32 s82, s82, 6
            s_add_u32 s82, s82, {WS_STAMP:#x}
            v_mov_b32 v11, 0
            """)
            for j in range(8):
                a(f"v_mov_b32 v10, s{90+j}")
                a(f"buffer_store_dword v10, v11, s[12:15], s82 offen offset:{4*j}")
        else:
            a(f"""
            s_getreg_b32 s80, hwreg(HW_REG_SHADER_CYCLES) if False
            """.replace("s_getreg_b32 s80, hwreg(HW_REG_SHADER_CYCLES) if False", "s_memtime s[80:81]"))
            a(f"""
            s_waitcnt lgkmcnt(0)
            s_sub_u32 s83, s80, s82
            s_mov_b32 s82, s80
            s_sub_u32 s84, s60, 10
            s_cmp_lt_u32 s84, 30
            s_cselect_b32 s83, s83, 0
            s_add_u32 s{90+i}, s{90+i}, s83
            """)
        return
    if E("STAMP", 0) != 4 or kind != os.environ.get("CKIND", "qkv"):
        return
    if cond and E("CTOT", 0):
        return
    sk = a.lab("cs")
    if cond:
        a(f"s_cmp_lg_u32 s60, {E('CSEG', 30)}")
        a(f"s_cbranch_scc1 {sk}")
    a("s_memtime s[80:81]")
    if i in (0, 7):
        a("s_memrealtime s[82:83]")
    a("s_waitcnt lgkmcnt(0)")
    a(f"s_mov_b32 s{84+i}, s80")
    if i in (0, 7):
        a(f"s_mov_b32 s{92 + (i == 7)}, s82")
    if i == 7:
        a(f"""
        s_lshl_b32 s82, s40, 5
        s_add_u32 s82, s82, s41
        s_lshl_b32 s82, s82, 3
        s_add_u32 s82, s82, s44
        s_lshl_b32 s82, s82, 6
        s_add_u32 s82, s82, {WS_STAMP:#x}
        v_mov_b32 v11, 0
        """)
        for j in range(10):
            a(f"v_mov_b32 v10, s{84+j}")
            a(f"buffer_store_dword v10, v11, s[12:15], s82 offen offset:{4*j}")
    a(f"{sk}:")


def gelu(a, r, t):
    a(f"v_mul_f32 v{t}, v{r}, v{r}")
    a(f"v_mul_f32 v{t}, 0x3d372713, v{t}")
    a(f"v_add_f32 v{t}, 1.0, v{t}")
    a(f"v_mul_f32 v{t}, v{t}, v{r}")
    a(f"v_mul_f32 v{t}, 0xc0135761, v{t}")
    a(f"v_exp_f32 v{t}, v{t}")
    a("s_nop 0")
    a(f"v_add_f32 v{t}, 1.0, v{t}")
    a(f"v_rcp_f32 v{t}, v{t}")
    a("s_nop 0")
    a(f"v_mul_f32 v{r}, v{r}, v{t}")


NPC = 2


def phase_off(a, dst, src, kind):
    if kind == 'wo':
        a(f"s_and_b32 s{dst}, s{src}, 3")
        a(f"s_lshl_b32 s{dst}, s{dst}, 7")
    elif kind == 'qkv':
        a(f"s_and_b32 s{dst}, s{src}, 7")
        a(f"s_lshl_b32 s{dst}, s{dst}, 9")
    elif kind == 'f1':
        a(f"s_mul_i32 s{dst}, s{src}, 171")
        a(f"s_lshr_b32 s{dst}, s{dst}, 9")
        a(f"s_mul_i32 s{dst}, s{dst}, 3")
        a(f"s_sub_u32 s{dst}, s{src}, s{dst}")
        a(f"s_lshl_b32 s{dst}, s{dst}, 9")
    else:
        a(f"s_cmp_ge_u32 s{src}, {R1}")
        a(f"s_cselect_b32 s{dst}, {FREP}, 0")
        a(f"s_cmp_ge_u32 s{src}, {R2}")
        a(f"s_cselect_b32 s{dst}, {2*FREP}, s{dst}")


def gemm_role(a, kind, done, fin):
    M16 = M16G and not (F1M32 and kind == 'f1')
    f32in = kind == 'f2' and (F1M32 or not M16G)
    FRESH = kind in os.environ.get('FRESH', 'f2').split(',')
    W2 = 20 if FRESH else 0
    NK = 28 if kind == 'f2' else 32
    KH = 16 * NK
    ld = {'wo': 2048, 'f1': 7168, 'f2': 2048, 'qkv': 8192}[kind]
    wsz = {'wo': 4096 * 2048, 'f1': 1024 * 7168, 'f2': 3584 * 2048, 'qkv': 1024 * 8192}[kind]
    wrow = kind in ('f1', 'qkv')
    if kind == 'qkv':
        a(f"""
        s_lshl_b32 s46, s53, 3
        s_add_u32 s46, s46, {KA['Wq']}
        s_load_dwordx2 s[4:5], s[0:1], s46
        s_lshl_b32 s49, s40, 2
        s_and_b32 s46, s48, 3
        s_add_u32 s49, s49, s46
        """)
    else:
        a(f"s_load_dwordx2 s[4:5], s[0:1], {KA[{'wo': 'Wo', 'f1': 'w1', 'f2': 'w2'}[kind]]}")
    a(f"""
    s_load_dwordx2 s[6:7], s[0:1], {KA['b1']}
    s_and_b32 s50, s44, 3
    s_lshr_b32 s51, s44, 2
    s_waitcnt lgkmcnt(0)
    """)
    srd(a, 24, 4, 5, wsz)
    if kind == 'f1':
        a("s_mul_i32 s49, s42, 7")
        a("s_add_u32 s49, s49, s43")
    if kind == 'qkv' and E("QDELAY", 2) == 1:
        nq = a.lab("g_nq")
        nq2 = a.lab("g_nq2")
        a(f"s_cmp_lg_u32 s53, 0")
        a(f"s_cbranch_scc1 {nq}")
        zwait(a, done, 10)
        a(f"""
        s_cmp_lg_u32 s44, 0
        s_cbranch_scc1 {nq2}
        v_mov_b32 v10, {WS_FLG + FL:#x}
        s_mov_b32 s47, 0
        """)
        spin(a, 10, "0", 47, 11, done)
        a(f"""
        {nq2}:
        s_barrier
        {nq}:
        """)
    if kind == 'qkv' and E("QDELAY", 2) == 2:
        nq = a.lab("g_nq")
        a(f"""
        s_cmp_lg_u32 s53, 0
        s_cbranch_scc1 {nq}
        s_load_dwordx4 s[8:11], s[0:1], {KA['Wk']}
        v_and_b32 v10, 255, v0
        v_lshlrev_b32 v10, 13, v10
        s_and_b32 s46, s48, 3
        s_lshl_b32 s46, s46, 21
        s_lshl_b32 s47, s40, 10
        s_add_u32 s46, s46, s47
        s_add_u32 s46, s46, 384
        s_waitcnt lgkmcnt(0)
        s_cmp_eq_u32 s51, 1
        s_cselect_b32 s8, s10, s8
        s_cselect_b32 s9, s11, s9
        """)
        srd(a, 28, 8, 9, wsz)
        a(f"""
        buffer_load_dword v11, v10, s[28:31], s46 offen
        s_cmp_eq_u32 s51, 1
        s_cbranch_scc1 {nq}
        buffer_load_dword v12, v10, s[24:27], s46 offen
        {nq}:
        """)
    RING = E('RING', 1)
    rpw = 16 if RING else KH // 8
    a(f"""
    v_lshrrev_b32 v3, 4, v1
    v_and_b32 v4, 15, v1
    v_lshlrev_b32 v5, 2, v3
    v_xor_b32 v4, v4, v5
    v_mul_u32_u24 v3, {ld}, v3
    v_lshl_add_u32 v3, v4, 4, v3
    s_mul_i32 s46, s51, {KH}
    s_mul_i32 s47, s50, {rpw}
    s_add_u32 s46, s46, s47
    """)
    if wrow:
        a(f"s_mul_i32 s46, s46, {ld}")
        a("s_lshl_b32 s47, s49, 8")
    else:
        a(f"s_mul_i32 s47, s42, {2*KH}")
        a("s_add_u32 s46, s46, s47")
        a(f"s_mul_i32 s46, s46, {ld}")
        a("s_lshl_b32 s47, s43, 8")
    hlrows = 8 if wrow else 4
    b_chunk, b_half = (0, 1) if kind == 'qkv' else (1, 0)
    a(f"""
    s_add_u32 s46, s46, s47
    s_lshl_b32 s45, s51, 16
    s_mul_i32 s47, s50, {rpw*256}
    s_add_u32 s45, s45, s47
    v_bfe_u32 v4, v1, 2, 2
    v_bfe_u32 v5, v1, 4, 1
    v_lshlrev_b32 v5, 1, v5
    v_bfe_u32 v6, v1, {b_chunk}, 1
    v_add_u32 v5, v5, v6
    s_lshl_b32 s47, s50, 2
    v_add_u32 v5, s47, v5
    v_lshlrev_b32 v6, 2, v4
    v_xor_b32 v5, v5, v6
    v_lshlrev_b32 v5, 4, v5
    v_lshl_add_u32 v5, v4, 8, v5
    v_bfe_u32 v6, v1, {b_half}, 1
    v_lshl_add_u32 v5, v6, 3, v5
    v_lshrrev_b32 v6, 5, v1
    v_mul_u32_u24 v6, {hlrows*256}, v6
    v_add_u32 v5, v5, v6
    s_lshl_b32 s47, s51, 16
    v_add_u32 v5, s47, v5
    """)

    if M16:
        a(f"""
        v_bfe_u32 v4, v1, 2, 2
        v_xor_b32 v5, s50, v4
        v_lshlrev_b32 v5, 6, v5
        v_lshl_add_u32 v5, v4, 8, v5
        v_and_b32 v6, 3, v1
        v_lshl_add_u32 v5, v6, {4 if kind == 'qkv' else 3}, v5
        v_lshrrev_b32 v6, 4, v1
        v_lshl_add_u32 v5, v6, {11 if wrow else 10}, v5
        v_lshrrev_b32 v6, 5, v1
        {"v_lshl_add_u32 v5, v6, 11, v5" if f32in else ""}
        s_lshl_b32 s47, s51, 16
        v_add_u32 v5, s47, v5
        """)

    def rowstart(F, e):
        if M16:
            return 32 * (F >> 1) + e * (4 if wrow else 8 if f32in else 16) + (F & 1) * (8 if kind == 'qkv' else 32) / 256
        if wrow:
            return 16 * F + 4 * e
        if kind == 'f2':
            return 16 * F + 8 * e
        return 32 * (F >> 1) + 16 * e + 8 * (F & 1)
    if RING:
        NG = KH // 64

        def gissue(g):
            for i in range(4):
                a(f"s_add_u32 m0, s45, {16384*(g & 3) + 1024*i}")
                a(f"s_add_u32 s47, s46, {(64*g + 4*i)*ld:#x}")
                a("buffer_load_dwordx4 v3, s[24:27], s47 offen lds")
        for g in range(4):
            gissue(g)
        issued = 4
        for g in range(NG):
            a(f"s_waitcnt vmcnt({4*(issued - g - 1)}) lgkmcnt(0)")
            a("s_barrier")
            if g >= 1 and issued < NG:
                gissue(issued)
                issued += 1
            for F in range(4):
                reg = (4 * g + F) * 4
                for e in range(2):
                    a(f"ds_read_b64_tr_b16 a[{reg+2*e}:{reg+2*e+1}], v5 offset:{16384*(g & 3) + int(rowstart(F, e)*256)}")
        a("s_waitcnt lgkmcnt(0)")
        a("s_barrier")
        tstamp(a, 2 if kind == 'qkv' else 5)
    for r in range(0 if RING else 2):
        for i in range(rpw // 4):
            a(f"s_add_u32 m0, s45, {1024*i}")
            a(f"s_add_u32 s47, s46, {(r*KH//2 + 4*i)*ld:#x}")
            a("buffer_load_dwordx4 v3, s[24:27], s47 offen lds")
        a("s_waitcnt vmcnt(0)")
        a("s_barrier")
        for F in range(NK // 2):
            reg = (r * NK // 2 + F) * 4
            for e in range(2):
                a(f"ds_read_b64_tr_b16 a[{reg+2*e}:{reg+2*e+1}], v5 offset:{int(rowstart(F, e)*256)}")
            if F % 4 == 3:
                a("s_waitcnt lgkmcnt(0)")
        a("s_waitcnt lgkmcnt(0)")
        a("s_barrier")
        tstamp(a, (1 if kind == 'qkv' else 4) + r)
    if kind == 'wo' and E("WOPF", 1):
        a(f"""
        s_load_dwordx2 s[8:9], s[0:1], {KA['w1']}
        s_load_dwordx2 s[10:11], s[0:1], {KA['w2']}
        s_lshl_b32 s46, s42, 3
        s_add_u32 s46, s46, s43
        s_mul_i32 s46, s46, 229376
        s_mul_i32 s47, s44, 28672
        s_add_u32 s46, s46, s47
        v_lshlrev_b32 v10, 7, v1
        s_waitcnt lgkmcnt(0)
        """)
        srd(a, 28, 8, 9, 1024 * 7168)
        srd(a, 32, 10, 11, 1024 * 7168)
        for sr in (28, 32)[:E("WOPF", 1)]:
            for i in range(4):
                a(f"s_add_u32 s47, s46, {min(8192*i, 28672 - 8192)}")
                a(f"buffer_load_dword v{120+i}, v10, s[{sr}:{sr+3}], s47 offen")
    aseg = {'wo': 262144, 'f1': 65536, 'f2': 229376, 'qkv': 65536}[kind]
    abase = {'wo': WS_OX, 'f1': WS_H2, 'f2': WS_F, 'qkv': WS_H1}[kind]
    ND = NK // 4
    a(f"""
    v_lshlrev_b32 v2, 4, v1
    s_mul_i32 s64, s44, {ND*1024}
    s_add_u32 s46, s64, {abase:#x}
    """)
    if not wrow:
        a(f"s_mul_i32 s47, s42, {2*NK*1024}")
        a("s_add_u32 s46, s46, s47")
    a(f"""
    v_add_u32 v3, s46, v2
    s_mul_i32 s46, s51, {NK*1024}
    v_add_u32 v4, s46, v2
    v_and_b32 v6, 15, v1
    v_lshlrev_b32 v6, 4, v6
    v_lshrrev_b32 v7, 4, v1
    v_lshl_add_u32 v6, v7, 9, v6
    {"v_add_u32 v4, s46, v6" if M16 else ""}
    s_lshl_b32 s46, s50, 12
    s_add_u32 s46, s46, {L_EX}
    v_add_u32 v5, s46, v2
    """)
    if wrow:
        a(f"""
        v_and_b32 v7, 3, v1
        v_lshlrev_b32 v7, 7, v7
        v_add_u32 v7, {WS_FLG + (FC if kind == 'f1' else FL):#x}, v7
        """)
    if kind == 'qkv':
        a(f"""
        s_mul_i32 s46, s49, 24576
        s_lshl_b32 s47, s53, 13
        s_add_u32 s46, s46, s47
        s_lshl_b32 s47, s50, 10
        s_add_u32 s46, s46, s47
        s_add_u32 s46, s46, {WS_QKV:#x}
        v_and_b32 v8, 15, v1
        v_lshlrev_b32 v8, 4, v8
        v_bfe_u32 v9, v1, 4, 1
        v_lshl_add_u32 v8, v9, 12, v8
        v_lshrrev_b32 v9, 5, v1
        v_lshl_add_u32 v8, v9, 8, v8
        v_add_u32 v8, s46, v{2 if M16 else 8}
        v_add_u32 v9, {4096 if M16 else 512}, v8
        s_lshl_b32 s52, s40, 2
        s_add_u32 s52, s52, s53
        s_lshl_b32 s52, s52, 2
        s_and_b32 s47, s48, 3
        s_add_u32 s52, s52, s47
        s_lshl_b32 s52, s52, 7
        s_add_u32 s52, s52, {WS_FLG + FQ:#x}
        s_add_u32 s52, s52, s76
        v_mov_b32 v116, -1
        v_mov_b32 v117, -1
        v_mov_b32 v118, -1
        v_mov_b32 v119, -1
        s_lshl_b32 s46, s49, 12
        s_lshl_b32 s47, s50, 10
        s_add_u32 s46, s46, s47
        s_add_u32 s46, s46, {WS_MKV:#x}
        v_add_u32 v64, s46, v2
        s_and_b32 s46, s48, 3
        s_lshl_b32 s46, s46, 16
        s_lshl_b32 s47, s50, 14
        s_add_u32 s46, s46, s47
        s_lshl_b32 s47, s40, 8
        s_add_u32 s46, s46, s47
        s_add_u32 s46, s46, {WS_G:#x}
        v_and_b32 v65, 15, v1
        v_lshlrev_b32 v65, 4, v65
        v_lshrrev_b32 v66, 4, v1
        v_lshl_add_u32 v65, v66, 11, v65
        v_add_u32 v65, s46, v65
        v_add_u32 v68, 8192, v65
        s_lshl_b32 s58, s74, 17
        s_lshl_b32 s46, s53, 3
        s_sub_u32 s46, {KA['w2']}, s46
        s_load_dwordx2 s[8:9], s[0:1], s46
        v_lshlrev_b32 v66, 7, v1
        s_mul_i32 s57, s49, 229376
        s_waitcnt lgkmcnt(0)
        """)
        srd(a, 32, 8, 9, 1024 * 7168)
        a(f"""
        """)
    elif kind == 'f1':
        a(f"""
        s_lshl_b32 s46, s49, 13
        s_lshl_b32 s47, s50, 11
        s_add_u32 s46, s46, s47
        s_add_u32 s46, s46, {WS_F:#x}
        v_add_u32 v8, s46, v{6 if M16 else 2}
        s_lshl_b32 s52, s49, 7
        s_add_u32 s52, s52, {WS_FLG + FF1:#x}
        s_add_u32 s52, s52, s76
        """)
        srd(a, 28, 6, 7, 7168)
        a(f"""
        s_lshl_b32 s46, s49, 8
        s_lshl_b32 s47, s50, 6
        s_add_u32 s46, s46, s47
        v_lshrrev_b32 v9, {4 if M16 else 5}, v1
        v_lshlrev_b32 v9, 3, v9
        """)
        for rr in range(4):
            a(f"buffer_load_dwordx2 v[{32+2*rr}:{33+2*rr}], v9, s[28:31], s46 offen offset:{32*(rr&1) if M16 else 16*rr}")
        a(f"v_add_u32 v9, {256 if M16 else 1024}, v8")
        a("""
        s_mov_b32 s56, 0xbdd2d3e8
        s_mov_b32 s57, 0xbdd2d3e8
        v_mov_b32 v112, 0xc0135761
        s_waitcnt vmcnt(0)
        """)
        for i in range(8):
            a(f"v_lshlrev_b32 v{64+2*i}, 16, v{32+i}")
            a(f"v_and_b32 v{65+2*i}, 0xffff0000, v{32+i}")
    else:
        if kind == 'wo':
            a(f"""
            v_and_b32 v7, 7, v1
            v_lshlrev_b32 v7, 9, v7
            s_lshl_b32 s46, s42, 12
            s_add_u32 s46, s46, {WS_FLG + FA:#x}
            v_add_u32 v7, s46, v7
            """)
        else:
            a(f"""
            v_and_b32 v7, 15, v1
            v_min_u32 v7, 6, v7
            v_lshlrev_b32 v7, 7, v7
            s_mul_i32 s46, s42, {7*128}
            s_add_u32 s46, s46, {WS_FLG + FF1:#x}
            v_add_u32 v7, s46, v7
            """)
        a(f"""
        s_lshl_b32 s46, s42, 16
        s_lshl_b32 s47, s43, 11
        s_add_u32 s46, s46, s47
        s_lshl_b32 s47, s50, 9
        s_add_u32 s46, s46, s47
        s_add_u32 s46, s46, {WS_P1 if kind == 'wo' else WS_P2:#x}
        v_and_b32 v8, 31, v1
        v_lshlrev_b32 v8, 4, v8
        v_lshrrev_b32 v9, 5, v1
        v_lshl_add_u32 v8, v9, 14, v8
        v_add_u32 v8, s46, v8
        v_add_u32 v9, 0x8000, v8
        s_lshl_b32 s52, s43, 9
        s_lshl_b32 s47, s42, 7
        s_add_u32 s52, s52, s47
        s_add_u32 s52, s52, {WS_FLG + (FW if kind == 'wo' else FF2):#x}
        s_add_u32 s52, s52, s76
        """)
    if kind != 'qkv':
        a(f"""
        s_mul_i32 s46, s43, {NK*256}
        s_add_u32 s46, s46, {abase:#x}
        s_mul_i32 s47, s42, {0 if wrow else 2*NK*1024}
        s_add_u32 s46, s46, s47
        v_min_u32 v116, {NK*2-1}, v1
        v_lshlrev_b32 v116, 7, v116
        v_add_u32 v116, s46, v116
        """)
    oseg = {'f1': 229376, 'qkv': 786432}.get(kind, 262144)
    a(f"""
    s_mov_b32 s60, s74
    s_mul_i32 s61, s74, {aseg}
    s_mov_b32 s62, s74
    s_mul_i32 s63, s74, {oseg}
    s_mov_b32 s67, 0
    s_mov_b32 s68, 3
    s_mov_b32 s71, 0
    v_mov_b32 v15, {L_BC}
    v_mov_b32 v14, 0
    ds_write_b32 v15, v14 offset:4
    ds_write_b32 v15, v14 offset:12
    ds_write_b32 v15, v14 offset:16
    v_mov_b32 v114, 1
    v_mov_b32 v115, 0
    v_lshrrev_b32 v113, 4, v1
    s_mov_b32 s72, 0
    """)

    def dma_if(lim):
        sk = a.lab("g_nd")
        a(f"""
        s_mov_b32 s69, 0
        s_cmp_gt_u32 s62, s{lim}
        s_cbranch_scc1 {sk}
        s_cmp_ge_u32 s62, s66
        s_cbranch_scc1 {sk}
        s_add_u32 s47, s61, 4096
        """)
        for hf in range(2):
            a(f"s_add_u32 m0, s64, {4096*hf}")
            a("s_nop 0")
            for i in range(4):
                if i + 4 * hf < min(ND, E("XDMA", 8)):
                    a(f"buffer_load_dwordx4 v3, s[12:15], s{61 if hf == 0 else 47} offen offset:{1024*i} sc1 lds")
        a(f"""
        s_add_u32 s61, s61, {aseg}
        s_add_u32 s62, s62, 1
        s_xor_b32 s64, s64, 0x10000
        s_mov_b32 s69, 1
        {sk}:
        """)

    def dma_body():
        a("s_add_u32 s47, s61, 4096")
        a("s_mov_b32 m0, s64")
        for i in range(ND):
            if i == 0:
                a(f"s_add_u32 s62, s62, 1")
            if i == 4:
                a("s_add_u32 m0, s64, 4096")
                a(f"s_add_u32 s61, s61, {aseg}")
            a(f"buffer_load_dwordx4 v3, s[12:15], s{61 if i < 4 else 47} offen offset:{1024*(i&3)} sc1 lds")
        a("s_xor_b32 s64, s64, 0x10000")
    cold = []

    def dma_pair(setlate):
        c = a.lab("g_dp")
        a(f"""
        s_cmp_le_u32 s62, s60
        s_cbranch_scc1 {c}_l
        {c}_a:
        s_cmp_ge_u32 s62, s66
        s_cbranch_scc1 {c}_d
        """)
        dma_body()
        a(f"{c}_d:")

        def cl():
            a(f"""
            {c}_l:
            s_cmp_ge_u32 s62, s66
            s_cbranch_scc1 {c}_d
            {setlate}
            """)
            dma_body()
            a(f"s_branch {c}_a")
        cold.append(cl)
    NL = 3

    def arrive(off):
        a("s_mov_b64 exec, 1")
        a(f"ds_add_u32 v15, v114 offset:{off}")
        a("s_mov_b64 exec, -1")

    def await_(off, n):
        lp = a.lab("g_aw")
        a(f"""
        s_add_u32 s72, s72, {n}
        s_mov_b32 s70, 0
        {lp}:
        ds_read_b32 v115, v15 offset:{off}
        s_add_u32 s70, s70, 1
        s_cmp_ge_u32 s70, {TMO * 16}
        s_cbranch_scc1 {done}
        s_waitcnt lgkmcnt(0)
        v_cmp_ne_u32 vcc, s72, v115
        s_nop 0
        s_cbranch_vccnz {lp}
        """)

    def look_issue(first):
        a(f"s_add_u32 s54, s60, {first}")
        a("v_add_u32 v12, s54, v113")
        if kind in ('wo', 'qkv'):
            a(f"v_and_b32 v13, {3 if kind == 'wo' else 7}, v12")
            a(f"v_lshl_add_u32 v13, v13, {7 if kind == 'wo' else 9}, v7")
        elif kind == 'f1':
            a("""
            v_mul_u32_u24 v13, 171, v12
            v_lshrrev_b32 v13, 9, v13
            v_mad_i32_i24 v13, v13, -3, v12
            v_lshl_add_u32 v13, v13, 9, v7
            """)
        else:
            a(f"""
            v_subrev_u32 v13, {R1}, v12
            v_subrev_u32 v11, {R2}, v12
            v_ashrrev_i32 v13, 31, v13
            v_ashrrev_i32 v11, 31, v11
            v_add3_u32 v13, v13, v11, 2
            v_lshl_add_u32 v13, v13, 16, v7
            """)
        a("buffer_load_dword v11, v13, s[12:15], 0 offen sc1")

    def look_eval(off=W2):
        a(f"""
        v_cmp_ge_u32 vcc, v12, v11
        s_nop 0
        s_ff1_i32_b64 s46, vcc
        s_lshr_b32 s46, s46, 4
        s_min_u32 s46, s46, 4
        s_add_u32 s46, s46, s54
        s_min_u32 s46, s46, s75
        v_mov_b32 v11, s46
        ds_write_b32 v15, v11 offset:{off}
        """)

    def epi_reads():
        for i in range(4):
            a(f"ds_read_b128 v[{80+4*i}:{83+4*i}], v5 offset:{1024*i}")

    def epi_head(reads=True):
        if reads:
            epi_reads()
            a("s_nop 7")
        for q in range(4):
            a(f"s_waitcnt lgkmcnt({3-q})")
            for i in range(4):
                a(f"v_add_f32 v{80+4*q+i}, v{80+4*q+i}, v{16+4*q+i}")

    def epi_tail():
        e = []
        for h in range(2):
            R = 80 + 8 * h
            if kind == 'f1':
                T = 96

                def rnd():
                    for i in range(8):
                        e.append(f"v_cvt_pk_bf16_f32 v{R+i}, 0, v{R+i}")
                if not CB:
                    rnd()
                    for i in range(8):
                        e.append(f"v_add_f32 v{R+i}, v{R+i}, v{64+8*h+i}")
                    rnd()
                for op in ("v_mul_f32 v{t}, v{r}, v{r}", "v_fma_f32 v{t}, v{t}, s56, v112", "v_mul_f32 v{t}, v{t}, v{r}",
                           "v_exp_f32 v{t}, v{t}", "v_add_f32 v{t}, 1.0, v{t}", "v_rcp_f32 v{t}, v{t}", "v_mul_f32 v{r}, v{r}, v{t}"):
                    for i in range(8):
                        e.append(op.format(t=T + i, r=R + i))
            if wrow:
                for i in range(4):
                    e.append(f"v_cvt_pk_bf16_f32 v{104+4*h+i}, v{R+2*i}, v{R+2*i+1}")
                if not (E("XNOST", 0) and kind == 'qkv'):
                    e.append(f"buffer_store_dwordx4 v[{104+4*h}:{107+4*h}], v{8+h}, s[12:15], s63 offen {'' if E('XPL', 0) and kind == 'qkv' else 'sc1'}")
            else:
                o = 104 + 4 * h
                for i in range(4):
                    e.append(f"v_cvt_pk_bf16_f32 v{o+i}, v{R+2*i}, v{R+2*i+1}")
                e.append("s_nop 1")
                e.append(f"v_permlane{16 if M16 else 32}_swap_b32 v{o}, v{o+2}")
                e.append(f"v_permlane{16 if M16 else 32}_swap_b32 v{o+1}, v{o+3}")
                e.append(f"buffer_store_dwordx4 v[{o}:{o+3}], v{(8, 9)[h]}, s[12:15], s63 offen sc1")
        e.append(f"s_add_u32 s63, s63, {oseg}")
        if kind == 'qkv':
            sk = a.lab("g_pf")
            e.append("s_cmp_lg_u32 s53, 2")
            e.append(f"s_cbranch_scc1 {sk}")
            e.append("s_lshl_b32 s73, s58, 1")
            e.append("buffer_store_dwordx4 v[116:119], v64, s[12:15], s58 offen sc1")
            e.append("buffer_store_dwordx4 v[116:119], v65, s[12:15], s73 offen sc1")
            e.append("buffer_store_dwordx4 v[116:119], v68, s[12:15], s73 offen sc1")
            e.append("s_add_u32 s58, s58, 131072")
            e.append(f"{sk}:")
        return e
    NPRE = E("NPRE", 50) if kind == 'f1' else 1000
    split = kind == 'f1'
    D = E("DD", 8) if M16 else E("DD32", 8)
    FR = [32 + 4 * i for i in range(8)] + [72, 76, 120, 124]

    def aoff(n):
        return 2048 * (n >> 1) + 256 * (n & 1) if M16 else 1024 * n

    def areads():
        for i in range(D):
            a(f"ds_read_b128 v[{FR[i]}:{FR[i]+3}], v4 offset:{aoff(i)}")

    def areads_if_late():
        sk = a.lab("g_pr")
        a("s_cmp_eq_u32 s65, 0")
        a(f"s_cbranch_scc1 {sk}")
        areads()
        a(f"{sk}:")

    def mfmas(extra=(), vm=0, bias=False, prio=None, hooks={}):
        extra = list(extra)
        a(f"s_setprio {E('PM', 1) if prio is None else prio}")
        for ks in range(NK):
            WG_ = E("WGRP", 2)
            if ks % WG_ == 0:
                a(f"s_waitcnt lgkmcnt({max(0, min(D - WG_, NK - WG_ - ks))})")
            f = FR[ks % D]
            cc = ("v[64:79]" if bias else "0") if ks == 0 else "v[16:31]"
            def fill(budget):
                cost = 0
                while extra and cost < budget:
                    x = extra.pop(0)
                    cost += 2 if ("v_exp" in x or "v_rcp" in x) else 1
                    a(x)
            if E("XNOMM", 0) and ks > 1:
                a("s_nop 7")
            elif M16:
                for cti in range(2):
                    ct = cti ^ (ks & 1) if E("SNAKE", 1) else cti
                    c = 16 + 8 * (ks & 1) + 4 * ct
                    w = 8 * (ks >> 1) + 4 * ct
                    cc = (f"v[{64+4*ct}:{67+4*ct}]" if bias else "0") if ks < 2 else f"v[{c}:{c+3}]"
                    if wrow:
                        a(f"v_mfma_f32_16x16x32_bf16 v[{c}:{c+3}], a[{w}:{w+3}], v[{f}:{f+3}], {cc}")
                    else:
                        a(f"v_mfma_f32_16x16x32_bf16 v[{c}:{c+3}], v[{f}:{f+3}], a[{w}:{w+3}], {cc}")
                    if cti == 0:
                        fill(E("GAPC", 4) // 2)
            elif wrow:
                a(f"v_mfma_f32_32x32x16_bf16 v[16:31], a[{4*ks}:{4*ks+3}], v[{f}:{f+3}], {cc}")
            else:
                a(f"v_mfma_f32_32x32x16_bf16 v[16:31], v[{f}:{f+3}], a[{4*ks}:{4*ks+3}], {cc}")
            if ks + D < NK:
                a(f"ds_read_b128 v[{f}:{f+3}], v4 offset:{aoff(ks+D)}")
            fill((E("GAPC", 4) + 1) // 2 if M16 else E("GAPC", 4))
            if ks in hooks:
                hooks[ks]()
        for x in extra:
            a(x)
        a("v_xor_b32 v4, 0x10000, v4")
        a(f"s_setprio {E('PO', 0)}")
        cstamp(a, 2, kind, 1)
        a(f"s_waitcnt vmcnt({vm})")
        cstamp(a, 3, kind, 1)
    restart, nsp, g1r, loop0, loop1, tail, g1f = (a.lab("g_" + x) for x in ("restart", "nsp", "g1r", "loop0", "loop1", "tail", "g1f"))
    sp = a.lab("g_sp")
    if kind == 'qkv':
        zwait(a, done, 10)
    cstamp(a, 0, kind)
    a(f"""
    {restart}:
    s_cmp_lg_u32 s44, 0
    s_cbranch_scc1 {nsp}
    s_mov_b32 s70, 0
    {sp}:
    """)
    look_issue(0)
    a(f"""
    s_waitcnt vmcnt(0)
    v_cmp_ge_u32 vcc, v12, v11
    s_add_u32 s70, s70, 1
    s_and_b32 s46, vcc_lo, 0xffff
    s_cbranch_scc0 {sp}_ok
    s_sleep {SPIN}
    s_cmp_lt_u32 s70, {TMO}
    s_cbranch_scc1 {sp}
    s_branch {done}
    {sp}_ok:
    """)
    look_eval()
    a(f"""
    {nsp}:
    s_waitcnt lgkmcnt(0)
    s_barrier
    ds_read_b32 v14, v15 offset:{W2}
    s_waitcnt lgkmcnt(0)
    v_readfirstlane_b32 s66, v14
    s_nop 3
    """)
    a(f"{restart}_go:")
    wstamp(a, 126, 1, kind)
    dma_if(60)
    a(f"""
    s_cmp_eq_u32 s51, 1
    s_cbranch_scc1 {g1r}
    s_add_u32 s59, s60, 1
    """)
    dma_if(59)
    w0 = a.lab("g_w0")
    a(f"""
    s_cmp_eq_u32 s69, 1
    s_cbranch_scc1 {w0}
    s_waitcnt vmcnt(0)
    {w0}:
    s_waitcnt vmcnt({ND})
    """)
    def look0():
        if not FRESH:
            look0_()

    def look0_():
        sk = a.lab("g_nl")
        a(f"s_cmp_lg_u32 s44, 0")
        a(f"s_cbranch_scc1 {sk}")
        look_issue(1)
        a(f"{sk}:")
    look0()
    a(f"""
    {loop0}_l:
    s_barrier
    """)
    wstamp(a, 126, 2, kind)
    areads()
    a(f"s_branch {loop0}_m")
    a.align(E("PADG", 0))
    a(f"""
    {loop0}:
    s_barrier
    """)
    wstamp(a, 126, 2, kind)
    cstamp(a, 1, kind, 1)
    a(f"{loop0}_m:")
    ne = a.lab("g_ne")
    nw = a.lab("g_nw")
    ex0 = a.lab("g_ex0")
    if FRESH:
        def ev():
            a("s_cmp_lg_u32 s44, 0")
            a(f"s_cbranch_scc1 {ne}")
            a("s_waitcnt vmcnt(0)")
            look_eval(0)
            a(f"{ne}:")
        mfmas(prio=E('PM0', 2), hooks={E("HL", 1): look0_, NK - E("HK", 4): ev})
        a("""
        s_waitcnt lgkmcnt(0)
        s_barrier
        ds_read_b32 v14, v15
        s_nop 6
        """)
    else:
        mfmas(['ds_read_b32 v14, v15'], bias=(kind == 'f1' and CB), prio=E('PM0', 2))
        a("v_readfirstlane_b32 s66, v14")
        a("s_barrier")
        a("s_nop 6")
    cstamp(a, 4, kind, 1)

    def g0_w():
        for i in range(4):
            a(f"ds_write_b128 v5, v[{16+4*i}:{19+4*i}] offset:{1024*i}")
        if FRESH:
            a("s_waitcnt lgkmcnt(4)")
            a("v_readfirstlane_b32 s66, v14")
            return
        a(f"""
        s_cmp_lg_u32 s44, 0
        s_cbranch_scc1 {ne}
        """)
        look_eval()
        a(f"{ne}:")
    g0_w()
    a("s_add_u32 s60, s60, 1")
    a("s_mov_b32 s65, 0")
    dma_pair("s_mov_b32 s65, 1")
    if kind != 'qkv' and E("APF", 1):
        pf = a.lab("g_pf")
        a(f"""
        s_cmp_lg_u32 s44, 2
        s_cbranch_scc1 {pf}
        s_cmp_ge_u32 s62, s66
        s_cbranch_scc1 {pf}
        buffer_load_dword v117, v116, s[12:15], s61 offen sc1
        {pf}:
        """)
    if kind == 'qkv' and E("GPF", 0):
        np_ = a.lab("g_np")
        a(f"""
        s_cmp_lg_u32 s44, 1
        s_cbranch_scc1 {np_}
        s_cmp_eq_u32 s53, 1
        s_cbranch_scc1 {np_}
        s_sub_u32 s46, s60, {E("GPF0", 12)}
        s_cmp_ge_u32 s46, 28
        s_cbranch_scc1 {np_}
        buffer_load_dword v67, v66, s[32:35], s57 offen
        s_add_u32 s57, s57, 8192
        {np_}:
        """)
    a(f"""
    s_cmp_le_u32 s66, s60
    s_cbranch_scc1 {ex0}
    s_cmp_lg_u32 s65, 0
    s_cbranch_scc1 {nw}
    """)

    def g0late():
        a(f"{nw}:")
        a("s_waitcnt vmcnt(0) lgkmcnt(0)")
        look0()
        a(f"s_branch {loop0}_l")
    cold.append(g0late)
    areads()
    look0()
    a(f"s_waitcnt lgkmcnt({D})")
    if E("STAMP", 0) in (4, 6):
        a("s_sub_u32 s60, s60, 1")
        cstamp(a, 5, kind, 1)
        a("s_add_u32 s60, s60, 1")
    a(f"""
    s_branch {loop0}
    {ex0}:
    s_cmp_lg_u32 s44, 0
    s_cbranch_scc1 {ex0}_n
    s_sleep {E("SLX", 6)}
    """)
    look_issue(0)
    a("s_waitcnt vmcnt(0)")
    look_eval()
    a(f"""
    {ex0}_n:
    s_waitcnt lgkmcnt(0)
    s_barrier
    ds_read_b32 v14, v15 offset:{W2}
    s_waitcnt lgkmcnt(0)
    v_readfirstlane_b32 s66, v14
    s_barrier
    s_cmp_gt_u32 s66, s60
    s_cbranch_scc1 {restart}_go
    s_branch {tail}
    """)
    def drain_flag():
        sk = a.lab("g_df")
        a(f"""
        v_mov_b32 v10, 1
        s_mov_b64 exec, 1
        s_waitcnt vmcnt(0)
        ds_add_rtn_u32 v10, v15, v10 offset:4
        s_waitcnt lgkmcnt(0)
        v_readfirstlane_b32 s46, v10
        s_mov_b64 exec, -1
        s_mov_b32 s71, 0
        s_sub_u32 s59, s60, 1
        s_cmp_lg_u32 s46, s68
        s_cbranch_scc1 {sk}
        """)
        set_flag(a, 52, 59, 10, wave=None)
        wstamp(a, 126, 0, kind, 59)
        a(f"{sk}:")
        a("s_add_u32 s68, s68, 4")
    nfl, nep, nw1, mm2, jn = (a.lab("g_" + x) for x in ("nfl", "nep", "nw1", "mm2", "jn"))
    FB = 2 if split and not E('F1E', 0) else 1
    a(f"""
    {g1r}:
    s_mov_b32 s65, 1
    s_branch {loop1}_e
    """)
    a.align(E("PADG", 0))
    a(f"""
    {loop1}:
    s_mov_b32 s65, 0
    {loop1}_e:
    s_barrier
    """)
    cstamp(a, 1, kind, 1)
    a(f"""
    {"" if FRESH else "ds_read_b32 v14, v15"}
    s_bitcmp1_b32 s67, {FB}
    s_cbranch_scc0 {nfl}
    s_cmp_lg_u32 s44, 4
    s_cbranch_scc1 {nfl}_d
    s_sub_u32 s59, s60, {FB}
    v_mov_b32 v10, s59
    buffer_store_dword v10, v115, s[12:15], s52 offen sc1
    """)
    if E("STAMP", 0) == 3:
        a("s_sub_u32 s59, s59, 1")
    wstamp(a, 126, 0, kind, 59)
    a(f"{nfl}_d:")

    def c1():
        a(f"""
        {nfl}:
        s_cmp_eq_u32 s71, 0
        s_cbranch_scc1 {nfl}_d
        """)
        drain_flag()
        a("s_mov_b32 s65, 2")
        a(f"s_branch {nfl}_d")
    cold.append(c1)
    if not FRESH:
        a("""
        s_waitcnt lgkmcnt(0)
        v_readfirstlane_b32 s66, v14
        """)
    epi_reads()
    dma_pair("s_or_b32 s65, s65, 1")
    a(f"""
    s_bitcmp1_b32 s67, 0
    s_cbranch_scc0 {nep}
    s_waitcnt lgkmcnt(0)
    """)
    for i in range(16):
        a(f"v_add_f32 v{80+i}, v{80+i}, v{16+i}")
    tail_ops = epi_tail()
    if not split:
        for x in tail_ops:
            a(x)
    if kind == 'qkv' and E("EARLY", 1):
        a("s_cmp_le_u32 s60, 2")
        a(f"s_cbranch_scc1 {nep}_e")

        def c2():
            a(f"{nep}_e:")
            drain_flag()
            a(f"s_branch {nep}")
        cold.append(c2)
    a(f"{nep}:")
    if split:
        for x in tail_ops[:NPRE]:
            a(x)
    a(f"""
    s_cmp_lg_u32 s65, 0
    s_cbranch_scc1 {nw1}
    """)
    areads()
    cstamp(a, 5, kind, 1)
    a(f"""
    s_barrier
    {jn}:
    """)

    def c3():
        a(f"""
        {nw1}:
        s_cmp_eq_u32 s65, 2
        s_cbranch_scc1 {nw1}_w
        s_waitcnt vmcnt(0)
        {nw1}_w:
        s_barrier
        """)
        areads()
        a(f"s_branch {jn}")
    cold.append(c3)
    cstamp(a, 4, kind, 1)
    if split:
        a(f"""
        s_bitcmp1_b32 s67, 0
        s_cbranch_scc0 {mm2}
        """)
        mfmas(tail_ops[NPRE:], vm=0 if E('F1E', 0) else 2)
        a(f"{mm2}_d:")

        def c4():
            a(f"{mm2}:")
            mfmas()
            a(f"s_branch {mm2}_d")
        cold.append(c4)
    else:
        mfmas(['ds_read_b32 v14, v15'] if FRESH else [])
    assert not (FRESH and split)
    a(f"""
    {"v_readfirstlane_b32 s66, v14" if FRESH else ""}
    s_lshl_b32 s67, s67, 1
    s_or_b32 s67, s67, 1
    s_add_u32 s60, s60, 1
    s_cmp_gt_u32 s66, s60
    s_cbranch_scc1 {loop1}
    s_barrier
    ds_read_b32 v14, v15 offset:{W2}
    s_waitcnt lgkmcnt(0)
    v_readfirstlane_b32 s66, v14
    s_barrier
    """)
    dma_if(60)
    a("s_sub_u32 s59, s60, 1")
    wstamp(a, 126, 3, kind, 59)
    epi_head()
    for x in epi_tail():
        a(x)
    a(f"""
    s_mov_b32 s67, 0
    s_mov_b32 s71, 1
    s_cmp_gt_u32 s66, s60
    {"s_cbranch_scc1 " + g1r if E("DEFER", 1) else ""}
    """)
    drain_flag()
    a(f"""
    s_cmp_gt_u32 s66, s60
    s_cbranch_scc1 {g1r}
    {tail}:
    s_cmp_lt_u32 s60, s75
    s_cbranch_scc1 {restart}
    s_waitcnt vmcnt(0)
    s_barrier
    """)
    cstamp(a, 7, kind)
    a(f"s_branch {fin}")
    for c in cold:
        c()


LH = 32768


def rnd16(a, base):
    for i in range(16):
        a(f"v_cvt_pk_bf16_f32 v{base+i}, 0, v{base+i}")


def pk16(a, op, d, x, y, bcast=False, neg=False):
    for i in range(0, 16, 2):
        if bcast:
            yy = y & ~1
            sel = "op_sel:[0,1] op_sel_hi:[1,1]" if y & 1 else "op_sel_hi:[1,0]"
            a(f"{op} v[{d+i}:{d+i+1}], v[{x+i}:{x+i+1}], v[{yy}:{yy+1}] {sel}" + (" neg_lo:[0,1] neg_hi:[0,1]" if neg else ""))
        else:
            a(f"{op} v[{d+i}:{d+i+1}], v[{x+i}:{x+i+1}], v[{y+i}:{y+i+1}]")


def modload(a, base, idx):
    a(f"s_mov_b32 s46, {WS_MOD + idx*4096}")
    for half in range(2):
        for q in range(2):
            r = base + half * 8 + q * 4
            a(f"buffer_load_dwordx4 v[{r}:{r+3}], v3, s[12:15], s46 offen offset:{half*2048 + q*16} sc1")


def ln_consts(a, dst):
    a(f"""
    s_mul_i32 s46, s44, 2064
    s_add_u32 s46, s46, {LH}
    v_add_u32 v10, s46, v2
    v_and_b32 v11, 7, v1
    v_lshrrev_b32 v12, 3, v1
    v_mul_u32_u24 v13, 2064, v11
    v_lshl_add_u32 v13, v12, 4, v13
    s_lshl_b32 s46, s44, 8
    s_add_u32 s46, s46, {LH}
    v_add_u32 v13, s46, v13
    v_lshlrev_b32 v11, 4, v11
    v_lshl_add_u32 v11, v12, 9, v11
    s_lshl_b32 s46, s44, 13
    s_lshl_b32 s47, s42, 7
    s_add_u32 s46, s46, s47
    s_add_u32 s46, s46, {dst:#x}
    v_add_u32 v11, s46, v11
    v_add_u32 v12, 4096, v11
    """)


def ln_tail(a):
    for i in range(8):
        a(f"v_lshlrev_b32 v{64+2*i}, 16, v{96+i}")
        a(f"v_and_b32 v{65+2*i}, 0xffff0000, v{96+i}")
    for i in range(4):
        a(f"v_pk_add_f32 v[{80+2*i}:{81+2*i}], v[{64+2*i}:{65+2*i}], v[{72+2*i}:{73+2*i}]")
    a("v_pk_add_f32 v[80:81], v[80:81], v[84:85]")
    a("v_pk_add_f32 v[82:83], v[82:83], v[86:87]")
    a("v_pk_add_f32 v[80:81], v[80:81], v[82:83]")
    a("v_add_f32 v14, v80, v81")
    wave_sum_to_sgpr(a, 14, 46)
    a("""
    s_nop 1
    v_mov_b32 v15, s46
    v_mul_f32 v15, 0x3a800000, v15
    """)
    pk16(a, "v_pk_add_f32", 80, 64, 15, bcast=True, neg=True)
    a("v_pk_mul_f32 v[104:105], v[80:81], v[80:81]")
    a("v_pk_mul_f32 v[106:107], v[82:83], v[82:83]")
    for i in range(4, 16, 2):
        d = 104 + (i & 2)
        a(f"v_pk_fma_f32 v[{d}:{d+1}], v[{80+i}:{81+i}], v[{80+i}:{81+i}], v[{d}:{d+1}]")
    a("v_pk_add_f32 v[104:105], v[104:105], v[106:107]")
    a("v_add_f32 v14, v104, v105")
    rnd_bf16(a, 15)
    wave_sum_to_sgpr(a, 14, 47)
    pk16(a, "v_pk_add_f32", 64, 64, 15, bcast=True, neg=True)
    a("""
    v_mov_b32 v14, s47
    v_mul_f32 v14, 0x3a800000, v14
    """)
    rnd_bf16(a, 14)
    a("v_add_f32 v14, 0x3727c5ac, v14")
    rnd_bf16(a, 14)
    a("v_sqrt_f32 v14, v14")
    a("s_nop 0")
    rnd_bf16(a, 14)
    a("v_rcp_f32 v14, v14")
    rnd16(a, 64)
    pk16(a, "v_pk_mul_f32", 64, 64, 14, bcast=True)
    rnd16(a, 64)
    pk16(a, "v_pk_mul_f32", 64, 64, 32)
    rnd16(a, 64)
    pk16(a, "v_pk_add_f32", 64, 64, 48)
    for i in range(8):
        a(f"v_cvt_pk_bf16_f32 v{104+i}, v{64+2*i}, v{65+2*i}")
    a(f"""
    ds_write_b128 v10, v[104:107]
    ds_write_b128 v10, v[108:111] offset:1024
    s_waitcnt lgkmcnt(0)
    s_barrier
    ds_read_b128 v[104:107], v13
    ds_read_b128 v[108:111], v13 offset:128
    s_waitcnt lgkmcnt(1)
    buffer_store_dwordx4 v[104:107], v11, s[12:15], s63 offen sc1
    s_waitcnt lgkmcnt(0)
    buffer_store_dwordx4 v[108:111], v12, s[12:15], s63 offen sc1
    s_waitcnt vmcnt(0)
    s_barrier
    """)
    set_flag(a, 52, 60, 14)


def row_off(a, v):
    a(f"""
    s_lshl_b32 s46, s42, 3
    s_add_u32 s46, s46, s44
    s_lshl_b32 s46, s46, 11
    v_add_u32 v{v}, s46, v2
    """)


L_M1 = 140000 // 256 * 256


def mod1_issue(a):
    a(f"""
    s_load_dwordx4 s[8:11], s[0:1], {KA['c']}
    v_lshrrev_b32 v5, 3, v0
    v_mul_u32_u24 v6, {2*12288}, v5
    v_and_b32 v7, 7, v0
    v_lshl_add_u32 v6, v7, 4, v6
    v_add_u32 v7, 12288, v6
    v_lshlrev_b32 v5, 2, v5
    s_lshr_b32 s50, s2, 5
    s_and_b32 s51, s2, 31
    s_mul_i32 s52, s50, {128*12288}
    s_lshl_b32 s53, s51, 7
    s_add_u32 s52, s52, s53
    s_lshl_b32 s53, s50, 8
    s_waitcnt lgkmcnt(0)
    """)
    srd(a, 28, 10, 11, 1024 * 12288)
    srd(a, 32, 8, 9, 2048)
    a("""
    buffer_load_dword v8, v5, s[32:35], s53 offen
    buffer_load_dwordx4 v[12:15], v6, s[28:31], s52 offen
    buffer_load_dwordx4 v[16:19], v7, s[28:31], s52 offen
    """)


def mod1_finish(a):
    a(f"s_waitcnt vmcnt({1 if E('ET', 0) == 1 else 0})")
    a("""
    v_lshlrev_b32 v9, 16, v8
    v_and_b32 v10, 0xffff0000, v8
    v_mul_f32 v20, 0xbfb8aa3b, v9
    v_mul_f32 v21, 0xbfb8aa3b, v10
    v_exp_f32 v20, v20
    v_exp_f32 v21, v21
    s_nop 0
    v_add_f32 v20, 1.0, v20
    v_add_f32 v21, 1.0, v21
    v_rcp_f32 v20, v20
    v_rcp_f32 v21, v21
    s_nop 0
    v_mul_f32 v9, v9, v20
    v_mul_f32 v10, v10, v21
    """)
    rnd_bf16(a, 9)
    rnd_bf16(a, 10)
    for p in range(4):
        a(f"v_lshlrev_b32 v28, 16, v{12+p}")
        a(f"v_and_b32 v29, 0xffff0000, v{12+p}")
        a(f"v_lshlrev_b32 v30, 16, v{16+p}")
        a(f"v_and_b32 v31, 0xffff0000, v{16+p}")
        a(f"v_mul_f32 v{20+2*p}, v28, v9")
        a(f"v_mul_f32 v{21+2*p}, v29, v9")
        a(f"v_fmac_f32 v{20+2*p}, v30, v10")
        a(f"v_fmac_f32 v{21+2*p}, v31, v10")
    a("s_nop 1")
    for i in range(8):
        a(f"v_add_f32_dpp v{20+i}, v{20+i}, v{20+i} row_ror:8 row_mask:0xf bank_mask:0xf")
    a("s_nop 1")
    for i in range(4):
        a(f"v_permlane16_swap_b32 v{20+i}, v{24+i}")
    for i in range(4):
        a(f"v_add_f32 v{20+i}, v{20+i}, v{24+i}")
    a("s_nop 1")
    for i in range(2):
        a(f"v_permlane32_swap_b32 v{20+i}, v{22+i}")
    for i in range(2):
        a(f"v_add_f32 v{20+i}, v{20+i}, v{22+i}")
    sk = a.lab("m1")
    a(f"""
    v_and_b32 v22, 7, v1
    v_lshlrev_b32 v22, 5, v22
    v_bfe_u32 v23, v1, 4, 1
    v_lshl_add_u32 v22, v23, 4, v22
    v_lshrrev_b32 v23, 5, v1
    v_lshl_add_u32 v22, v23, 3, v22
    s_lshl_b32 s52, s44, 8
    s_add_u32 s52, s52, {L_M1}
    v_add_u32 v22, s52, v22
    ds_write_b64 v22, v[20:21]
    s_waitcnt lgkmcnt(0)
    s_barrier
    s_cmp_lg_u32 s44, 1
    s_cbranch_scc1 {sk}
    v_lshlrev_b32 v22, 2, v1
    v_add_u32 v23, {L_M1}, v22
    """)
    for i in range(8):
        a(f"ds_read_b32 v{24+i}, v23 offset:{256*i}")
    a("s_waitcnt lgkmcnt(0)")
    for st in (4, 2, 1):
        for i in range(st):
            a(f"v_add_f32 v{24+i}, v{24+i}, v{24+st+i}")
    a(f"""
    s_lshl_b32 s52, s2, 8
    s_add_u32 s52, s52, {WS_MODP:#x}
    buffer_store_dword v24, v22, s[12:15], s52 offen sc1
    {sk}:
    """)


def mod_issue(a):
    for i in range(16):
        a(f"s_add_u32 s46, s53, {i*12288}")
        a(f"buffer_load_dwordx4 v[{32+4*i}:{35+4*i}], v4, s[28:31], s46 offen")


def mod_finish(a, younger):
    for i in range(16):
        a(f"s_waitcnt vmcnt({younger + 15 - i})")
        for p in range(4):
            w = 32 + 4 * i + p
            a(f"v_lshlrev_b32 v104, 16, v{w}")
            a(f"v_and_b32 v105, 0xffff0000, v{w}")
            if i == 0:
                a(f"v_mul_f32 v{96+2*p}, v104, v16")
                a(f"v_mul_f32 v{97+2*p}, v105, v16")
            else:
                a(f"v_fmac_f32 v{96+2*p}, v104, v{16+i}")
                a(f"v_fmac_f32 v{97+2*p}, v105, v{16+i}")
    sk = a.lab("m_sk")
    a("""
    v_lshlrev_b32 v104, 5, v0
    ds_write_b128 v104, v[96:99]
    ds_write_b128 v104, v[100:103] offset:16
    v_lshlrev_b32 v105, 2, v1
    s_lshl_b32 s46, s44, 11
    v_add_u32 v104, s46, v105
    s_waitcnt lgkmcnt(0)
    """)
    for i in range(8):
        a(f"ds_read_b32 v{96+i}, v104 offset:{256*i}")
    a("s_waitcnt lgkmcnt(0)")
    for st in (4, 2, 1):
        for i in range(st):
            a(f"v_add_f32 v{96+i}, v{96+i}, v{96+st+i}")
    a(f"""
    v_lshlrev_b32 v104, 2, v0
    ds_write_b32 v104, v96 offset:16384
    s_waitcnt lgkmcnt(0)
    s_barrier
    s_cmp_lg_u32 s44, 0
    s_cbranch_scc1 {sk}
    """)
    for i in range(8):
        a(f"ds_read_b32 v{96+i}, v105 offset:{16384 + 256*i}")
    a("s_waitcnt lgkmcnt(0)")
    for st in (4, 2, 1):
        for i in range(st):
            a(f"v_add_f32 v{96+i}, v{96+i}, v{96+st+i}")
    rnd_bf16(a, 96)
    a(f"""
    s_lshl_b32 s46, s53, 1
    buffer_store_dword v96, v105, s[12:15], s46 offen sc1
    {sk}:
    """)


def ln1_role(a, done):
    assert WS_MOD == 0
    a(f"""
    s_load_dwordx2 s[4:5], s[0:1], {KA['x']}
    v_lshlrev_b32 v2, 4, v1
    v_lshlrev_b32 v3, 5, v1
    s_lshl_b32 s55, s43, 2
    s_add_u32 s55, s55, s42
    s_waitcnt lgkmcnt(0)
    """)
    srd(a, 24, 4, 5, 2048 * 2048)
    row_off(a, 7)
    a("s_lshl_b32 s63, s43, 16")
    a("buffer_load_dwordx4 a[0:3], v7, s[24:27], s63 offen")
    a("buffer_load_dwordx4 a[4:7], v7, s[24:27], s63 offen offset:1024")
    tstamp(a, 1)
    zwait(a, done, 8)
    a("s_barrier")
    tstamp(a, 2)
    a("v_lshlrev_b32 v4, 4, v0")
    for k in range(8):
        a(f"s_mov_b32 s46, {WS_MODP + 8192*k:#x}")
        a(f"buffer_load_dwordx4 v[{32+4*k}:{35+4*k}], v4, s[12:15], s46 offen sc1")
    nx = a.lab("l_nx")
    a(f"""
    s_cmp_lg_u32 s44, 0
    s_cbranch_scc1 {nx}
    s_cmp_ge_u32 s42, 2
    s_cbranch_scc1 {nx}
    s_or_b32 s47, s39, 0x100
    v_mov_b32 v8, s47
    v_mov_b32 v9, 0
    s_lshl_b32 s46, s40, 3
    s_lshl_b32 s47, s42, 2
    s_add_u32 s46, s46, s47
    s_add_u32 s46, s46, {WS_CTL + 4096 + 512:#x}
    s_mov_b64 exec, 1
    buffer_store_dword v8, v9, s[12:15], s46 offen sc1
    s_mov_b64 exec, -1
    {nx}:
    """)
    ln_consts(a, WS_H1)
    a(f"""
    s_lshl_b32 s52, s43, 9
    s_lshl_b32 s47, s42, 7
    s_add_u32 s52, s52, s47
    s_add_u32 s52, s52, {WS_FLG + FL:#x}
    s_mov_b32 s60, s43
    s_waitcnt vmcnt(0)
    """)
    for st in (16, 8, 4):
        for i in range(st):
            a(f"v_add_f32 v{32+i}, v{32+i}, v{32+st+i}")
    for i in range(4):
        rnd_bf16(a, 32 + i)
    a("""
    ds_write_b128 v4, v[32:35]
    s_waitcnt lgkmcnt(0)
    s_barrier
    """)
    for base, off in ((48, 0), (32, 4096)):
        for half in range(2):
            for q in range(2):
                r = base + half * 8 + q * 4
                a(f"ds_read_b128 v[{r}:{r+3}], v3 offset:{off + half*2048 + q*16}")
    a("s_waitcnt lgkmcnt(0)")
    for i in range(16):
        a(f"v_add_f32 v{32+i}, 1.0, v{32+i}")
    rnd16(a, 32)
    tstamp(a, 5)
    lnsub = a.lab("l_sub")
    lnend = a.lab("l_end")
    a(f"{lnsub}:")
    a("s_lshl_b32 s63, s60, 16")
    for i in range(8):
        a(f"v_accvgpr_read_b32 v{96+i}, a{i}")
    ln_tail(a)
    a(f"""
    s_cmp_ge_u32 s60, 8
    s_cbranch_scc1 {lnend}
    """)
    for n in range(1, 8):
        a(f"s_add_u32 s63, s63, {8*65536}")
        a(f"buffer_load_dwordx4 a[{8*n}:{8*n+3}], v7, s[24:27], s63 offen")
        a(f"buffer_load_dwordx4 a[{8*n+4}:{8*n+7}], v7, s[24:27], s63 offen offset:1024")
    a("s_waitcnt vmcnt(0)")
    a(f"{lnend}:")
    for i in range(56):
        a(f"v_accvgpr_mov_b32 a{i}, a{i+8}")
    a(f"""
    s_add_u32 s60, s60, 8
    s_cmp_lt_u32 s60, 64
    s_cbranch_scc1 {lnsub}
    """)
    tstamp(a, 6)


def mod2(a):
    a(f"""
    s_load_dwordx4 s[8:11], s[0:1], {KA['c']}
    v_lshrrev_b32 v5, 3, v0
    s_mov_b32 s46, {16*12288}
    v_mul_lo_u32 v4, v5, s46
    v_and_b32 v6, 7, v0
    v_lshl_add_u32 v4, v6, 4, v4
    v_lshlrev_b32 v5, 5, v5
    s_waitcnt lgkmcnt(0)
    """)
    srd(a, 28, 10, 11, 1024 * 12288)
    srd(a, 32, 8, 9, 2048)
    a("buffer_load_dwordx4 v[8:11], v5, s[32:35], 0 offen")
    a("buffer_load_dwordx4 v[12:15], v5, s[32:35], 0 offen offset:16")
    a("s_waitcnt vmcnt(0)")
    for i in range(8):
        a(f"v_lshlrev_b32 v{16+2*i}, 16, v{8+i}")
        a(f"v_and_b32 v{17+2*i}, 0xffff0000, v{8+i}")
    for op in ("v_mul_f32 v{t}, 0xbfb8aa3b, v{r}", "v_exp_f32 v{t}, v{t}", "v_add_f32 v{t}, 1.0, v{t}", "v_rcp_f32 v{t}, v{t}",
               "v_mul_f32 v{r}, v{r}, v{t}"):
        for i in range(16):
            a(op.format(t=112 + i, r=16 + i))
    rnd16(a, 16)
    ml = a.lab("m_loop")
    a(f"""
    s_lshl_b32 s53, s55, 9
    s_add_u32 s53, s53, 4096
    {ml}:
    """)
    mod_issue(a)
    mod_finish(a, 0)
    a(f"""
    s_barrier
    s_add_u32 s53, s53, 128
    s_and_b32 s46, s53, 511
    s_cmp_lg_u32 s46, 0
    s_cbranch_scc1 {ml}
    s_lshl_b32 s54, s55, 7
    s_add_u32 s54, s54, {WS_FLG + FMD:#x}
    s_mov_b32 s60, 0
    s_waitcnt vmcnt(0)
    """)
    set_flag(a, 54, 60, 8)
    tstamp(a, 7)
    if E("WPF", 0):
        a(f"""
        s_load_dwordx2 s[4:5], s[0:1], {KA['w1']}
        s_load_dwordx2 s[6:7], s[0:1], {KA['w2']}
        v_lshlrev_b32 v4, 7, v0
        s_mul_i32 s46, s55, {7*65536}
        s_waitcnt lgkmcnt(0)
        """)
        srd(a, 28, 4, 5, 1024 * 7168)
        srd(a, 32, 6, 7, 1024 * 7168)
        for i in range(7):
            a(f"buffer_load_dword v{32+2*i}, v4, s[28:31], s46 offen")
            a(f"buffer_load_dword v{33+2*i}, v4, s[32:35], s46 offen")
            a("s_add_u32 s46, s46, 65536")
            a("s_waitcnt vmcnt(2)")
        a("s_waitcnt vmcnt(0)")


def mod_wait(a, done, level):
    nsp = a.lab("mw")
    a(f"""
    s_cmp_lg_u32 s44, 0
    s_cbranch_scc1 {nsp}
    v_and_b32 v8, 15, v1
    v_lshlrev_b32 v8, 7, v8
    s_mov_b32 s46, {WS_FLG + FMD:#x}
    s_mov_b32 s47, {level}
    """)
    spin(a, 8, "s46", 47, 9, done, sleep=2)
    a(f"{nsp}:")
    a("s_barrier")


def red_role(a, kind, done):
    a(f"""
    s_load_dwordx2 s[4:5], s[0:1], {KA['x' if kind == 'c' else 'out']}
    s_load_dwordx2 s[6:7], s[0:1], {KA['b2']}
    v_lshlrev_b32 v2, 4, v1
    v_lshlrev_b32 v3, 5, v1
    s_waitcnt lgkmcnt(0)
    """)
    srd(a, 24, 4, 5, 2048 * 2048)
    srd(a, 28, 6, 7, 2048)
    mod_wait(a, done, 0)
    if kind == 'c':
        modload(a, 16, 2)
        modload(a, 32, 4)
        modload(a, 48, 3)
        a("s_waitcnt vmcnt(0)")
        for i in range(16):
            a(f"v_add_f32 v{32+i}, 1.0, v{32+i}")
        rnd16(a, 32)
    else:
        modload(a, 16, 5)
        a("buffer_load_dwordx4 v[48:51], v2, s[28:31], 0 offen")
        a("buffer_load_dwordx4 v[52:55], v2, s[28:31], 0 offen offset:1024")
        a("s_waitcnt vmcnt(0)")
        for i in range(8):
            a(f"v_lshlrev_b32 v{32+2*i}, 16, v{48+i}")
            a(f"v_and_b32 v{33+2*i}, 0xffff0000, v{48+i}")
    P = WS_P1 if kind == 'c' else WS_P2
    a(f"""
    s_lshl_b32 s46, s42, 14
    s_lshl_b32 s47, s44, 11
    s_add_u32 s46, s46, s47
    s_add_u32 s46, s46, {P:#x}
    v_add_u32 v4, s46, v2
    v_and_b32 v5, 31, v1
    v_lshlrev_b32 v5, 7, v5
    v_add_u32 v5, {WS_FLG + (FW if kind == 'c' else FF2):#x}, v5
    v_lshlrev_b32 v6, 2, v1
    s_lshl_b32 s46, s44, 9
    v_add_u32 v6, s46, v6
    s_lshl_b32 s46, s44, 12
    v_add_u32 v7, s46, v3
    """)
    row_off(a, 8)
    a(f"v_add_u32 v9, {WS_X1:#x}, v8")
    if kind == 'c':
        ln_consts(a, WS_H2)
        a(f"""
        s_lshl_b32 s52, s43, 9
        s_lshl_b32 s47, s42, 7
        s_add_u32 s52, s52, s47
        s_add_u32 s52, s52, {WS_FLG + FC:#x}
        """)
    a("s_mov_b32 s60, s43")
    loop = a.lab("r_loop")
    a(f"""
    {loop}:
    s_lshl_b32 s61, s60, 18
    s_lshl_b32 s63, s60, 16
    """)
    if kind == 'c':
        a("buffer_load_dwordx4 a[0:3], v8, s[24:27], s63 offen")
        a("buffer_load_dwordx4 a[4:7], v8, s[24:27], s63 offen offset:1024")
    nsp = a.lab("r_nsp")
    a(f"s_cmp_lg_u32 s44, 0")
    a(f"s_cbranch_scc1 {nsp}")
    spin(a, 5, "s76" if kind == 'f' else "0", 60, 14, done)
    a(f"{nsp}:")
    a("s_barrier")
    wstamp(a, 14, 1, kind)
    for kq in range(4):
        if kq:
            a(f"s_add_u32 s61, s61, 65536")
        for c2 in range(2):
            r = 96 + (kq * 2 + c2) * 4
            a(f"buffer_load_dwordx4 v[{r}:{r+3}], v4, s[12:15], s61 offen offset:{1024*c2} sc1")
    if kind == 'f':
        a("buffer_load_dwordx4 a[0:3], v9, s[12:15], s63 offen sc1")
        a("buffer_load_dwordx4 a[4:7], v9, s[12:15], s63 offen offset:1024 sc1")
    ex = 2 if kind == 'f' else 0
    for kq in range(4):
        a(f"s_waitcnt vmcnt({6-2*kq+ex})")
        d = 64 if kq == 0 else 80
        for i in range(8):
            a(f"v_lshlrev_b32 v{d+2*i}, 16, v{96+8*kq+i}")
            a(f"v_and_b32 v{d+2*i+1}, 0xffff0000, v{96+8*kq+i}")
        if kq:
            for i in range(8):
                a(f"v_pk_add_f32 v[{64+2*i}:{65+2*i}], v[{64+2*i}:{65+2*i}], v[{80+2*i}:{81+2*i}]")
    for c2 in range(2):
        for j in range(8):
            a(f"ds_write_b32 v6, v{64+8*c2+j} offset:{4096*j + 256*c2}")
    a("""
    s_waitcnt lgkmcnt(0)
    s_barrier
    """)
    wstamp(a, 14, 2, kind)
    a("""
    ds_read_b128 v[64:67], v7
    ds_read_b128 v[68:71], v7 offset:16
    ds_read_b128 v[72:75], v7 offset:2048
    ds_read_b128 v[76:79], v7 offset:2064
    s_waitcnt vmcnt(0)
    """)
    for i in range(8):
        a(f"v_accvgpr_read_b32 v{96+i}, a{i}")
    for i in range(8):
        a(f"v_lshlrev_b32 v{80+2*i}, 16, v{96+i}")
        a(f"v_and_b32 v{81+2*i}, 0xffff0000, v{96+i}")
    a("s_waitcnt lgkmcnt(0)")
    rnd16(a, 64)
    if kind == 'f':
        pk16(a, "v_pk_add_f32", 64, 64, 32)
        rnd16(a, 64)
    pk16(a, "v_pk_mul_f32", 64, 64, 16)
    rnd16(a, 64)
    pk16(a, "v_pk_add_f32", 64, 64, 80)
    for i in range(8):
        a(f"v_cvt_pk_bf16_f32 v{96+i}, v{64+2*i}, v{65+2*i}")
    if kind == 'f':
        of = os.environ.get("OUTF", "")
        a(f"buffer_store_dwordx4 v[96:99], v8, s[24:27], s63 offen {of}")
        a(f"buffer_store_dwordx4 v[100:103], v8, s[24:27], s63 offen offset:1024 {of}")
    else:
        a("buffer_store_dwordx4 v[96:99], v9, s[12:15], s63 offen sc1")
        a("buffer_store_dwordx4 v[100:103], v9, s[12:15], s63 offen offset:1024 sc1")
        ln_tail(a)
    wstamp(a, 14, 0, kind)
    a(f"""
    s_add_u32 s60, s60, {3 if kind == 'c' else "s78"}
    s_cmp_lt_u32 s60, {64 if kind == 'c' else "s75"}
    s_cbranch_scc1 {loop}
    s_branch {done}
    """)


def att_role(a, done, nphase=4):
    LROW = 272
    WLDS = 48 * LROW
    a(f"""
    s_mul_i32 s46, s42, 24576
    s_add_u32 s46, s46, {WS_QKV:#x}
    v_lshlrev_b32 v2, 4, v1
    v_add_u32 v3, s46, v2
    v_add_u32 v5, 4096, v3
    v_lshrrev_b32 v4, 4, v1
    v_and_b32 v9, 15, v1
    s_lshl_b32 s46, s42, 12
    s_add_u32 s46, s46, {WS_MKV:#x}
    v_and_b32 v6, 7, v1
    v_lshlrev_b32 v6, 4, v6
    v_lshl_add_u32 v6, v4, 7, v6
    v_add_u32 v6, s46, v6
    v_and_b32 v7, 31, v1
    v_lshlrev_b32 v7, 4, v7
    v_lshrrev_b32 v10, 5, v1
    v_lshl_add_u32 v7, v10, 10, v7
    v_add_u32 v7, s46, v7
    s_mul_i32 s50, s44, {WLDS}
    v_mul_u32_u24 v8, {LROW}, v9
    v_lshl_add_u32 v8, v4, 4, v8
    v_add_u32 v8, s50, v8
    v_bfe_u32 v11, v1, 2, 3
    v_mul_u32_u24 v11, {LROW}, v11
    v_lshl_add_u32 v11, v10, 6, v11
    v_and_b32 v12, 3, v1
    v_lshl_add_u32 v11, v12, 4, v11
    v_add_u32 v11, s50, v11
    """)
    a(f"""
    v_mul_u32_u24 v14, {LROW}, v4
    v_lshl_add_u32 v14, v9, 4, v14
    v_add_u32 v14, s50, v14
    v_mov_b32 v16, 0
    v_mov_b32 v17, 0
    v_mov_b32 v18, 0
    v_mov_b32 v19, 0
    ds_write_b128 v14, v[16:19] offset:{40*LROW}
    ds_write_b128 v14, v[16:19] offset:{44*LROW}
    v_lshlrev_b32 v12, 2, v4
    v_bfe_u32 v13, v1, 2, 2
    v_add_u32 v12, v12, v13
    v_mul_u32_u24 v12, {LROW}, v12
    v_and_b32 v13, 3, v1
    v_lshl_add_u32 v12, v13, 3, v12
    v_add_u32 v12, s50, v12
    v_lshlrev_b32 v13, 10, v13
    s_lshl_b32 s46, s42, 12
    s_add_u32 s46, s46, {WS_MKV:#x}
    v_add_u32 v13, s46, v13
    v_lshlrev_b32 v10, 9, v4
    v_lshl_add_u32 v10, v9, 4, v10
    s_lshl_b32 s46, s42, 13
    s_add_u32 s46, s46, {WS_OX:#x}
    v_add_u32 v10, s46, v10
    s_lshl_b32 s52, s42, 9
    s_lshl_b32 s47, s43, 7
    s_add_u32 s52, s52, s47
    s_add_u32 s52, s52, {WS_FLG + FA:#x}
    v_min_u32 v42, 2, v1
    v_lshlrev_b32 v42, 9, v42
    s_lshl_b32 s46, s40, 11
    s_and_b32 s47, s42, 3
    s_lshl_b32 s47, s47, 7
    s_add_u32 s46, s46, s47
    s_add_u32 s46, s46, {WS_FLG + FQ:#x}
    v_add_u32 v48, s46, v42
    s_mul_i32 s46, s42, 24576
    s_add_u32 s46, s46, {WS_QKV:#x}
    v_lshlrev_b32 v49, 7, v1
    v_add_u32 v49, s46, v49
    v_cmp_le_u32 s[56:57], 32, v1
    v_lshlrev_b32 v14, 2, v4
    s_mov_b32 s54, 0x3e0293ee
    s_mov_b32 s60, s43
    """)
    for r in range(4):
        a(f"v_add_u32 v15, {r}, v14")
        a(f"v_cmp_gt_u32 s[{84+2*r}:{85+2*r}], v15, v9")
    loop = a.lab("a_loop")
    a(f"""
    {loop}:
    s_mul_i32 s45, s60, {0 if E("NOLD", 0) else 786432}
    s_add_u32 s48, s45, 8192
    s_add_u32 s49, s45, 16384
    s_lshl_b32 s61, s60, 17
    s_lshl_b32 s63, s60, 18
    """)
    spin(a, 48, "0", 60, 40, done)
    Q, Kf = 0, 32
    for qt, vv in enumerate((3, 5)):
        for ks in range(4):
            r = Q + (qt * 4 + ks) * 4
            a(f"buffer_load_dwordx4 a[{r}:{r+3}], v{vv}, s[12:15], s45 offen offset:{1024*ks} sc1")
    for kt, vv in enumerate((3, 5)):
        for ks in range(4):
            r = Kf + (kt * 4 + ks) * 4
            a(f"buffer_load_dwordx4 a[{r}:{r+3}], v{vv}, s[12:15], s48 offen offset:{1024*ks} sc1")
    VS = 16
    WD = E("WD", 0)
    if WD:
        a(f"s_add_u32 s46, s60, {WD}")
        a("v_cmp_ge_u32 vcc, s46, v40")
    for i in range(8):
        a(f"buffer_load_dwordx4 v[{VS+4*i}:{VS+4*i+3}], v{3 if i < 4 else 5}, s[12:15], s49 offen offset:{1024*(i&3)} sc1")
    a("s_waitcnt vmcnt(0)")
    if WD:
        nw = a.lab("a_nw")
        a(f"""
        s_cbranch_vccnz {nw}
        s_add_u32 s46, s45, {WD*786432}
        buffer_load_dword v50, v49, s[12:15], s46 offen sc1
        s_add_u32 s46, s46, 8192
        buffer_load_dword v51, v49, s[12:15], s46 offen sc1
        s_add_u32 s46, s46, 8192
        buffer_load_dword v52, v49, s[12:15], s46 offen sc1
        {nw}:
        """)
    for i in range(8):
        a(f"ds_write_b128 v8, v[{VS+4*i}:{VS+4*i+3}] offset:{(i>>2)*16*LROW + (i&3)*64}")
    S = 56

    def smm(kt, qt, ks):
        c = S + (kt * 2 + qt) * 4
        ka = Kf + (kt * 4 + ks) * 4
        qa = Q + (qt * 4 + ks) * 4
        cc = "0" if ks == 0 else f"v[{c}:{c+3}]"
        a(f"v_mfma_f32_16x16x32_bf16 v[{c}:{c+3}], a[{ka}:{ka+3}], a[{qa}:{qa+3}], {cc}")
    for ks in range(4):
        for kt, qt in ((0, 0), (0, 1), (1, 1)):
            smm(kt, qt, ks)
    VF = 80
    a("s_waitcnt lgkmcnt(0)")
    for dt in range(8):
        for kt in range(2):
            r = VF + (dt * 3 + kt) * 2
            a(f"ds_read_b64_tr_b16 a[{r}:{r+1}], v12 offset:{kt*16*LROW + 32*dt}")
        if dt == 3:
            a("s_waitcnt lgkmcnt(0)")
    a("v_mov_b32 v15, 0xff800000")
    for r in range(4):
        for t in (0, 3):
            c = S + t * 4 + r
            a(f"v_cndmask_b32 v{c}, v{c}, v15, s[{84+2*r}:{85+2*r}]")
    cp = a.lab("a_cp")
    fl = a.lab("a_fl")
    ok = a.lab("a_ok")
    a(f"""
    s_mov_b32 s70, 0
    {cp}:
    buffer_load_dword v40, v13, s[12:15], s61 offen sc1
    s_waitcnt vmcnt(0)
    v_cmp_eq_u32 vcc, -1, v40
    s_add_u32 s70, s70, 1
    s_cbranch_vccz {fl}
    {cp}_s:
    s_sleep {SPA}
    s_cmp_lt_u32 s70, {TMO}
    s_cbranch_scc1 {cp}
    s_branch {done}
    {fl}:
    """)
    wstamp(a, 16, 1)
    for ks in range(4):
        a(f"buffer_load_dwordx4 v[{24+4*ks}:{27+4*ks}], v6, s[12:15], s61 offen offset:{1024*ks} sc1")
    a("buffer_load_dwordx4 v[16:19], v7, s[12:15], s61 offen offset:512 sc1")
    a("buffer_load_dwordx4 v[20:23], v7, s[12:15], s61 offen offset:2560 sc1")
    a("s_waitcnt vmcnt(0)")
    a("v_max_u32 v40, v16, v17")
    for r in range(18, 40, 2):
        a(f"v_max3_u32 v40, v40, v{r}, v{r+1}")
    a(f"""
    v_cmp_eq_u32 vcc, -1, v40
    s_nop 0
    s_cbranch_vccnz {cp}_s
    """)
    for ks in range(4):
        for qt in range(2):
            c = S + (4 + qt) * 4
            qa = Q + (qt * 4 + ks) * 4
            cc = "0" if ks == 0 else f"v[{c}:{c+3}]"
            a(f"v_mfma_f32_16x16x32_bf16 v[{c}:{c+3}], v[{24+4*ks}:{27+4*ks}], a[{qa}:{qa+3}], {cc}")
    a(f"ds_write_b128 v11, v[16:19] offset:{32*LROW}")
    a(f"ds_write_b128 v11, v[20:23] offset:{32*LROW + 128}")
    a("s_waitcnt lgkmcnt(0)")
    for dt in range(8):
        r = VF + (dt * 3 + 2) * 2
        a(f"ds_read_b64_tr_b16 a[{r}:{r+1}], v12 offset:{32*LROW + 32*dt}")
    for qt in range(2):
        for r in range(4):
            c = S + (4 + qt) * 4 + r
            a(f"v_cndmask_b32 v{c}, v{c}, v15, s[56:57]")
    P = 24

    def xred(v, op):
        a(f"""
        v_mov_b32 v{v+1}, v{v}
        s_nop 1
        v_permlane16_swap_b32 v{v}, v{v+1}
        {op} v{v}, v{v}, v{v+1}
        v_mov_b32 v{v+1}, v{v}
        s_nop 1
        v_permlane32_swap_b32 v{v}, v{v+1}
        {op} v{v}, v{v}, v{v+1}
        """)
    for qt in range(2):
        tiles = [(0, 0), (2, 0)] if qt == 0 else [(0, 1), (1, 1), (2, 1)]
        regs = [S + (kt * 2 + q) * 4 + r for kt, q in tiles for r in range(4)]
        a(f"v_max_f32 v40, v{regs[0]}, v{regs[1]}")
        for i in range(2, len(regs), 2):
            a(f"v_max3_f32 v40, v40, v{regs[i]}, v{regs[i+1]}")
        xred(40, "v_max_f32")
        a("v_mul_f32 v40, s54, v40")
        for r in regs:
            a(f"v_fma_f32 v{r}, v{r}, s54, -v40")
        for r in regs:
            a(f"v_exp_f32 v{r}, v{r}")
        a(f"v_add_f32 v40, v{regs[0]}, v{regs[1]}")
        for r in regs[2:]:
            a(f"v_add_f32 v40, v40, v{r}")
        xred(40, "v_add_f32")
        a("v_rcp_f32 v40, v40")
        a("s_nop 0")
        for r in regs:
            a(f"v_mul_f32 v{r}, v{r}, v40")
        for kt, q in tiles:
            c = S + (kt * 2 + q) * 4
            p = P + (q * 3 + kt) * 2
            a(f"v_cvt_pk_bf16_f32 v{p}, v{c}, v{c+1}")
            a(f"v_cvt_pk_bf16_f32 v{p+1}, v{c+2}, v{c+3}")
    O = 64
    a("s_waitcnt lgkmcnt(0)")
    a("s_nop 0")
    for qt in range(2):
        kts = (0, 2) if qt == 0 else (0, 1, 2)
        for kt in kts:
            for dt in range(8):
                c = O + (qt * 8 + dt) * 4
                v = VF + (dt * 3 + kt) * 2
                p = P + (qt * 3 + kt) * 2
                cc = "0" if kt == 0 else f"v[{c}:{c+3}]"
                a(f"v_mfma_f32_16x16x16_bf16 v[{c}:{c+3}], a[{v}:{v+1}], v[{p}:{p+1}], {cc}")
    a("s_add_u32 s46, s63, 4096")
    for qt in range(2):
        for p in range(4):
            c = O + (qt * 8 + 2 * p) * 4
            for i in range(4):
                a(f"v_cvt_pk_bf16_f32 v{c+i}, v{c+2*i}, v{c+2*i+1}")
            if not E("NOO", 0):
                a(f"buffer_store_dwordx4 v[{c}:{c+3}], v10, s[12:15], s{63 if p < 2 else 46} offen offset:{(p&1)*2048 + qt*256} {'' if E('PLO', 0) else 'sc1'}")
    a("s_waitcnt vmcnt(0)")
    set_flag(a, 52, 60, 16, wave=None)
    wstamp(a, 16)
    a(f"""
    s_add_u32 s60, s60, {nphase}
    s_cmp_lt_u32 s60, 64
    s_cbranch_scc1 {loop}
    s_branch {done}
    """)


def gate(a, i, done):
    if i >= E("NST", 6):
        a(f"s_branch {done}")


def workers(a, done):
    assert R1 < R2 < 64 and Q1 < Q2 < 64 and HK < XS and HV < 64
    lg, p2, lw, lf2, lf1, la, lc, lh = (a.lab(x) for x in ("w_g", "w_p2", "w_wo", "w_f2", "w_f1", "w_att", "w_c", "w_h"))
    a("s_sub_u32 s48, s41, 16")
    tstamp(a, 0)
    a(f"""
    s_cmp_lt_u32 s48, 12
    s_cbranch_scc1 {lg}
    s_and_b32 s42, s48, 3
    s_mov_b32 s43, s40
    """)
    ln1_role(a, done)
    a(f"""
    s_cmp_lt_u32 s48, 14
    s_cbranch_scc1 {lh}_s
    s_and_b32 s55, s48, 1
    s_lshl_b32 s55, s55, 3
    s_add_u32 s55, s55, s40
    """)
    mod2(a)
    a(f"""
    s_barrier
    {lh}_s:
    s_mov_b32 s77, s48
    s_cmp_eq_u32 s48, 14
    s_cselect_b32 s53, 2, 1
    s_sub_u32 s48, s48, 12
    s_min_u32 s48, s48, 2
    s_mov_b32 s79, 0
    {lh}_n:
    s_cmp_eq_u32 s53, 1
    s_cselect_b32 s74, {HK}, {HV}
    s_cselect_b32 s75, {XS}, 64
    s_mov_b32 s76, {FREP}
    s_branch {lg}_e
    {lh}:
    s_mov_b32 s48, s77
    s_cmp_lt_u32 s48, 14
    s_cbranch_scc1 {la}
    s_and_b32 s42, s40, 3
    s_lshr_b32 s43, s40, 2
    s_cmp_eq_u32 s48, 14
    s_cbranch_scc1 {lc}
    s_mov_b32 s75, {Q1}
    s_mov_b32 s76, 0
    s_mov_b32 s78, 2
    {lh}_f:
    """)
    gate(a, 5, done)
    red_role(a, 'f', done)
    a(f"{lc}:")
    gate(a, 2, done)
    red_role(a, 'c', done)
    a(f"""
    {la}:
    s_lshl_b32 s42, s40, 2
    s_and_b32 s46, s44, 3
    s_add_u32 s42, s42, s46
    s_and_b32 s43, s48, 1
    s_lshl_b32 s43, s43, 1
    s_lshr_b32 s46, s44, 2
    s_add_u32 s43, s43, s46
    """)
    att_role(a, done)
    a(f"""
    {lg}:
    s_lshr_b32 s53, s48, 2
    s_cmp_lt_u32 s53, 2
    s_cselect_b32 s46, 1, 0
    s_xor_b32 s53, s53, s46
    s_mov_b32 s74, 0
    s_mov_b32 s76, 0
    s_cmp_eq_u32 s53, 1
    s_cselect_b32 s75, {HK}, {XS}
    s_cmp_eq_u32 s53, 2
    s_cselect_b32 s75, {HV}, s75
    {lg}_e:
    """)
    gemm_role(a, 'qkv', done, p2)
    a(f"""
    {p2}:
    s_cmp_lg_u32 s44, 0
    s_cbranch_scc1 {p2}_h
    s_mov_b32 s47, 63
    s_cmp_eq_u32 s53, 0
    s_cbranch_scc1 {p2}_q
    s_sub_u32 s52, s52, s76
    v_mov_b32 v10, 1
    v_mov_b32 v11, {2*FREP}
    s_mov_b64 exec, 1
    buffer_atomic_add v10, v11, s[12:15], s52 offen sc0
    s_waitcnt vmcnt(0)
    v_readfirstlane_b32 s46, v10
    s_mov_b64 exec, -1
    s_mov_b32 s47, 63
    s_nop 1
    s_cmp_eq_u32 s46, 0
    s_cbranch_scc1 {p2}_h
    {p2}_q:
    """)
    set_flag(a, 52, 47, 10, wave=None)
    a(f"""
    {p2}_h:
    s_cmp_eq_u32 s76, 0
    s_cbranch_scc1 {p2}_m
    s_cmp_eq_u32 s79, 1
    s_cbranch_scc1 {lh}
    s_mov_b32 s79, 1
    s_cmp_lt_u32 s77, 14
    s_cselect_b32 s53, 2, s53
    s_cselect_b32 s48, s48, 3
    s_branch {lh}_n
    {p2}_m:
    """)
    tstamp(a, 3)
    a(f"""
    s_cmp_lt_u32 s48, 8
    s_cselect_b32 s75, {Q1}, {R1}
    s_cmp_lt_u32 s48, 4
    s_cselect_b32 s75, 64, s75
    {p2}_r:
    s_lshr_b32 s42, s40, 1
    s_and_b32 s43, s40, 1
    s_lshl_b32 s43, s43, 2
    s_and_b32 s46, s48, 3
    s_add_u32 s43, s43, s46
    s_cmp_lt_u32 s48, 4
    s_cbranch_scc1 {lw}
    s_cmp_lt_u32 s48, 8
    s_cbranch_scc1 {lf2}
    s_cmp_lg_u32 s43, 7
    s_cbranch_scc1 {lf1}
    s_mov_b32 s43, 2
    s_cmp_eq_u32 s76, 0
    s_cbranch_scc1 {lc}
    s_mov_b32 s43, 7
    s_mov_b32 s78, 1
    {lf1}_t:
    s_cmp_lt_u32 s41, 8
    s_cselect_b32 s74, {Q1}, {Q2}
    s_cselect_b32 s75, {Q2}, 64
    s_add_u32 s43, s43, s74
    s_cmp_lt_u32 s43, s75
    s_cbranch_scc1 {lh}_f
    s_branch {done}
    {lf1}_d:
    s_cmp_eq_u32 s76, 0
    s_cbranch_scc1 {done}
    s_and_b32 s42, s49, 3
    s_lshr_b32 s43, s49, 2
    s_mov_b32 s78, 64
    s_branch {lf1}_t
    {REPL}:
    s_setprio 0
    s_barrier
    s_and_b32 s48, s41, 7
    s_add_u32 s48, s48, 4
    s_cmp_lt_u32 s41, 8
    s_cselect_b32 s74, {R1}, {R2}
    s_cselect_b32 s75, {R2}, 64
    s_cselect_b32 s76, 1, 2
    s_cselect_b32 s46, {Q1}, {Q2}
    s_cselect_b32 s47, {Q2}, 64
    s_mul_i32 s76, s76, {FREP}
    s_cmp_lt_u32 s48, 8
    s_cselect_b32 s74, s46, s74
    s_cselect_b32 s75, s47, s75
    s_branch {p2}_r
    {lf1}:
    """)
    gate(a, 3, done)
    gemm_role(a, 'f1', done, lf1 + '_d')
    a(f"{lf2}:")
    gate(a, 4, done)
    gemm_role(a, 'f2', done, done)
    a(f"{lw}:")
    gate(a, 1, done)
    gemm_role(a, 'wo', done, done)
```
